```python
import torch

def _softmax(x, axis=-1):
    return torch.softmax(x, dim=axis)

def _gelu(x):
    return torch.nn.functional.gelu(x, approximate='tanh')

def _silu(x):
    return torch.nn.functional.silu(x)

def _sigmoid(x):
    return torch.sigmoid(x)

def _layernorm(x, axis=-1, eps=1e-05):
    m = x.mean(dim=axis, keepdim=True)
    v = x.var(dim=axis, keepdim=True, unbiased=False)
    return (x - m) / torch.sqrt(v + eps)

def _scatter_add(tgt, idx, src, axis=0):
    return tgt.clone().index_add_(axis, idx, src)

def _segment_sum(src, seg, n):
    out = torch.zeros((n,) + src.shape[1:], dtype=src.dtype)
    return out.index_add_(0, seg, src)

def _pad(x, pw):
    flat = tuple((v for pair in reversed(pw) for v in pair))
    return torch.nn.functional.pad(x, flat)
kernel_name = 'recurrent_scan__softmax_full_mha__mixer_gmlp__prompt'

def setup_inputs():

    _w = lambda a: (lambda t: t.to(torch.bfloat16) if t.is_floating_point() else t)(torch.as_tensor(a))

    def _A_setup():
        B, S, D = (1, 2048, 640)
        return {'x': _w((lambda *s: torch.randn(*s, dtype=torch.bfloat16) * 0.05)(B, S, D)), 'wqkv': _w((lambda *s: torch.randn(*s, dtype=torch.bfloat16) * 0.05)(D, 3 * D)), 'wo': _w((lambda *s: torch.randn(*s, dtype=torch.bfloat16) * 0.05)(D, D))}
    _A_in = _A_setup()

    def _B_setup():
        B, S, D, F = (1, 2048, 640, 1728)
        Fh = F // 2
        return {'x': _w((lambda *s: torch.randn(*s, dtype=torch.bfloat16) * 0.05)(B, S, D)), 'w_in': _w((lambda *s: torch.randn(*s, dtype=torch.bfloat16) * 1.6)(D, 2 * Fh)), 'w_sp': _w(0.01 * (lambda *s: torch.randn(*s, dtype=torch.bfloat16) * 1.6)(S, S)), 'b_sp': _w(1.0 + 0.01 * (lambda *s: torch.randn(*s, dtype=torch.bfloat16) * 0.05)(S)), 'w_out': _w((lambda *s: torch.randn(*s, dtype=torch.bfloat16) * 0.05)(Fh, D))}
    _B_in = _B_setup()
    return {'A_x': _A_in['x'], 'A_wqkv': _A_in['wqkv'], 'A_wo': _A_in['wo'], 'B_x': _B_in['x'], 'B_w_in': _B_in['w_in'], 'B_w_sp': _B_in['w_sp'], 'B_b_sp': _B_in['b_sp'], 'B_w_out': _B_in['w_out']}

def reference(A_x, A_wqkv, A_wo, B_x, B_w_in, B_w_sp, B_b_sp, B_w_out):

    def _A_ref(x, wqkv, wo):
        B, S, D = x.shape
        H = 32
        Dh = D // H
        qkv = (lambda x, *d: x.permute(*d))((x @ wqkv).reshape(B, S, 3, H, Dh), 2, 0, 3, 1, 4)
        q, k, v = (qkv[0], qkv[1], qkv[2])
        scale = Dh ** (-0.5)
        scores = torch.einsum('bhqd,bhkd->bhqk', q, k) * scale
        p = _softmax(scores, axis=-1)
        o = torch.einsum('bhqk,bhkd->bhqd', p, v)
        return (lambda x, *d: x.permute(*d))(o, 0, 2, 1, 3).reshape(B, S, D) @ wo

    def _B_ref(x, w_in, w_sp, b_sp, w_out):
        B, S, D = x.shape
        F = w_in.shape[-1]
        Fh = F // 2
        z = _gelu(torch.einsum('bsd,df->bsf', x, w_in))
        z1 = z[..., :Fh].clone()
        z2 = _layernorm(z[..., Fh:], axis=-1)
        g = torch.einsum('ts,bsf->btf', w_sp, z2) + b_sp[None, :, None]
        return torch.einsum('bsf,fd->bsd', z1 * g, w_out)
    x = A_x
    xn = _layernorm(x, axis=-1)
    s = _A_ref(xn, A_wqkv, A_wo)
    g = _silu(_B_ref(xn, B_w_in, B_w_sp, B_b_sp, B_w_out))
    return x + s * g
```

```python
from lib import *
sX,sWQ,sWI,sWS,sDB=4,8,12,16,20
sW,sRB,sA,sLW,sT0,sT1,sOff,sDel,sIt,sN2,sLine,sZa,sZb,sCi,sB0,sB1,sQB,sTy,sZ2a,sZ2b,sSc=range(24,45)
vL16,vZ0,vZ1,vQM,vQR,vD,vDZ,vStd,vRstd,vK1,vK2=1,2,3,4,5,6,11,12,13,14,15
T=16; TMP=48; PK=64; X=96
FR=0; AZ=32; AQ=64; ASV=144
OOR='0xf0000000'
DPF=5
def dmaZ(slot,i,base):
    return [f's_add_u32 m0, {s(sLW)}, {slot}' if isinstance(slot,str) and i==0 else (f's_add_u32 m0, m0, 1024' if i else f's_add_u32 m0, {s(sLW)}, {slot*40960}'),
            f's_add_u32 {s(sOff)}, {s(base)}, {i*8*3456}',
            f'buffer_load_dwordx4 {v(vDZ)}, {s(sWI,4)}, {s(sOff)} offen lds']
def dmaQ(slot,i,q):
    return [f's_add_u32 m0, m0, 1024' if i else f's_add_u32 m0, {s(sLW)}, {slot*40960}',
            f's_add_u32 {s(sOff)}, {s(sQB)}, {(128*q+16*(i//5))*3840}',
            f'buffer_load_dwordx4 {v(vD+i%5)}, {s(sWQ,4)}, {s(sOff)} offen lds']
def rdZ(n,buf):
    return [f'ds_read_b64_tr_b16 {a(FR+4*buf+2*r,2)}, {v(vZ0+(n&1))} offset:{(n>>1)*2048+r*512}' for r in (0,1)]
def rdQ(n,buf):
    kk,p=divmod(n,5)
    return [f'ds_read_b64_tr_b16 {a(FR+4*buf+2*r,2)}, {v(vQM if p<4 else vQR)} offset:{kk*5120+r*1280+(40*p if p<4 else 0)}' for r in (0,1)]
def stage(e,mf,rd,rdn,sw,dma,vm,fill,bud,pre1=None,after_bar=None):
    carry=0
    for n in range(40):
        e(mf(n))
        if n==40-DPF:
            e(f's_waitcnt vmcnt({vm}) lgkmcnt({2*(DPF-2)})\ns_barrier'); e(sw)
            if after_bar: e(after_bar)
        else: e(f's_waitcnt lgkmcnt({2*(DPF-2)})')
        d=[]
        if dma and n>=1 and (n-1)%3==0 and (n-1)//3<10: d=dma((n-1)//3)
        e(d[:2])
        m=n+DPF
        if m<40: e(rd(m,m%8))
        elif rdn: e(rdn(m-40,m%8))
        e(d[2:])
        if n==0 and pre1: e(pre1)
        elif fill:
            carry+=bud-(4 if d else 0)
            t=take(fill,carry); carry-=sum(cost(x) for x in t); e(t)
def mfZ(hf):
    return lambda n: f'v_mfma_f32_32x32x16_bf16 {a(AZ+16*(n&1),16)}, {a(FR+4*(n%8),4)}, {v(X+4*(20*hf+(n>>1)),4)}, '+('0' if hf==0 and n<2 else a(AZ+16*(n&1),16))
def mfQ(q):
    return lambda n: f'v_mfma_f32_32x32x16_bf16 {a(AQ+16*(n%5),16)}, {a(FR+4*(n%8),4)}, {v(X+4*(8*q+n//5),4)}, '+('0' if q==0 and n<5 else a(AQ+16*(n%5),16))
def gelu(store):
    f=[]
    for p in range(16):
        r=(T+2*p,T+2*p+1); t=(TMP,TMP+1)
        for op in ('v_mul_f32 {t}, {r}, {r}','v_fma_f32 {t}, {t}, {k2}, {k1}','v_mul_f32 {t}, {t}, {r}','v_exp_f32 {t}, {t}',
                   'v_fma_f32 {t}, {t}, {sd}, {sd}','v_rcp_f32 {t}, {t}','v_mul_f32 {r}, {r}, {t}'):
            for j in (0,1): f.append(op.format(t=v(t[j]),r=v(r[j]),k1=v(vK1),k2=v(vK2),sd=v(vStd)))
        if store:
            f.append(f'v_cvt_pk_bf16_f32 {v(PK+p)}, {v(r[0])}, {v(r[1])}')
            if p%4==3:
                z=sZa if p<8 else sZb
                f.append(f'buffer_store_dwordx4 {v(PK+p-3,4)}, {v(vL16)}, {s(sWS,4)}, {s(z)} offen')
                if p%8==3: f.append(f's_add_u32 {s(z)}, {s(z)}, 65536')
    return f
def stats():
    S=TMP+2; f=[]
    for t in (0,1):
        f+= [f'v_add_f32 {v(S+2*t)}, {v(T+16*t)}, {v(T+16*t+1)}', f'v_mul_f32 {v(S+2*t+1)}, {v(T+16*t)}, {v(T+16*t)}']
        for r in range(1,16):
            if r>1: f.append(f'v_add_f32 {v(S+2*t)}, {v(S+2*t)}, {v(T+16*t+r)}')
            f.append(f'v_fma_f32 {v(S+2*t+1)}, {v(T+16*t+r)}, {v(T+16*t+r)}, {v(S+2*t+1)}')
    f+=[f's_cmp_eq_u32 {s(sCi)}, 13\ns_cselect_b32 {s(sT0)}, 0, 1.0',
        f'v_fma_f32 {v(S)}, {v(S)}, {s(sT0)}, {v(S+2)}', f'v_fma_f32 {v(S+1)}, {v(S+1)}, {s(sT0)}, {v(S+3)}',
        f'v_mov_b32 {v(S+2)}, {v(S)}', f'v_mov_b32 {v(S+3)}, {v(S+1)}',
        f'v_and_b32 {v(S+4)}, 31, v0', f'v_lshlrev_b32 {v(S+4)}, 3, {v(S+4)}',
        f'v_permlane32_swap_b32 {v(S)}, {v(S+2)}', f'v_permlane32_swap_b32 {v(S+1)}, {v(S+3)}',
        f's_lshl_b32 {s(sT0)}, {s(sRB)}, 4', f's_add_u32 {s(sT0)}, {s(sT0)}, {s(sCi)}', f's_lshl_b32 {s(sT0)}, {s(sT0)}, 2',
        f's_add_u32 {s(sT0)}, {s(sT0)}, {s(sW)}', f's_lshl_b32 {s(sT0)}, {s(sT0)}, 8', f's_add_u32 {s(sT0)}, {s(sT0)}, {ST}',
        f'v_add_f32 {v(S)}, {v(S)}, {v(S+2)}', f'v_add_f32 {v(S+1)}, {v(S+1)}, {v(S+3)}',
        f'buffer_store_dwordx2 {v(S,2)}, {v(S+4)}, {s(sWS,4)}, {s(sT0)} offen sc1']
    return f
def flag(lab):
    return f'''s_cmp_lg_u32 {s(sW)}, 0
    s_cbranch_scc1 {lab}
    s_lshl_b32 {s(sT0)}, {s(sRB)}, 4
    v_mov_b32 {v(TMP+8)}, 1
    s_mov_b64 exec, 1
    buffer_atomic_add {v(TMP+8)}, off, {s(sDB,4)}, {s(sT0)} sc1
    s_mov_b64 exec, -1
    {lab}:'''
PV=TMP+9; PL=80
def poll_issue(): return f's_lshl_b32 {s(sT1)}, {s(sRB)}, 4\nbuffer_load_dword {v(PV)}, off, {s(sDB,4)}, {s(sT1)} sc1'
def poll_wait(e,lab):
    e(f'''s_mov_b32 s46, 0x100000
    {lab}:
    s_waitcnt vmcnt(0)
    v_readfirstlane_b32 {s(sT0)}, {v(PV)}
    s_cmp_ge_u32 {s(sT0)}, 14
    s_cbranch_scc1 {lab}_ok
    buffer_load_dword {v(PV)}, off, {s(sDB,4)}, {s(sT1)} sc1
    s_sub_u32 s46, s46, 1
    s_cbranch_scc0 {lab}
    {lab}_ok:
    v_lshrrev_b32 {v(PV)}, 5, v0
    v_mul_u32_u24 {v(PV)}, {7*1024-256}, {v(PV)}
    v_lshl_add_u32 {v(PV)}, v0, 3, {v(PV)}
    s_lshl_b32 {s(sT0)}, {s(sRB)}, 6
    s_add_u32 {s(sT0)}, {s(sT0)}, {s(sW)}
    s_lshl_b32 {s(sT0)}, {s(sT0)}, 8
    s_add_u32 {s(sT0)}, {s(sT0)}, {ST}
    s_add_u32 {s(sT1)}, {s(sT0)}, 4096''')
    for j in range(7): e(f'buffer_load_dwordx2 {v(PL+2*j,2)}, {v(PV)}, {s(sWS,4)}, {s(sT0 if j<4 else sT1)} offen offset:{(j&3)*1024} sc1')
def bf(r): return f'v_cvt_pk_bf16_f32 {v(r)}, {v(r)}, {v(r)}\nv_lshlrev_b32 {v(r)}, 16, {v(r)}'
def meanstd(e,S,n):
    e(f'''v_mov_b32 {v(S+2)}, {v(S)}
    v_mov_b32 {v(S+3)}, {v(S+1)}
    s_nop 1
    v_permlane32_swap_b32 {v(S)}, {v(S+2)}
    v_permlane32_swap_b32 {v(S+1)}, {v(S+3)}
    s_nop 0
    v_add_f32 {v(S)}, {v(S)}, {v(S+2)}
    v_add_f32 {v(S+1)}, {v(S+1)}, {v(S+3)}
    v_mul_f32 {v(S)}, {fl(1.0/n)}, {v(S)}
    v_mul_f32 {v(S+1)}, {fl(1.0/n)}, {v(S+1)}
    v_fma_f32 {v(S+1)}, -{v(S)}, {v(S)}, {v(S+1)}
    v_max_f32 {v(S+1)}, 0, {v(S+1)}
    {bf(S)}
    {bf(S+1)}
    v_add_f32 {v(S+1)}, {fl(1e-5)}, {v(S+1)}
    {bf(S+1)}
    v_sqrt_f32 {v(S+1)}, {v(S+1)}
    s_nop 0
    {bf(S+1)}''')
def z2fin(e,nst):
    e(f's_waitcnt vmcnt({nst})')
    for j in range(1,7): e(f'v_add_f32 {v(PL)}, {v(PL)}, {v(PL+2*j)}\nv_add_f32 {v(PL+1)}, {v(PL+1)}, {v(PL+2*j+1)}')
    meanstd(e,PL,864)
    W=PL+4
    e(f'''v_rcp_f32 {v(PL+1)}, {v(PL+1)}
    v_and_b32 {v(W)}, 31, v0
    v_mul_f32 {v(PL)}, {v(PL)}, {v(PL+1)}
    v_lshlrev_b32 {v(W)}, 7, {v(W)}
    v_lshrrev_b32 {v(W+1)}, 5, v0
    v_lshl_add_u32 {v(W)}, {v(W+1)}, 3, {v(W)}
    v_and_b32 {v(W+1)}, 2, v0
    v_lshl_add_u32 {v(W)}, {v(W+1)}, 5, {v(W)}
    v_add_u32 {v(W)}, {s(sLW)}, {v(W)}
    v_xor_b32 {v(W+1)}, 64, {v(W)}
    v_and_b32 {v(W+2)}, 0x7ff, {v(vZ0)}
    v_add_u32 {v(W+2)}, {s(sLW)}, {v(W+2)}
    v_xor_b32 {v(W+3)}, 64, {v(W+2)}''')
    for j in range(8):
        for r in range(4): e(f'v_fma_f32 {v(T+4*j+r)}, {v(T+4*j+r)}, {v(PL+1)}, -{v(PL)}')
        for r in (0,1): e(f'v_cvt_pk_bf16_f32 {v(T+4*j+r)}, {v(T+4*j+2*r)}, {v(T+4*j+2*r+1)}')
        e(f'ds_write_b64 {v(W+(j>>2))}, {v(T+4*j,2)} offset:{16*(j&3)}')
    e('s_waitcnt lgkmcnt(0)')
    for t in (0,1):
        for i in (0,1):
            for r in (0,1): e(f'ds_read_b64_tr_b16 {v(T+8*t+4*i+2*r,2)}, {v(W+2+t)} offset:{i*2048+r*512}')
    for t in (0,1):
        for i in (0,1):
            e(f's_waitcnt lgkmcnt({6-4*t-2*i})\nbuffer_store_dwordx4 {v(T+8*t+4*i,4)}, {v(vL16)}, {s(sWS,4)}, {s(sZ2a+t)} offen offset:{i*1024}')
def xphase(e,dmas,stamp):
    XA=16; S=88
    e(f'''v_and_b32 {v(24)}, 31, v0
    v_lshrrev_b32 {v(25)}, 5, v0
    v_and_b32 {v(26)}, 15, v0
    v_xor_b32 {v(26)}, {v(26)}, {v(25)}
    v_lshlrev_b32 {v(26)}, 4, {v(26)}
    v_lshl_add_u32 {v(26)}, {v(24)}, 8, {v(26)}
    v_add_u32 {v(XA)}, {s(sLW)}, {v(26)}
    v_lshrrev_b32 {v(25)}, 3, {v(24)}
    v_mul_u32_u24 {v(25)}, {40960-2048}, {v(25)}
    v_add_u32 {v(25)}, 8192, {v(25)}
    v_mov_b32 {v(27)}, 0x3f803f80''')
    for j in range(1,8): e(f'v_xor_b32 {v(XA+j)}, {32*j}, {v(XA)}')
    for j in range(8): e(f'v_add_u32 {v(32+j)}, {v(25)}, {v(XA+j)}\nv_add_u32 {v(40+j)}, 81920, {v(XA+j)}')
    e(f'''v_lshrrev_b32 v48, 2, v0
    v_lshrrev_b32 v49, 5, v0
    v_xor_b32 v48, v48, v49
    v_and_b32 v48, 1, v48
    v_lshlrev_b32 v48, 4, v48
    v_bfe_u32 v49, v0, 1, 1
    v_bfe_u32 v50, v0, 3, 2
    v_lshl_add_u32 v49, v50, 1, v49
    v_add_u32 v48, v48, v49
    v_and_b32 v49, 1, v0
    v_lshlrev_b32 v49, 4, v49
    v_mov_b32 v50, 0x3f80
    v_lshlrev_b32 v49, v49, v50''')
    for r in range(8): e(f'v_cmp_eq_u32 {s(60+2*r,2)}, {r}, v48')
    for r in range(4): e(f'v_mov_b32 {v(S+r)}, 0')
    for r in range(8): e(f'v_cndmask_b32 {v(80+r)}, 0, v49, {s(60+2*r,2)}')
    def st(p):
        for r in range(32):
            x=v(X+32*p+r); e(f'v_dot2_f32_bf16 {v(S+2*(r&1))}, {x}, v27, {v(S+2*(r&1))}\nv_dot2_f32_bf16 {v(S+1+2*(r&1))}, {x}, {x}, {v(S+1+2*(r&1))}')
    e('s_waitcnt vmcnt(32)'); stamp(1)
    for j in range(8): e(f'ds_read_b128 {v(X+128+4*j,4)}, {v(32+j)}')
    prev=4
    for p in range(4):
        e(f's_waitcnt vmcnt({24-8*p+10*p})')
        for j in range(8): e(f'ds_read_b128 {v(X+32*p+4*j,4)}, {v((XA if p<2 else 40)+j)} offset:{40960*(p&1)}')
        e('s_waitcnt lgkmcnt(0)')
        if p<3:
            for i in range(10): e(dmas[p](i))
        st(prev); prev=p
    stamp(2)
    st(3)
    e(f's_nop 2\nv_add_f32 {v(S)}, {v(S)}, {v(S+2)}\nv_add_f32 {v(S+1)}, {v(S+1)}, {v(S+3)}')
    meanstd(e,S,640)
    e(f'v_rcp_f32 {v(vRstd)}, {v(S+1)}\nv_mov_b32 {v(vStd)}, {v(S+1)}')
    for r in range(16): e(f'v_sub_f32 {v(64+r)}, 0, {v(S)}')
    e(f'''v_mul_f32 {v(vK1)}, {fl(-2.302208198)}, {v(vRstd)}
    v_mul_f32 {v(vK2)}, {v(vRstd)}, {v(vRstd)}
    v_mul_f32 {v(vK2)}, {fl(0.044715)}, {v(vK2)}
    v_mul_f32 {v(vK2)}, {v(vK1)}, {v(vK2)}''')
    for j in range(22):
        for h in (0,1):
            D=16+16*(j%3)
            if j<20: e(f'v_mfma_f32_32x32x16_bf16 {v(D,16)}, {v(80+4*h,4)}, {v(X+8*j+4*h,4)}, {v(64 if h==0 else D,16)}')
            if j==19 and h==1:
                e('s_waitcnt vmcnt(20)\ns_barrier')
                for m in range(DPF): e(rdZ(m,m))
            if j<2: e('s_nop 3')
            if j>=2:
                D=16+16*((j-2)%3)+8*h
                for r in range(4): e(f'v_cvt_pk_bf16_f32 {v(X+8*(j-2)+4*h+r)}, {v(D+2*r)}, {v(D+2*r+1)}')
    e(f's_waitcnt lgkmcnt({2*(DPF-1)})'); stamp(3)
def zadd(x): return [f'v_add_u32 {v(vZ0)}, {x}, {v(vZ0)}',f'v_add_u32 {v(vZ1)}, {x}, {v(vZ1)}']
def qadd(x): return [f'v_add_u32 {v(vQM)}, {x}, {v(vQM)}',f'v_add_u32 {v(vQR)}, {x}, {v(vQR)}']
def build(stamp_f):
    e=A(); stamp=lambda i: stamp_f(e,i)
    e(f'''s_cmp_ge_u32 s2, 256
    s_cbranch_scc1 k1_end
    s_load_dwordx2 {s(sX,2)}, s[0:1], 0
    s_load_dwordx2 {s(sWQ,2)}, s[0:1], 8
    s_load_dwordx2 {s(sWI,2)}, s[0:1], 32
    s_load_dwordx2 {s(sDB,2)}, s[0:1], 72
    s_load_dwordx2 {s(sWS,2)}, s[0:1], 80
    v_lshrrev_b32 v1, 6, v0
    v_and_b32 v0, 63, v0
    v_readfirstlane_b32 {s(sW)}, v1''')
    stamp(0)
    srd(e,sX,2048*1280); srd(e,sWQ,640*3840); srd(e,sWI,640*3456); srd(e,sDB,256); srd(e,sWS,WSZ)
    e(f'''s_bfe_u32 {s(sRB)}, s2, 0x20001
    s_lshl_b32 {s(sRB)}, {s(sRB)}, 2
    s_bfe_u32 {s(sT0)}, s2, 0x20003
    s_add_u32 {s(sRB)}, {s(sRB)}, {s(sT0)}
    s_mul_i32 {s(sLW)}, {s(sW)}, 10240
    s_lshl_b32 {s(sT0)}, {s(sRB)}, 2
    s_add_u32 {s(sIt)}, {s(sT0)}, {s(sW)}
    s_mul_i32 {s(sT0)}, {s(sIt)}, {32*1280}
    v_lshrrev_b32 v16, 4, v0
    v_and_b32 v17, 15, v0
    v_xor_b32 v17, v17, v16
    v_lshlrev_b32 v17, 4, v17
    v_mul_u32_u24 v16, 1280, v16
    v_add_u32 v16, v16, v17
    v_xor_b32 v17, 64, v16
    v_xor_b32 v18, 128, v16
    v_xor_b32 v19, 192, v16
    s_waitcnt lgkmcnt(0)''')
    for p in (4,0,1,2,3):
        for i in range(8):
            l=(i>>1)*40960+8192+(i&1)*1024 if p==4 else p*40960+i*1024
            e(f's_add_u32 m0, {s(sLW)}, {l}\ns_add_u32 {s(sOff)}, {s(sT0)}, {4*i*1280+p*256}\nbuffer_load_dwordx4 {v(16+(i&3))}, {s(sX,4)}, {s(sOff)} offen lds')
    e(f'''v_lshlrev_b32 {v(vL16)}, 4, v0
    v_lshrrev_b32 v16, 5, v0
    v_bfe_u32 v17, v0, 2, 2
    v_lshl_add_u32 v16, v16, 3, v17
    v_bfe_u32 v17, v0, 4, 1
    v_and_b32 v18, 3, v0
    v_lshl_add_u32 v19, v17, 2, v18
    v_lshlrev_b32 {v(vZ0)}, 3, v19
    v_lshl_add_u32 {v(vZ0)}, v16, 7, {v(vZ0)}
    v_and_b32 v20, 8, v0
    v_lshl_add_u32 {v(vZ0)}, v20, 3, {v(vZ0)}
    v_xor_b32 {v(vZ1)}, 64, {v(vZ0)}
    v_mul_u32_u24 v16, 320, v16
    v_add_u32 v16, 81920, v16
    v_mul_u32_u24 v20, 160, v17
    v_lshl_add_u32 v20, v18, 3, v20
    v_add_u32 {v(vQM)}, v16, v20
    v_mul_u32_u24 v19, 40, v19
    v_add3_u32 {v(vQR)}, v16, v19, 32
    v_lshrrev_b32 v16, 3, v0
    v_mul_u32_u24 v16, 3456, v16
    v_and_b32 v18, 7, v0
    v_lshlrev_b32 v17, 2, v17
    v_xor_b32 v18, v18, v17
    v_lshl_add_u32 {v(vDZ)}, v18, 4, v16
    s_lshr_b32 {s(sT0)}, s2, 5
    s_and_b32 {s(sT1)}, s2, 1
    s_mul_i32 {s(sB0)}, {s(sW)}, {80*3456}
    s_lshl_b32 {s(sZa)}, {s(sIt)}, 10
    s_lshl_b32 {s(sZ2a)}, {s(sIt)}, 11
    s_add_u32 {s(sZ2a)}, {s(sZ2a)}, {Z2T-27*131072}
    s_cmp_ge_u32 {s(sT0)}, 6
    s_cbranch_scc1 k1_B''')
    for j in range(5):
        e(f'''v_add_u32 v16, {64*j}, v0
        v_mul_u32_u24 v17, 3277, v16
        v_lshrrev_b32 v17, 16, v17
        v_mul_u32_u24 v17, {3840-320}, v17
        v_lshl_add_u32 {v(vD+j)}, v16, 4, v17''')
    e(f'''s_mul_i32 {s(sA)}, {s(sT1)}, 6
    s_add_u32 {s(sA)}, {s(sA)}, {s(sT0)}
    s_mov_b32 {s(sCi)}, {s(sA)}
    s_add_u32 {s(sT0)}, {s(sA)}, 15
    s_lshl_b32 {s(sT1)}, {s(sT0)}, 18
    s_add_u32 {s(sZ2a)}, {s(sZ2a)}, {s(sT1)}
    s_add_u32 {s(sZ2b)}, {s(sZ2a)}, 131072
    s_lshl_b32 {s(sT0)}, {s(sT0)}, 7
    s_add_u32 {s(sB0)}, {s(sB0)}, {s(sT0)}
    s_add_u32 {s(sB1)}, {s(sB0)}, {320*3456}
    s_mul_i32 {s(sQB)}, {s(sW)}, {32*3840}
    s_mul_i32 {s(sT0)}, {s(sA)}, 320
    s_add_u32 {s(sQB)}, {s(sQB)}, {s(sT0)}''')
    xphase(e,[lambda i:dmaZ(0,i,sB0),lambda i:dmaZ(1,i,sB1),lambda i:dmaQ(2,i,0)],stamp)
    stage(e,mfZ(0),rdZ,rdZ,zadd(40960),lambda i:dmaQ(3,i,1),20,None,0)
    stage(e,mfZ(1),rdZ,rdQ,[],lambda i:dmaQ(0,i,2),20,None,0)
    stamp(4)
    f=['s_nop 0']*6+[f'v_accvgpr_read_b32 {v(T+r)}, {a(AZ+r)}' for r in range(32)]+gelu(False)+stats()
    stage(e,mfQ(0),rdQ,rdQ,qadd(40960),lambda i:dmaQ(1,i,3),20,f,16)
    stage(e,mfQ(1),rdQ,rdQ,qadd(-122880),lambda i:dmaQ(2,i,4),20,f,16)
    n0=len(e.l)
    stage(e,mfQ(2),rdQ,rdQ,qadd(40960),None,0,f,16,after_bar=flag('k1_fa'))
    assert not f and max(i for i,x in enumerate(e.l) if 'offen sc1' in x)<max(i for i,x in enumerate(e.l) if x=='s_barrier')
    stage(e,mfQ(3),rdQ,rdQ,qadd(40960),None,0,None,0)
    stage(e,mfQ(4),rdQ,rdQ,[],None,0,None,0,after_bar=poll_issue())
    stamp(5)
    e(f'''s_lshr_b32 {s(sTy)}, {s(sA)}, 2
    s_cmp_eq_u32 {s(sTy)}, 0
    s_cselect_b32 {s(sSc)}, {fl(0.32259641858)}, 1.0
    s_cselect_b32 {s(sQB)}, {QS}, {KV}
    s_and_b32 {s(sT0)}, {s(sA)}, 3
    s_mul_i32 {s(sT0)}, {s(sT0)}, {8*HS}
    s_add_u32 {s(sQB)}, {s(sQB)}, {s(sT0)}
    s_lshr_b32 {s(sT0)}, {s(sIt)}, 1
    s_mul_i32 {s(sT0)}, {s(sT0)}, {SS}
    s_add_u32 {s(sQB)}, {s(sQB)}, {s(sT0)}
    s_and_b32 {s(sB0)}, {s(sW)}, 1
    v_mul_f32 v62, {s(sSc)}, {v(vRstd)}
    v_mul_f32 v63, {s(sSc)}, {v(vRstd)}''')
    for p in range(5):
        if p==3: poll_wait(e,'k1_pa')
        for r in range(16): e(f'v_accvgpr_read_b32 {v(200+r)}, {a(AQ+16*p+r)}')
        for r in range(8): e(f'v_pk_mul_f32 {v(200+2*r,2)}, {v(200+2*r,2)}, v[62:63]')
        for r in range(8): e(f'v_cvt_pk_bf16_f32 {v(X+8*p+r)}, {v(200+2*r)}, {v(201+2*r)}')
    e(f'''v_and_b32 v60, 31, v0
    v_lshrrev_b32 v61, 5, v0
    s_cmp_eq_u32 {s(sTy)}, 2
    s_cbranch_scc1 k1_V
    s_lshl_b32 {s(sT0)}, {s(sB0)}, 10
    s_add_u32 {s(sT0)}, {s(sT0)}, {s(sQB)}
    s_lshl_b32 {s(sT1)}, {s(sB0)}, 8
    s_add_u32 {s(sT1)}, {s(sT1)}, {s(sQB)}
    v_mul_u32_u24 v61, {HS}, v61
    v_lshl_add_u32 v61, v60, 3, v61''')
    for p in range(4):
        for h in (0,1): e(f's_add_u32 {s(sOff)}, {s(sT0)}, {(p+4*h)*HS}\nbuffer_store_dwordx4 {v(X+8*p+4*h,4)}, {v(vL16)}, {s(sWS,4)}, {s(sOff)} offen')
    for p in range(4): e(f's_add_u32 {s(sOff)}, {s(sT1)}, {2*p*HS+6144}\nbuffer_store_dwordx2 {v(X+32+2*p,2)}, v61, {s(sWS,4)}, {s(sOff)} offen')
    e('s_branch k1_Z2')
    e(f'''k1_V:
    s_add_u32 {s(sT0)}, {s(sLW)}, {3*40960}
    v_mul_u32_u24 v58, 320, v60
    v_add_u32 v58, {s(sT0)}, v58
    v_mul_u32_u24 v59, 40, v61
    v_add_u32 v59, v58, v59
    v_lshl_add_u32 v58, v61, 3, v58
    s_add_u32 {s(sT0)}, {s(sLW)}, 40960''')
    e(qadd(s(sT0)))
    for p in range(4):
        for q in range(4): e(f'ds_write_b64 v58, {v(X+8*p+2*q,2)} offset:{40*(p+4*(q>>1))+16*(q&1)}')
    for q in range(4): e(f'ds_write_b64 v59, {v(X+32+2*q,2)} offset:{80*q+32}')
    e(f'''s_lshl_b32 {s(sT0)}, {s(sB0)}, 11
    s_add_u32 {s(sT0)}, {s(sT0)}, {s(sQB)}
    v_lshlrev_b32 v61, 9, v61
    v_bfe_u32 v58, v0, 4, 1
    v_mul_u32_u24 v58, {4*HS}, v58
    v_and_b32 v59, 15, v0
    v_lshl_add_u32 v58, v59, 4, v58
    v_add_u32 v58, v58, v61
    v_lshrrev_b32 v56, 4, v0
    v_lshlrev_b32 v56, 9, v56
    v_lshl_add_u32 v56, v59, 4, v56
    v_lshrrev_b32 v59, 2, v60
    v_mul_u32_u24 v59, {HS}, v59
    v_and_b32 v60, 3, v0
    v_lshl_add_u32 v59, v60, 4, v59
    v_add_u32 v59, v59, v61''')
    for r in range(4): e(f'v_mov_b32 {v(52+r)}, 0x3f803f80')
    e('s_waitcnt lgkmcnt(0)')
    for h in (0,1):
        for n in range(5*h,5*h+5):
            for r,x in enumerate(rdQ(n,0)): e(x.replace(a(FR+2*r,2),v(200+4*n+2*r,2)))
        if h==0:
            e('s_mov_b32 exec_lo, 0xfff0fff0\ns_mov_b32 exec_hi, 0xfff0fff0')
            for p in range(8): e(f's_add_u32 {s(sOff)}, {s(sT0)}, {p*HS+2048+256}\nbuffer_store_dwordx4 v[52:55], v56, {s(sWS,4)}, {s(sOff)} offen')
            e('s_mov_b64 exec, -1\ns_waitcnt lgkmcnt(0)')
    for n in range(10):
        i,p=divmod(n,5)
        if n==5: e('s_waitcnt lgkmcnt(0)')
        e(f's_add_u32 {s(sOff)}, {s(sT0)}, {(p*HS if p<4 else 256)+2048+i*1024}\nbuffer_store_dwordx4 {v(200+4*n,4)}, {v(58 if p<4 else 59)}, {s(sWS,4)}, {s(sOff)} offen')
    e('k1_Z2:'); stamp(6)
    z2fin(e,12)
    e('k1_fin:'); stamp(7); stamp(-1)
    e('k1_end:\ns_endpgm')
    e(f'''k1_B:
    s_lshl_b32 {s(sA)}, {s(sT1)}, 1
    s_add_u32 {s(sA)}, {s(sA)}, {s(sT0)}
    s_sub_u32 {s(sA)}, {s(sA)}, 6
    s_add_u32 {s(sCi)}, {s(sA)}, 12
    s_lshl_b32 {s(sT0)}, {s(sA)}, 3
    s_lshr_b32 {s(sT1)}, 0x09050d0e, {s(sT0)}
    s_and_b32 {s(sT1)}, {s(sT1)}, 0xff
    s_lshr_b32 {s(sLine)}, 0x0a060200, {s(sT0)}
    s_and_b32 {s(sLine)}, {s(sLine)}, 0xff
    s_cmp_eq_u32 {s(sA)}, 0
    s_cselect_b32 {s(sN2)}, 2, 3
    s_lshl_b32 {s(sT0)}, {s(sT1)}, 18
    s_add_u32 {s(sZ2a)}, {s(sZ2a)}, {s(sT0)}
    s_add_u32 {s(sZ2b)}, {s(sZ2a)}, 131072
    s_add_u32 {s(sTy)}, {s(sZa)}, {Z1}
    s_add_u32 {s(sZa)}, {s(sTy)}, {s(sT0)}
    s_add_u32 {s(sZb)}, {s(sZa)}, 131072
    s_cmp_eq_u32 {s(sA)}, 0
    s_cselect_b32 {s(sZa)}, {OOR}, {s(sZa)}
    s_cselect_b32 {s(sZ2a)}, {s(sZ2a)}, {OOR}
    s_cmp_le_u32 {s(sA)}, 1
    s_cselect_b32 {s(sZb)}, {OOR}, {s(sZb)}
    s_lshl_b32 {s(sT0)}, {s(sLine)}, 18
    s_add_u32 {s(sTy)}, {s(sTy)}, {s(sT0)}
    s_lshl_b32 {s(sT0)}, {s(sLine)}, 7
    s_add_u32 {s(sQB)}, {s(sB0)}, {s(sT0)}
    s_lshl_b32 {s(sT1)}, {s(sT1)}, 7
    s_add_u32 {s(sB0)}, {s(sB0)}, {s(sT1)}
    s_add_u32 {s(sB1)}, {s(sB0)}, {320*3456}''')
    xphase(e,[lambda i:dmaZ(0,i,sB0),lambda i:dmaZ(1,i,sB1),lambda i:dmaZ(2,i,sQB)],stamp)
    e(f's_add_u32 {s(sB1)}, {s(sQB)}, {320*3456}\ns_add_u32 {s(sB0)}, {s(sQB)}, 128')
    stage(e,mfZ(0),rdZ,rdZ,zadd(40960),lambda i:dmaZ(3,i,sB1),20,None,0)
    stage(e,mfZ(1),rdZ,rdZ,zadd(40960),lambda i:dmaZ(0,i,sB0),20,None,0)
    stamp(4)
    e(f'''s_mov_b32 {s(sIt)}, 1
    s_mov_b32 {s(sDel)}, -122880
    s_mov_b32 {s(sLine)}, 40960
    s_mov_b32 {s(sSc)}, 81920
    k1_loop:
    s_add_u32 {s(sB1)}, {s(sB0)}, {320*3456}
    s_add_u32 {s(sB0)}, {s(sB0)}, 128
    s_cmp_lt_u32 {s(sIt)}, {s(sN2)}
    s_cselect_b32 {s(sWI+2)}, {640*3456}, 0
    s_nop 3''')
    for r in range(16): e(f'v_accvgpr_read_b32 {v(T+r)}, {a(AZ+r)}')
    f=gelu(True)
    stage(e,mfZ(0),rdZ,rdZ,zadd(40960),lambda i:dmaZ(s(sLine),i,sB1),20,f,18,pre1=[f'v_accvgpr_read_b32 {v(T+r)}, {a(AZ+r)}' for r in range(16,32)],
          after_bar=f's_add_u32 {s(sT0)}, {s(sIt)}, 1\ns_cmp_lt_u32 {s(sT0)}, {s(sN2)}\ns_cselect_b32 {s(sWI+2)}, {640*3456}, 0')
    stage(e,mfZ(1),rdZ,rdZ,zadd(s(sDel)),lambda i:dmaZ(s(sSc),i,sB0),20,f,18)
    assert not f
    e(f'''s_mov_b32 {s(sZa)}, {s(sTy)}
    s_add_u32 {s(sZb)}, {s(sTy)}, 131072
    s_add_u32 {s(sTy)}, {s(sTy)}, 262144
    s_sub_u32 {s(sDel)}, -81920, {s(sDel)}
    s_sub_u32 {s(sLine)}, 163840, {s(sLine)}
    s_sub_u32 {s(sSc)}, 81920, {s(sSc)}
    s_cmp_gt_u32 {s(sA)}, 1
    s_cbranch_scc1 k1_next
    s_cmp_eq_u32 {s(sIt)}, 3
    s_cbranch_scc1 k1_next
    s_cmp_eq_u32 {s(sIt)}, 2
    s_cbranch_scc1 k1_flagB''')
    e(stats())
    for r in range(32): e(f'v_accvgpr_write_b32 {a(ASV+r)}, {v(T+r)}')
    e('s_branch k1_next\nk1_flagB:\ns_waitcnt vmcnt(0)\ns_barrier')
    e(flag('k1_next'))
    e(f'''s_add_u32 {s(sIt)}, {s(sIt)}, 1
    s_cmp_le_u32 {s(sIt)}, {s(sN2)}
    s_cbranch_scc1 k1_loop''')
    stamp(5)
    e(poll_issue())
    for r in range(32): e(f'v_accvgpr_read_b32 {v(T+r)}, {a(AZ+r)}')
    f=gelu(True); h=len(f)//2
    e(f[:h])
    e(f's_cmp_gt_u32 {s(sA)}, 1\ns_cbranch_scc1 k1_nop')
    poll_wait(e,'k1_pb')
    e('k1_nop:')
    e(f[h:])
    e(f's_cmp_gt_u32 {s(sA)}, 1\ns_cbranch_scc1 k1_fin')
    for r in range(32): e(f'v_accvgpr_read_b32 {v(T+r)}, {a(ASV+r)}')
    e('s_waitcnt vmcnt(2) lgkmcnt(0)\ns_branch k1_Z2')
    return e
```

```python
from lib import *
sWS,sDM,sSP,sWO,sBS=4,8,12,16,20
sW,sH,sQB,sTB,sFB,sT0,sT1,sT2,sKV,sZ,sSo,sMk,sMz,sMw,sIt,sU0,sU1,sUn,sWq,sKh,sSl=range(24,45)
vL16,vA,vK,vR,vB0,vB1,vDW0,vDW1,vIdx,vBs,vT=1,2,3,4,5,6,7,8,9,10,11
SA,SB,O0,O1,G0,G1=16,32,48,64,80,96
QM,QR,KM,KR,V0,V1,GA0,GA1,GA2,GBa,GBb,Z=112,120,124,128,132,136,140,144,148,152,156,160
EX=176
LK,LZ,LW=0,7168,15360
def dma(j,slot):
    o=slot*32768
    if j==0: return [f's_add_u32 m0, {s(sMw)}, {o}', None, f'buffer_load_dwordx4 {v(vDW0)}, {s(sSP,4)}, {s(sSo)} offen lds']
    if j==1: return [f's_add_u32 m0, {s(sMw)}, {o+1024}', None, f'buffer_load_dwordx4 {v(vDW1)}, {s(sSP,4)}, {s(sSo)} offen lds']
    if j==2: return [f's_add_u32 m0, {s(sMz)}, {o}', f's_add_u32 {s(sSo)}, {s(sSo)}, 128', f'buffer_load_dwordx4 {v(vL16)}, {s(sDM,4)}, {s(sZ)} offen lds']
    return [f's_add_u32 m0, {s(sMk)}, {o}', f's_add_u32 {s(sZ)}, {s(sZ)}, 4096', f'buffer_load_dwordx4 {v(vL16)}, {s(sDM,4)}, {s(sKV)} offen lds']
def em(e,d,alt='s_nop 0'): e([d[0],d[1] or alt,d[2]])
def mf(D,Aa,B,C=None): return f'v_mfma_f32_32x32x16_bf16 {v(D,16)}, {v(Aa,4)}, {v(B,4)}, '+(C or v(D,16))
def mf8(D,Aa,B): return f'v_mfma_f32_32x32x8_bf16 {v(D,16)}, {v(Aa,2)}, {v(B,2)}, {v(D,16)}'
def pv(D,Aa,P): return f'v_smfmac_f32_32x32x32_bf16 {v(D,16)}, {v(Aa,4)}, {v(P,8)}, {v(vIdx)}'
def rd(D,ad,off): return f'ds_read_b128 {v(D,4)}, {v(ad)} offset:{off}'
def stage(e,par):
    c=par*32768; n=(1-par)*32768
    def ex(S,lo,hi):
        for r in range(lo,hi): e(f'v_exp_f32 {v(S+r)}, {v(S+r)}')
    e(mf(G0,GA0,GBa)); e(rd(GA0,vA,c+LZ+1024)); ex(SA,0,3)
    e(pv(O1,V1,SB+8)); e(rd(V1,vA,c+2048+1024)); e(rd(GA2,vA,c+LZ+4096+1024)); ex(SA,3,5)
    e(mf(SB,KM,QM+4,'0')); ex(SA,5,8)
    e(mf8(SB,KR,QR+2)); e('s_waitcnt lgkmcnt(3)'); ex(SA,8,11)
    if par:
        for r in (vA,vK,vR,vB0,vB1): e(f'v_xor_b32 {v(r)}, 0x10000, {v(r)}')
    e(pv(O0,V0,SA)); e('s_waitcnt vmcnt(8) lgkmcnt(0)\ns_barrier')
    e(rd(KM,vK,n)); e(f'ds_read_b64 {v(KR,2)}, {v(vR)} offset:{n}'); ex(SA,11,13)
    e(mf(G1,GA1,GBa)); e(rd(GBa,vB0,n)); e(rd(GA1,vA,n+LZ+4096)); ex(SA,13,16)
    e(mf(G0,GA0,GBb)); e(rd(GA0,vA,n+LZ)); ex(SB,0,3)
    e(pv(O0,V1,SA+8)); em(e,dma(0,par),'s_waitcnt lgkmcnt(1)'); ex(SB,3,5)
    e(mf(SA,KM,QM,'0')); em(e,dma(1,par),f's_add_u32 {s(sKV)}, {s(sKV)}, {SS}'); ex(SB,5,8)
    e(mf8(SA,KR,QR)); em(e,dma(2,par)); ex(SB,8,11)
    e(pv(O1,V0,SB)); d=dma(3,par); e(d[:2]); e(rd(V0,vA,n+2048)); e(d[2]); ex(SB,11,13)
    e(mf(G1,GA2,GBb)); e('s_waitcnt lgkmcnt(1)')
    if par:
        e(f'''s_xor_b32 {s(sMk)}, {s(sMk)}, 0x10000
        s_xor_b32 {s(sMz)}, {s(sMz)}, 0x10000
        s_xor_b32 {s(sMw)}, {s(sMw)}, 0x10000
        s_add_u32 {s(sIt)}, {s(sIt)}, 1
        s_cmp_lt_u32 {s(sIt)}, 14
        s_cselect_b32 {s(sDM+2)}, {s(sDM+2)}, 0
        s_cselect_b32 {s(sSP+2)}, {s(sSP+2)}, 0
        s_cmp_lt_u32 {s(sIt)}, 16''')
    e(rd(GBb,vB1,n)); ex(SB,13,16)
def build(stamp_f):
    e=A(); stamp=lambda i: stamp_f(e,i)
    e(f'''s_cmp_ge_u32 s2, 256
    s_cbranch_scc1 k2_end
    s_load_dwordx2 {s(sWS,2)}, s[0:1], 80
    s_load_dwordx2 {s(sDM,2)}, s[0:1], 80
    s_load_dwordx2 {s(sSP,2)}, s[0:1], 40
    s_load_dwordx2 {s(sBS,2)}, s[0:1], 48
    s_cmp_lt_u32 s2, 100
    s_cbranch_scc1 k2_wo
    s_load_dwordx2 {s(sWO,2)}, s[0:1], 56
    s_mov_b32 {s(sWO+2)}, {864*1280}
    s_branch k2_wd
    k2_wo:
    s_load_dwordx2 {s(sWO,2)}, s[0:1], 16
    s_mov_b32 {s(sWO+2)}, {640*1280}
    k2_wd:
    s_mov_b32 {s(sWO+3)}, 0x00020000
    v_lshrrev_b32 v1, 6, v0
    v_and_b32 v0, 63, v0
    v_readfirstlane_b32 {s(sW)}, v1''')
    stamp(0)
    srd(e,sWS,WSZ); srd(e,sDM,WSZ); srd(e,sSP,2048*4096); srd(e,sBS,4096)
    e(f'''s_and_b32 {s(sWq)}, {s(sW)}, 3
    s_lshr_b32 {s(sKh)}, {s(sW)}, 2
    s_and_b32 {s(sH)}, s2, 7
    s_lshl_b32 {s(sH)}, {s(sH)}, 2
    s_lshr_b32 {s(sT0)}, s2, 6
    s_add_u32 {s(sH)}, {s(sH)}, {s(sT0)}
    s_bfe_u32 {s(sQB)}, s2, 0x30003
    s_lshl_b32 {s(sQB)}, {s(sQB)}, 2
    s_add_u32 {s(sQB)}, {s(sQB)}, {s(sWq)}
    s_bfe_u32 {s(sTB)}, s2, 0x20001
    s_lshl_b32 {s(sTB)}, {s(sTB)}, 2
    s_bfe_u32 {s(sT0)}, s2, 0x20003
    s_add_u32 {s(sTB)}, {s(sTB)}, {s(sT0)}
    s_lshr_b32 {s(sSl)}, s2, 5
    s_min_u32 {s(sFB)}, {s(sSl)}, 6
    s_and_b32 {s(sT0)}, s2, 1
    s_mul_i32 {s(sT0)}, {s(sT0)}, 7
    s_add_u32 {s(sFB)}, {s(sFB)}, {s(sT0)}
    s_mul_i32 {s(sT2)}, {s(sH)}, {HS}
    s_min_u32 {s(sMk)}, {s(sW)}, 6
    s_lshl_b32 {s(sMk)}, {s(sMk)}, 10
    s_add_u32 {s(sKV)}, {s(sT2)}, {s(sMk)}
    s_lshl_b32 {s(sZ)}, {s(sFB)}, 1
    s_add_u32 {s(sZ)}, {s(sZ)}, {s(sKh)}
    s_min_u32 {s(sZ)}, {s(sZ)}, 26
    s_lshl_b32 {s(sZ)}, {s(sZ)}, 7
    s_add_u32 {s(sZ)}, {s(sZ)}, {s(sWq)}
    s_lshl_b32 {s(sZ)}, {s(sZ)}, 10
    s_add_u32 {s(sZ)}, {s(sZ)}, {Z2T}
    s_lshl_b32 {s(sMz)}, {s(sW)}, 10
    s_lshl_b32 {s(sMw)}, {s(sMz)}, 1
    s_add_u32 {s(sMz)}, {s(sMz)}, {LZ}
    s_add_u32 {s(sMw)}, {s(sMw)}, {LW}
    s_lshl_b32 {s(sSo)}, {s(sTB)}, 3
    s_add_u32 {s(sSo)}, {s(sSo)}, {s(sW)}
    s_lshl_b32 {s(sSo)}, {s(sSo)}, 16
    s_mul_i32 {s(sT0)}, {s(sQB)}, {SS}
    s_add_u32 {s(sT0)}, {s(sT0)}, {s(sT2)}
    s_add_u32 {s(sT0)}, {s(sT0)}, {QS}
    s_add_u32 {s(sT1)}, {s(sT0)}, 6144
    v_lshlrev_b32 {v(vL16)}, 4, v0
    v_lshrrev_b32 v12, 3, v0
    v_lshrrev_b32 v13, 4, v0
    v_and_b32 v14, 7, v0
    v_xor_b32 v13, v13, v14
    v_lshlrev_b32 v13, 4, v13
    v_lshl_add_u32 {v(vDW0)}, v12, 12, v13
    v_xor_b32 {v(vDW1)}, 0x8040, {v(vDW0)}
    v_and_b32 v12, 31, v0
    v_lshrrev_b32 v13, 5, v0
    v_lshlrev_b32 {v(vR)}, 3, v12
    v_lshl_add_u32 {v(vT)}, v13, 30, {v(vR)}
    s_waitcnt lgkmcnt(0)''')
    for j in range(4): em(e,dma(j,0))
    for i in (0,1):
        e(f'buffer_load_dwordx4 {v(QM+4*i,4)}, {v(vL16)}, {s(sWS,4)}, {s(sT0)} offen offset:{1024*i}')
        e(f'buffer_load_dwordx2 {v(QR+2*i,2)}, {v(vT)}, {s(sWS,4)}, {s(sT1)} offen offset:{256*i}')
    e(f'''s_lshl_b32 {s(sTB)}, {s(sTB)}, 2
    s_add_u32 {s(sTB)}, {s(sTB)}, {s(sWq)}
    s_mov_b32 {s(sUn)}, -1
    s_cmp_eq_u32 {s(sKh)}, 0
    s_cbranch_scc1 k2_lo
    s_lshl_b32 {s(sU0)}, {s(sFB)}, 8
    s_add_u32 {s(sU0)}, {s(sU0)}, {s(sTB)}
    s_lshl_b32 {s(sU0)}, {s(sU0)}, 10
    s_add_u32 {s(sU1)}, {s(sU0)}, 131072
    s_cmp_eq_u32 {s(sFB)}, 13
    s_cselect_b32 {s(sU1)}, 0xf0000000, {s(sU1)}
    s_cmp_eq_u32 {s(sSl)}, 7
    s_cselect_b32 {s(sU0)}, 0xf0000000, {s(sU0)}
    s_cselect_b32 {s(sU1)}, 0xf0000000, {s(sU1)}
    s_lshl_b32 {s(sT1)}, {s(sTB)}, 6
    v_lshlrev_b32 v14, 1, v12
    buffer_load_ushort {v(vBs)}, v14, {s(sBS,4)}, {s(sT1)} offen''')
    for j in range(4): e(f's_add_u32 {s(sT0)}, {s(sU0+(j>>1))}, {Z1+65536*(j&1)}\nbuffer_load_dwordx4 {v(Z+4*j,4)}, {v(vL16)}, {s(sWS,4)}, {s(sT0)} offen')
    e(f'''s_branch k2_go
    k2_lo:
    s_cmp_ge_u32 {s(sW)}, 2
    s_cbranch_scc1 k2_go
    s_cmp_ge_u32 s2, 235
    s_cbranch_scc1 k2_go
    s_lshl_b32 {s(sUn)}, s2, 1
    s_add_u32 {s(sUn)}, {s(sUn)}, {s(sW)}
    s_mul_i32 {s(sT0)}, {s(sUn)}, 6554
    s_lshr_b32 {s(sT0)}, {s(sT0)}, 16
    s_mul_i32 {s(sT1)}, {s(sT0)}, 10
    s_sub_u32 {s(sT1)}, {s(sUn)}, {s(sT1)}
    s_mul_i32 s50, {s(sT0)}, 40
    s_mov_b32 s51, 4
    s_mov_b32 s52, 20
    s_mov_b32 s53, 8
    s_cmp_lt_u32 {s(sT0)}, 16
    s_cbranch_scc1 k2_u
    s_lshl_b32 s50, {s(sT0)}, 5
    s_sub_u32 s50, s50, 640
    s_mov_b32 s52, 16
    s_cmp_ge_u32 {s(sT0)}, 20
    s_cbranch_scc1 k2_u
    s_mul_i32 s50, {s(sT0)}, 160
    s_sub_u32 s50, s50, {2560-16}
    s_mov_b32 s51, 40
    s_mov_b32 s52, 80
    s_mov_b32 s53, 20
    k2_u:
    s_mul_i32 s50, s50, 1280
    s_mul_i32 s51, s51, 1280
    s_mul_i32 s52, s52, 1280
    s_lshl_b32 {s(sT1)}, {s(sT1)}, 7
    s_add_u32 s50, s50, {s(sT1)}
    v_mul_u32_u24 v14, s53, v13
    v_bfe_u32 v15, v0, 3, 2
    v_add_u32 v14, v14, v15
    v_mul_u32_u24 v14, 1280, v14
    v_and_b32 v15, 7, v0
    v_lshl_add_u32 v14, v15, 4, v14
    s_lshl_b32 s54, {s(sW)}, 12
    s_add_u32 m0, s54, 131072
    s_add_u32 s55, s50, s51
    buffer_load_dwordx4 v14, {s(sWO,4)}, s50 offen lds
    s_add_u32 m0, m0, 1024
    s_add_u32 s50, s50, s52
    buffer_load_dwordx4 v14, {s(sWO,4)}, s55 offen lds
    s_add_u32 m0, m0, 1024
    s_add_u32 s55, s50, s51
    buffer_load_dwordx4 v14, {s(sWO,4)}, s50 offen lds
    s_add_u32 m0, m0, 1024
    s_nop 0
    buffer_load_dwordx4 v14, {s(sWO,4)}, s55 offen lds
    k2_go:''')
    for st in (1,2,3):
        for j in range(4): em(e,dma(j,st),f's_add_u32 {s(sKV)}, {s(sKV)}, {SS}' if j==1 else 's_nop 0')
    e(f'''s_lshl_b32 {s(sT0)}, {s(sKh)}, 10
    v_add_u32 {v(vK)}, {s(sT0)}, {v(vL16)}
    v_add_u32 {v(vA)}, {s(sT0)}, {v(vK)}
    s_lshl_b32 {s(sT0)}, {s(sKh)}, 8
    s_add_u32 {s(sT0)}, {s(sT0)}, 6144
    v_add_u32 {v(vR)}, {s(sT0)}, {v(vR)}
    s_lshl_b32 {s(sT0)}, {s(sKh)}, 2
    v_add_u32 v13, {s(sT0)}, v13
    v_bfe_u32 v14, v0, 1, 3
    v_xor_b32 v13, v13, v14
    v_lshlrev_b32 v13, 4, v13
    v_lshl_add_u32 v13, v12, 7, v13
    s_lshl_b32 {s(sT0)}, {s(sWq)}, 12
    s_add_u32 {s(sT0)}, {s(sT0)}, {LW}
    v_add_u32 {v(vB0)}, {s(sT0)}, v13
    v_xor_b32 {v(vB1)}, 32, {v(vB0)}
    v_mov_b32 {v(vIdx)}, 0xdddddddd
    s_mov_b32 {s(sIt)}, 0''')
    for r in list(range(SB+8,G1+16))+list(range(V1,V1+4)): e(f'v_mov_b32 {v(r)}, 0')
    e('s_waitcnt vmcnt(12)\ns_barrier'); stamp(1)
    e([rd(KM,vK,0),f'ds_read_b64 {v(KR,2)}, {v(vR)}',rd(GBa,vB0,0),rd(GA1,vA,LZ+4096),rd(GA0,vA,LZ),rd(V0,vA,2048),rd(GBb,vB1,0)])
    e('s_waitcnt lgkmcnt(2)'); e(mf(SA,KM,QM,'0')); e(mf8(SA,KR,QR)); e('s_nop 9\n.p2align 6\nk2_loop:')
    stage(e,0); stage(e,1)
    e('s_cbranch_scc1 k2_loop\ns_nop 0')
    e(pv(O1,V1,SB+8)); stamp(2)
    e(f'''s_lshl_b32 {s(sT0)}, {s(sW)}, 13
    v_add_u32 v12, {s(sT0)}, {v(vL16)}
    v_xor_b32 v13, 0x8000, v12
    s_waitcnt vmcnt(0) lgkmcnt(0)
    s_barrier
    s_cmp_eq_u32 {s(sKh)}, 0
    s_cbranch_scc0 k2_hi''')
    for j in range(8): e(f'ds_write_b128 v12, {v(G0+4*j,4)} offset:{1024*j}')
    e('s_waitcnt lgkmcnt(0)\ns_barrier')
    for j in range(8): e(rd(EX+4*j,13,1024*j))
    e(f'''s_lshl_b32 {s(sT0)}, {s(sH)}, 5
    s_add_u32 {s(sT0)}, {s(sT0)}, {s(sQB)}
    s_lshl_b32 {s(sT0)}, {s(sT0)}, 11
    s_add_u32 {s(sU0)}, {s(sT0)}, {ACT}
    s_lshr_b32 {s(sT0)}, {s(sH)}, 2
    s_lshl_b32 {s(sT0)}, {s(sT0)}, 5
    s_add_u32 {s(sT0)}, {s(sT0)}, {s(sQB)}
    s_lshl_b32 {s(sT0)}, {s(sT0)}, 11
    s_bfe_u32 {s(sT1)}, {s(sH)}, 0x10001
    s_lshl_b32 {s(sT1)}, {s(sT1)}, 9
    s_add_u32 {s(sT0)}, {s(sT0)}, {s(sT1)}
    s_and_b32 {s(sT1)}, {s(sH)}, 1
    s_lshl_b32 {s(sT1)}, {s(sT1)}, 3
    s_add_u32 {s(sT0)}, {s(sT0)}, {s(sT1)}
    s_add_u32 {s(sU1)}, {s(sT0)}, {ACT+32*65536}
    s_mov_b32 s50, {fl(2.0**-64)}
    s_mov_b32 s51, {fl(2.0**64)}''')
    for i in (0,1):
        e(f's_waitcnt lgkmcnt({4-4*i})')
        for r in range(13): e(f'v_add_f32 {v(O0+16*i+r)}, {v(O0+16*i+r)}, {v(EX+16*i+r)}')
    e(f'''v_cmp_le_f32 s[52:53], s50, {v(O0+12)}
    v_cmp_ge_f32 s[54:55], s51, {v(O0+12)}
    v_cmp_le_f32 s[56:57], s50, {v(O1+12)}
    v_cmp_ge_f32 s[58:59], s51, {v(O1+12)}
    s_and_b64 s[52:53], s[52:53], s[54:55]
    s_and_b64 s[56:57], s[56:57], s[58:59]
    s_and_b64 s[52:53], s[52:53], s[56:57]
    s_andn2_b64 s[52:53], exec, s[52:53]
    s_cbranch_scc1 k2_slow
    k2_ofin:
    v_rcp_f32 v14, {v(O0+12)}
    v_rcp_f32 v15, {v(O1+12)}
    v_lshlrev_b32 {v(vT)}, 1, {v(vT)}''')
    for i in (0,1):
        O=O0+16*i
        for r in range(12): e(f'v_mul_f32 {v(O+r)}, {v(O+r)}, {v(14+i)}')
        for r in range(6): e(f'v_cvt_pk_bf16_f32 {v(O+r)}, {v(O+2*r)}, {v(O+2*r+1)}')
        e(f'buffer_store_dwordx4 {v(O,4)}, {v(vL16)}, {s(sWS,4)}, {s(sU0)} offen offset:{1024*i}')
        e(f'buffer_store_dwordx2 {v(O+4,2)}, {v(vT)}, {s(sWS,4)}, {s(sU1)} offen offset:{1024*i}')
    e(f'''s_cmp_lt_i32 {s(sUn)}, 0
    s_cbranch_scc1 k2_fin
    v_lshrrev_b32 v12, 4, v0
    v_bfe_u32 v13, v0, 2, 2
    v_lshl_add_u32 v12, v12, 3, v13
    v_and_b32 v13, 3, v0
    v_lshlrev_b32 v13, 3, v13
    v_lshl_add_u32 v12, v12, 7, v13
    s_lshl_b32 {s(sT0)}, {s(sW)}, 12
    s_add_u32 {s(sT0)}, {s(sT0)}, 131072
    v_add_u32 v12, {s(sT0)}, v12
    s_lshl_b32 {s(sT0)}, {s(sUn)}, 12
    s_add_u32 {s(sT0)}, {s(sT0)}, {WF}''')
    for j in range(4):
        for r in (0,1): e(f'ds_read_b64_tr_b16 {v(EX+4*j+2*r,2)}, v12 offset:{32*j+512*r}')
    for j in range(4): e(f's_waitcnt lgkmcnt({6-2*j})\nbuffer_store_dwordx4 {v(EX+4*j,4)}, {v(vL16)}, {s(sWS,4)}, {s(sT0)} offen offset:{1024*j}')
    e('s_branch k2_fin')
    e('k2_hi:\ns_nop 4')
    for j in range(8): e(f'ds_write_b128 v12, {v(O0+4*j,4)} offset:{1024*j}')
    e(f'v_lshlrev_b32 {v(vBs)}, 16, {v(vBs)}')
    for r in range(32): e(f'v_add_f32 {v(G0+r)}, {v(G0+r)}, {v(vBs)}')
    e('s_waitcnt lgkmcnt(0)\ns_barrier')
    for j in range(8): e(rd(EX+4*j,13,1024*j))
    for r in range(16): e(f'v_lshlrev_b32 {v(SA+2*r)}, 16, {v(Z+r)}\nv_and_b32 {v(SA+2*r+1)}, 0xffff0000, {v(Z+r)}')
    for j in range(4):
        e(f's_waitcnt lgkmcnt({6-2*j})\ns_add_u32 {s(sT0)}, {s(sU0+(j>>1))}, {ACT+40*65536+65536*(j&1)}')
        for r in range(8*j,8*j+8): e(f'v_add_f32 {v(G0+r)}, {v(G0+r)}, {v(EX+r)}')
        for r in range(8*j,8*j+8): e(f'v_mul_f32 {v(G0+r)}, {v(G0+r)}, {v(SA+r)}')
        for r in range(4): e(f'v_cvt_pk_bf16_f32 {v(G0+8*j+r)}, {v(G0+8*j+2*r)}, {v(G0+8*j+2*r+1)}')
        e(f'buffer_store_dwordx4 {v(G0+8*j,4)}, {v(vL16)}, {s(sWS,4)}, {s(sT0)} offen')
    e('k2_fin:'); stamp(3); stamp(-1)
    e('k2_end:\ns_endpgm')
    e(f'''k2_slow:
    v_and_b32 v12, 31, v0
    v_lshlrev_b32 v12, 3, v12
    v_mov_b32 v14, 0xff800000
    v_mov_b32 v15, 0xff800000''')
    for ps in (0,1):
        e(f'''s_mov_b32 {s(sIt)}, 0
        k2_sl{ps}:
        s_lshr_b32 {s(sT0)}, {s(sIt)}, 1
        s_mul_i32 {s(sT0)}, {s(sT0)}, {SS}
        s_add_u32 {s(sT0)}, {s(sT0)}, {s(sT2)}
        s_and_b32 {s(sT1)}, {s(sIt)}, 1
        s_lshl_b32 s50, {s(sT1)}, 8
        s_add_u32 s50, s50, {s(sT0)}
        s_add_u32 s50, s50, 6144
        s_lshl_b32 {s(sT1)}, {s(sT1)}, 10
        s_add_u32 {s(sT0)}, {s(sT0)}, {s(sT1)}
        s_add_u32 {s(sT1)}, {s(sT0)}, {s(sT1)}
        buffer_load_dwordx4 {v(KM,4)}, {v(vL16)}, {s(sWS,4)}, {s(sT0)} offen
        buffer_load_dwordx2 {v(KR,2)}, v12, {s(sWS,4)}, s50 offen
        buffer_load_dwordx4 {v(V0,4)}, {v(vL16)}, {s(sWS,4)}, {s(sT1)} offen offset:2048
        buffer_load_dwordx4 {v(V1,4)}, {v(vL16)}, {s(sWS,4)}, {s(sT1)} offen offset:3072
        s_waitcnt vmcnt(0)''')
        for i in (0,1): e(mf(SA+16*i,KM,QM+4*i,v(G0+16*i,16) if ps else '0')); e(mf8(SA+16*i,KR,QR+2*i))
        e('s_nop 11')
        for r in range(32): e(f'v_exp_f32 {v(SA+r)}, {v(SA+r)}' if ps else f'v_max_f32 {v(14+r//16)}, {v(14+r//16)}, {v(SA+r)}')
        if ps:
            e('s_nop 1')
            for i in (0,1): e(pv(O0+16*i,V0,SA+16*i)); e(pv(O0+16*i,V1,SA+16*i+8))
        e(f's_add_u32 {s(sIt)}, {s(sIt)}, 1\ns_cmp_lt_u32 {s(sIt)}, 64\ns_cbranch_scc1 k2_sl{ps}')
        if ps==0:
            for i in (0,1): e(f'v_mov_b32 v13, {v(14+i)}\ns_nop 1\nv_permlane32_swap_b32 v13, {v(14+i)}\ns_nop 0\nv_max_f32 {v(14+i)}, v13, {v(14+i)}')
            for r in range(32): e(f'v_sub_f32 {v(G0+r)}, 0, {v(14+r//16)}\nv_mov_b32 {v(O0+r)}, 0')
    e('s_nop 11\ns_branch k2_ofin')
    return e
```

```python
from lib import *
sWS,sAW,sAB,sX,sO=4,8,12,16,20
sW,sTB,sNB,sT0,sT1,sA,sA2,sB,sN=range(24,33)
vL16,vB,vO=1,2,3
XR=4; ACC=16; BR=96; EX=96
R=5
def loads(j):
    o=[f'buffer_load_dwordx4 {v(BR+16*j+4*t,4)}, {v(vB)}, {s(sAB,4)}, {s(sB)} offen offset:{(t>>1)*1024+(t&1)*256}' for t in range(4)]
    o+=[f'buffer_load_dwordx4 {a(20*j+4*n,4)}, {v(vL16)}, {s(sAW,4)}, {s(sA if n<4 else sA2)} offen offset:{(n&3)*1024}' for n in range(5)]
    return o,[f's_add_u32 {s(sB)}, {s(sB)}, 131072',f's_add_u32 {s(sA)}, {s(sA)}, 40960',f's_add_u32 {s(sA2)}, {s(sA2)}, 40960']
def build(stamp_f):
    e=A(); stamp=lambda i: stamp_f(e,i)
    e(f'''s_cmp_ge_u32 s2, 256
    s_cbranch_scc1 k3_end
    s_load_dwordx2 {s(sAW,2)}, s[0:1], 80
    s_load_dwordx2 {s(sAB,2)}, s[0:1], 80
    s_load_dwordx2 {s(sWS,2)}, s[0:1], 80
    s_load_dwordx2 {s(sX,2)}, s[0:1], 0
    s_load_dwordx2 {s(sO,2)}, s[0:1], 64
    v_lshrrev_b32 v1, 6, v0
    v_and_b32 v0, 63, v0
    v_readfirstlane_b32 {s(sW)}, v1''')
    stamp(0)
    srd(e,sWS,WSZ); srd(e,sX,2048*1280); srd(e,sO,2048*1280)
    e(f'''s_mov_b32 {s(sAW+3)}, 0x00020000
    s_mov_b32 {s(sAB+3)}, 0x00020000
    s_bfe_u32 {s(sTB)}, s2, 0x20001
    s_lshl_b32 {s(sTB)}, {s(sTB)}, 3
    s_bfe_u32 {s(sT0)}, s2, 0x30003
    s_add_u32 {s(sTB)}, {s(sTB)}, {s(sT0)}
    s_and_b32 {s(sNB)}, s2, 1
    s_lshl_b32 {s(sNB)}, {s(sNB)}, 2
    s_lshr_b32 {s(sT0)}, s2, 6
    s_add_u32 {s(sNB)}, {s(sNB)}, {s(sT0)}
    s_lshl_b32 {s(sT0)}, {s(sW)}, 3
    s_lshr_b32 {s(sT1)}, 0x2f22140a, {s(sT0)}
    s_and_b32 {s(sT1)}, {s(sT1)}, 0xff
    s_lshr_b32 {s(sT0)}, 0x22140a00, {s(sT0)}
    s_and_b32 {s(sT0)}, {s(sT0)}, 0xff
    s_mul_i32 {s(sAW+2)}, {s(sT1)}, 40960
    s_add_u32 {s(sAW+2)}, {s(sAW+2)}, {WF}
    s_lshl_b32 {s(sAB+2)}, {s(sT1)}, 17
    s_add_u32 {s(sAB+2)}, {s(sAB+2)}, {ACT}
    s_mul_i32 {s(sA)}, {s(sT0)}, 40960
    s_mul_i32 {s(sT1)}, {s(sNB)}, 5120
    s_add_u32 {s(sA)}, {s(sA)}, {s(sT1)}
    s_add_u32 {s(sA)}, {s(sA)}, {WF}
    s_add_u32 {s(sA2)}, {s(sA)}, 4096
    s_lshl_b32 {s(sB)}, {s(sT0)}, 6
    s_add_u32 {s(sB)}, {s(sB)}, {s(sTB)}
    s_lshl_b32 {s(sB)}, {s(sB)}, 11
    s_add_u32 {s(sB)}, {s(sB)}, {ACT}
    s_lshr_b32 {s(sN)}, {s(sW)}, 1
    s_add_u32 {s(sN)}, {s(sN)}, 2
    v_lshlrev_b32 {v(vL16)}, 4, v0
    v_and_b32 v4, 15, v0
    v_bfe_u32 v5, v0, 4, 1
    v_lshrrev_b32 v6, 5, v0
    v_lshlrev_b32 {v(vB)}, 4, v4
    v_lshl_add_u32 {v(vB)}, v5, 9, {v(vB)}
    v_lshl_add_u32 {v(vB)}, v6, 16, {v(vB)}
    v_mul_u32_u24 v4, 1280, v4
    v_lshrrev_b32 v5, 4, v0
    v_lshl_add_u32 {v(vO)}, v5, 3, v4
    s_lshl_b32 {s(sTB)}, {s(sTB)}, 2
    s_add_u32 {s(sTB)}, {s(sTB)}, {s(sW)}
    s_mul_i32 {s(sTB)}, {s(sTB)}, {16*1280}
    s_mul_i32 {s(sT1)}, {s(sNB)}, 160
    s_add_u32 {s(sTB)}, {s(sTB)}, {s(sT1)}
    s_waitcnt lgkmcnt(0)''')
    stamp(4)
    for j in range(R):
        l,u=loads(j); e(l); e(u)
        if j==0:
            for n in range(5): e(f'buffer_load_dwordx2 {v(XR+2*n,2)}, {v(vO)}, {s(sX,4)}, {s(sTB)} offen offset:{32*n}')
    for r in range(80): e(f'v_mov_b32 {v(ACC+r)}, 0')
    stamp(5); e('s_waitcnt vmcnt(36)'); stamp(6)
    e('k3_loop:')
    for j in range(R):
        e(f's_waitcnt vmcnt({9*(R-1)})')
        for t in range(4):
            for n in range(5):
                D=v(ACC+20*t+4*n,4); e(f'v_mfma_f32_16x16x32_bf16 {D}, {a(20*j+4*n,4)}, {v(BR+16*j+4*t,4)}, {D}')
        l,u=loads(j); e(l); e(u)
    e(f'''s_sub_u32 {s(sN)}, {s(sN)}, 1
    s_cmp_lg_u32 {s(sN)}, 0
    s_cbranch_scc1 k3_loop''')
    stamp(1)
    e(f'''s_mul_i32 {s(sT0)}, {s(sW)}, 20480
    v_add_u32 v14, {s(sT0)}, {v(vL16)}
    s_mul_i32 {s(sT0)}, {s(sW)}, 5120
    v_add_u32 v15, {s(sT0)}, {v(vL16)}
    v_add_u32 v2, 40960, v15''')
    for j in range(20): e(f'ds_write_b128 v14, {v(ACC+4*j,4)} offset:{1024*j}')
    e('s_waitcnt vmcnt(0) lgkmcnt(0)\ns_barrier'); stamp(2)
    def rdn(n):
        for q in range(4): e(f'ds_read_b128 {v(EX+16*n+4*q,4)}, {v(15 if q<2 else 2)} offset:{(q&1)*20480+1024*n}')
    for n in range(3): rdn(n)
    for n in range(5):
        b=EX+16*n
        e(f's_waitcnt lgkmcnt({min(8,4*(4-n))})')
        if n<2: rdn(n+3)
        for r in range(4): e(f'v_add_f32 {v(b+8+r)}, {v(b+8+r)}, {v(b+12+r)}')
        for r in range(4): e(f'v_mul_f32 {v(b+12+r)}, {fl(-1.4426950408889634)}, {v(b+8+r)}')
        for r in range(4): e(f'v_exp_f32 {v(b+12+r)}, {v(b+12+r)}')
        for r in range(4): e(f'v_add_f32 {v(b+r)}, {v(b+r)}, {v(b+4+r)}')
        for r in range(4): e(f'v_add_f32 {v(b+12+r)}, 1.0, {v(b+12+r)}')
        for r in range(4): e(f'v_rcp_f32 {v(b+12+r)}, {v(b+12+r)}')
        for r in range(2): e(f'v_lshlrev_b32 {v(b+4+2*r)}, 16, {v(XR+2*n+r)}\nv_and_b32 {v(b+5+2*r)}, 0xffff0000, {v(XR+2*n+r)}')
        for r in range(4): e(f'v_mul_f32 {v(b+8+r)}, {v(b+8+r)}, {v(b+12+r)}')
        for r in range(4): e(f'v_fma_f32 {v(b+r)}, {v(b+r)}, {v(b+8+r)}, {v(b+4+r)}')
        for r in range(2): e(f'v_cvt_pk_bf16_f32 {v(b+r)}, {v(b+2*r)}, {v(b+2*r+1)}')
        e(f'buffer_store_dwordx2 {v(b,2)}, {v(vO)}, {s(sO,4)}, {s(sTB)} offen offset:{32*n}')
    stamp(3); stamp(-1)
    e('k3_end:\ns_endpgm')
    return e
```

```python
import re
class A:
    def __init__(s): s.l=[]
    def __call__(s, t):
        if isinstance(t,(list,tuple)):
            for x in t: s(x)
            return
        for x in t.split('\n'):
            x=x.strip()
            if x: s.l.append(x)
    def text(s): return '\n'.join((x if x.endswith(':') or x.startswith('.') else '    '+x) for x in s.l)+'\n'
def v(i,n=1): return f'v{i}' if n==1 else f'v[{i}:{i+n-1}]'
def a(i,n=1): return f'a{i}' if n==1 else f'a[{i}:{i+n-1}]'
def s(i,n=1): return f's{i}' if n==1 else f's[{i}:{i+n-1}]'
def cost(x):
    op=x.split()[0]
    if re.match(r'v_(exp|rcp|rsq|sqrt|log)',op): return 8
    return 4
def take(fill,budget):
    out=[]
    while fill and budget>=cost(fill[0]):
        budget-=cost(fill[0]); out.append(fill.pop(0))
    return out
def srd(e,base,nrec):
    e(f's_mov_b32 {s(base+2)}, {nrec}\ns_mov_b32 {s(base+3)}, 0x00020000')
def regs(tok):
    m=re.fullmatch(r'([vas])(\d+)',tok)
    if m: return {(m[1],int(m[2]))}
    m=re.fullmatch(r'([vas])\[(\d+):(\d+)\]',tok)
    if m: return {(m[1],i) for i in range(int(m[2]),int(m[3])+1)}
    if tok in('vcc','exec','m0'): return {(tok,0)}
    return set()
def parse(x):
    x=x.split(';')[0].strip()
    p=x.split(None,1); op=p[0]
    toks=[t.strip().lstrip('-').strip('|') for t in (p[1] if len(p)>1 else '').split(',')]
    if toks: toks=toks[:-1]+toks[-1].split()
    R=[regs(t) for t in toks]
    d=dict(op=op,w=set(),r=set(),c=set(),k='o')
    if op.startswith('v_mfma') or op.startswith('v_smfmac'):
        d['k']='m'; d['w']=R[0]; d['r']=R[1]|R[2]
        if op.startswith('v_smfmac'): d['c']=R[0]; d['r']|=R[3]
        else: d['c']=R[3]
        d['p']=8 if '32x32' in op else 4
    elif op.startswith('v_'):
        d['k']='v'; d['w']=R[0]; d['r']=set().union(*R[1:]) if len(R)>1 else set()
        if 'swap' in op: d['w']=R[0]|R[1]; d['r']=R[0]|R[1]
        if re.match(r'v_(fmac|mac|dot2c)',op): d['r']|=R[0]
        if op.startswith('v_cndmask') and len(toks)==3: d['r'].add(('vcc',0))
    elif op.startswith('ds_') or op.startswith('buffer_') or op.startswith('global_'):
        d['k']='x'
        ld=('read' in op or 'load' in op) and 'lds' not in toks
        if ld: d['w']=R[0]; d['r']=set().union(*R[1:])
        else: d['r']=set().union(*R)
        if 'lds' in toks: d['r'].add(('m0',0))
        d['st']=R[0] if ('store_dwordx4' in op or 'store_dwordx3' in op) else set()
    elif op.startswith('s_'):
        d['k']='s'
        if not re.match(r's_(cmp|cbranch|branch|waitcnt|barrier|nop|endpgm|setprio|bitcmp)',op): d['w']=R[0]
        d['r']=set().union(*R[1:]) if len(R)>1 else set()
    d['n']=int(toks[0],0)+1 if op=='s_nop' else 1
    return d
def check(lines):
    I=[(x,parse(x)) for x in lines if not x.endswith(':') and not x.startswith('.') and not x.startswith(';')]
    bad=0
    for i,(x,c) in enumerate(I):
        dist=0
        for j in range(i-1,max(-1,i-22),-1):
            y,p=I[j]
            if p['op'] in('s_branch','s_endpgm'): break
            need=0
            V=lambda S:{r for r in S if r[0] in 'va' and len(r[0])==1}
            SG=lambda S:{r for r in S if r[0] in('s','vcc')}
            if p['k']=='m':
                big=12 if p['p']==8 else 8
                if c['k'] in 'vx' and p['w']&(c['r']|c['w']): need=big
                if c['k']=='m':
                    if p['w']&c['r']: need=big
                    elif p['w']&c['c'] and not(p['w']==c['c'] and p['p']==c['p']): need=big-2
                if c['k']=='v' and p['c']&c['w']: need=max(need,p['p']-1)
            if p['k']=='v':
                if c['k']=='m' and V(p['w'])&(c['r']|c['c']): need=2
                if c['k']=='v' and cost(y)==8 and p['w']&c['r']: need=1
                if c['k']=='v' and 'dot2' in p['op'] and p['w']&(c['r']|c['w']) and c['op']!=p['op']: need=3
                if c['k']=='v' and SG(p['w'])&c['r']: need=2
                if c['k']=='x' and SG(p['w'])&c['r']: need=5
                if c['k']=='v' and ('permlane' in c['op'] or 'dpp' in x or 'row_' in x) and p['w']&c['r']: need=2
                if c['k']=='v' and re.match(r'v_read(first)?lane',c['op']) and V(p['w'])&c['r']: need=max(need,1)
            if p['k']=='s' and ('m0',0) in p['w'] and c['k']=='x' and ('m0',0) in c['r']: need=1
            if p['k']=='x' and c['k']=='v' and p['st']&c['w']: need=2
            if dist<need:
                bad<4 and print(f'HAZARD need {need} have {dist}: [{y}] -> [{x}]'); bad+=1
            dist+=p['n']
    return bad
def kernel(name,body,nv,acc):
    code=f'.globl {name}\n.p2align 8\n.type {name},@function\n{name}:\n'+body.text()
    kd=f'''.p2align 6
.amdhsa_kernel {name}
  .amdhsa_next_free_vgpr {nv}
  .amdhsa_next_free_sgpr 102
  .amdhsa_accum_offset {acc}
  .amdhsa_group_segment_fixed_size 0
  .amdhsa_kernarg_size 88
  .amdhsa_user_sgpr_count 2
  .amdhsa_user_sgpr_kernarg_segment_ptr 1
  .amdhsa_system_sgpr_workgroup_id_x 1
.end_amdhsa_kernel
'''
    return code,kd
SS=6656; HS=32*SS
KV=0; QS=0x700000; Z1=0xE00000; Z2T=0x1200000; ACT=0x1600000; WF=0x1C00000; ST=0x1E00000; WSZ=0x2000000

import struct
def fl(x): return hex(struct.unpack('<I',struct.pack('<f',x))[0])
TS=0x1F00000
def mkstamp(on,k,sWS,sW):
    def f(e,i):
        if not on: return
        if i>=0:
            e(f's_memtime {s(76+2*i,2)}')
            if i==0: e('s_memrealtime s[92:93]')
            return
        e(f'''s_waitcnt vmcnt(0)
        s_memrealtime s[94:95]
        s_memtime s[96:97]
        s_lshl_b32 s3, s2, 3
        s_add_u32 s3, s3, {s(sW)}
        s_lshl_b32 s3, s3, 6
        s_add_u32 s3, s3, {TS+k*0x40000}
        s_waitcnt lgkmcnt(0)''')
        for j in range(11): e(f'v_mov_b32 v2, {s(76+2*j)}\nbuffer_store_dword v2, off, {s(sWS,4)}, s3 offset:{4*j}')
    return f
```

```python
import sys
from lib import *
import k1,k2,k3
on=len(sys.argv)>2 and sys.argv[2]=='t'
N='recurrent_scan__softmax_full_mha__mixer_gmlp__prompt'
ks=[('k1_kernel',k1,512,256,256,163840),(N+'_kernel',k2,256,256,512,139264)]
hdr=''; code=''; kd=''; bad=0
for i,(n,m,nv,acc,blk,lds) in enumerate(ks):
    e=m.build(mkstamp(on,i,m.sWS,m.sW))
    bad+=check(e.l)
    for lab in [x[:-1] for x in e.l if x.endswith('loop:')]:
        i0=e.l.index(lab+':'); i1=max(j for j,x in enumerate(e.l) if x.endswith(' '+lab))
        bad+=check(e.l[i1-30:i1+1]+e.l[i0:i0+30])
    c,k=kernel(n,e,nv,acc); code+=c; kd+=k
    hdr+=f'; @launch kernel={n} grid=(256,1,1) block=({blk},1,1) lds={lds}\n'
open(sys.argv[1],'w').write(hdr+'.amdgcn_target "amdgcn-amd-amdhsa--gfx950"\n.text\n'+code+'.section .rodata,"a"\n'+kd)
print('hazards',bad)
```

```python
from lib import *
import os
PFO=os.environ.get('PFO','xis')
sX,sWQ,sWI,sWS,sDB=4,8,12,16,20
sW,sRB,sA,sLW,sT0,sT1,sOff,sDel,sIt,sN2,sLine,sZa,sZb,sCi,sB0,sB1,sQB,sTy,sZ2a,sZ2b,sSc=range(24,45)
sStR,sNon,sNN,sUn,sPf,sLn=47,48,49,50,51,45
vL16,vZ0,vZ1,vQM,vQR,vD,vDZ,vStd,vRstd,vK1,vK2=1,2,3,4,5,6,11,12,13,14,15
T=16; TMP=48; PK=64; X=96
FR=0; AQ=64; ASV=144
SC=os.environ.get('SC','')
OOR='0xf0000000'
DPF=5; DB=8; BB=int(os.environ.get('BB','18')); BL=int(os.environ.get('BL','18')); PAYAT=int(os.environ.get('PAYAT','14'))
vNon=92
def dmaZ(slot,i,base):
    return [f's_add_u32 m0, {s(sLW)}, {slot}' if isinstance(slot,str) and i==0 else (f's_add_u32 m0, m0, 1024' if i else f's_add_u32 m0, {s(sLW)}, {slot*40960}'),
            f's_add_u32 {s(sOff)}, {s(base)}, {i*8*3456}',
            f'buffer_load_dwordx4 {v(vDZ)}, {s(sWI,4)}, {s(sOff)} offen lds']
def dmaQ(slot,i,q):
    return [f's_add_u32 m0, m0, 1024' if i else f's_add_u32 m0, {s(sLW)}, {slot*40960}',
            f's_add_u32 {s(sOff)}, {s(sQB)}, {(128*q+16*(i//5))*3840}',
            f'buffer_load_dwordx4 {v(vD+i%5)}, {s(sWQ,4)}, {s(sOff)} offen lds']
def rdT(t,m):
    return [f'ds_read_b64_tr_b16 {a(FR+4*(m%8)+2*r,2)}, {v(vZ0+t)} offset:{(m%20)*2048+r*512}' for r in (0,1)]
def rdQ(m,kk=None,p=None,b=0):
    if kk is None: kk,p=divmod(m%40,5)
    return [f'ds_read_b64_tr_b16 {a(FR+4*(m%8)+2*r,2)}, {v((vQM if p<4 else vQR)+b)} offset:{kk*5120+r*1280+(40*p if p<4 else 0)}' for r in (0,1)]
class DQ:
    def __init__(q): q.items=[]; q.n=0; q.last={}
    def add(q,tag,f,n):
        for i in range(n): q.items.append((tag,f(i)))
    def pop(q,maxtag=99):
        if not q.items or (isinstance(q.items[0][0],int) and q.items[0][0]>maxtag): return []
        t,i=q.items.pop(0); q.last[t]=q.n; q.n+=1; return i
    def vm(q,tag):
        assert all(t!=tag for t,_ in q.items), tag
        return min(63,q.n-1-q.last[tag])
def flush(e,f):
    for x in f:
        if isinstance(x,tuple): e('s_waitcnt lgkmcnt(0)' if x[0]=='+' else 's_nop 7')
        else: e(x(e) if callable(x) else x)
    del f[:]
def phase(e,N,mf,rdf,ev,q=None,gate=None,fill=None,bud=16):
    carry=0; hold=0
    for n in range(N):
        e(mf(n)); vm,ex=ev.get(n,(None,[]))
        if isinstance(vm,tuple): vm=q.vm(vm[0])
        e(f's_waitcnt lgkmcnt({2*(DPF-2)})' if vm is None else f's_waitcnt vmcnt({vm}) lgkmcnt({2*(DPF-2)})\ns_barrier')
        e(ex)
        g=gate(n) if gate else None
        d=q.pop(g) if g is not None else []
        e(d[:2]); e(rdf(n+DPF)); e(d[2:])
        carry=min(carry,8)+bud-(DB if d else 0)
        while fill and n>=hold:
            x=fill[0]
            if isinstance(x,tuple): hold=x[1] if x[0]=='@' else n+x[1]; (fill.pop(0) if hold<N else None); continue
            c=4 if callable(x) else sum(cost(y) for y in x.split('\n'))
            if c>carry and carry<bud: break
            fill.pop(0); carry-=c; e(x(e) if callable(x) else x)
def mfT(t): return lambda n: f'v_mfma_f32_32x32x16_bf16 {v(T+16*t,16)}, {a(FR+4*(n%8),4)}, {v(X+4*n,4)}, '+('0' if n==0 else v(T+16*t,16))
def mfQ(q):
    return lambda n: f'v_mfma_f32_32x32x16_bf16 {a(AQ+16*(n%5),16)}, {a(FR+4*(n%8),4)}, {v(X+4*(8*q+n//5),4)}, '+('0' if q==0 and n<5 else a(AQ+16*(n%5),16))
def gelu(tl,z=None):
    f=[('@',3)]
    for p in range(8*tl,8*tl+8):
        r=(T+2*p,T+2*p+1); t=(TMP,TMP+1)
        for op in ('v_mul_f32 {t}, {r}, {r}','v_fma_f32 {t}, {t}, {k2}, {k1}','v_mul_f32 {t}, {t}, {r}','v_exp_f32 {t}, {t}',
                   'v_fma_f32 {t}, {t}, {sd}, {sd}','v_rcp_f32 {t}, {t}','v_mul_f32 {r}, {r}, {t}'):
            for j in (0,1): f.append(op.format(t=v(t[j]),r=v(r[j]),k1=v(vK1),k2=v(vK2),sd=v(vStd)))
        if z:
            f.append(f'v_cvt_pk_bf16_f32 {v(PK+p)}, {v(r[0])}, {v(r[1])}')
            if p%4==3: f.append(f'buffer_store_dwordx4 {v(PK+p-3,4)}, {v(vL16 if p%8==3 else vL2)}, {s(sWS,4)}, {s(z)} offen{SC}')
    return f
S2=TMP+2; vL2=95
def stat1(t,init):
    f=[]
    for r in range(16):
        x=v(T+16*t+r)
        f+=[f'v_mov_b32 {v(S2)}, {x}',f'v_mul_f32 {v(S2+1)}, {x}, {x}'] if init and r==0 else [f'v_add_f32 {v(S2)}, {v(S2)}, {x}',f'v_fma_f32 {v(S2+1)}, {x}, {x}, {v(S2+1)}']
    return f
def publish(lab):
    S=S2
    f=[f'v_mov_b32 {v(S+2)}, {v(S)}', f'v_mov_b32 {v(S+3)}, {v(S+1)}',
        f'v_and_b32 {v(S+4)}, 0x1ff, {v(vL16)}',
        f'''v_readfirstlane_b32 {s(sNon)}, {v(vNon)}
        s_cmp_lg_u32 {s(sNon)}, 0
        s_cbranch_scc0 {lab}_sp
        {lab}_bk:''',
        f'v_permlane32_swap_b32 {v(S)}, {v(S+2)}', f'v_permlane32_swap_b32 {v(S+1)}, {v(S+3)}',
        f's_lshl_b32 {s(sT0)}, {s(sCi)}, 11\ns_add_u32 {s(sT0)}, {s(sT0)}, {s(sStR)}\ns_not_b32 {s(sNN)}, {s(sNon)}',
        f'v_add_f32 {v(S)}, {v(S)}, {v(S+2)}', f'v_add_f32 {v(S+1)}, {v(S+1)}, {v(S+3)}',
        f'v_mov_b32 {v(S+2)}, {s(sNon)}', f'v_mov_b32 {v(S+3)}, {s(sNN)}',
        f'buffer_store_dwordx4 {v(S,4)}, {v(S+4)}, {s(sWS,4)}, {s(sT0)} offen sc1']
    return f
def non_load(): return f's_lshl_b32 {s(sT1)}, {s(sRB)}, 4\nbuffer_load_dword {v(vNon)}, off, {s(sDB,4)}, {s(sT1)} sc1'
def non_spin(lab):
    return f'''{lab}_sp:
    s_mov_b32 s46, 0x100000
    {lab}_s2:
    {non_load()}
    s_waitcnt vmcnt(0)
    v_readfirstlane_b32 {s(sNon)}, {v(vNon)}
    s_cmp_lg_u32 {s(sNon)}, 0
    s_cbranch_scc1 {lab}_bk
    s_sub_u32 s46, s46, 1
    s_cbranch_scc0 {lab}_s2
    s_branch {lab}_bk'''
PV=TMP+9; PL=160
def pay_addr(): return [f'v_lshrrev_b32 {v(PV)}, 5, v0',f'v_mul_u32_u24 {v(PV)}, {7*2048-512}, {v(PV)}',f'v_add_u32 {v(PV)}, {v(vL16)}, {v(PV)}']
def pay_load():
    return [(f's_add_u32 {s(sT1)}, {s(sStR)}, {j*2048}\n' if j%2==0 else '')+f'buffer_load_dwordx4 {v(PL+4*j,4)}, {v(PV)}, {s(sWS,4)}, {s(sT1)} offen offset:{(j&1)*2048} sc1' for j in range(7)]
def bf(r): return f'v_cvt_pk_bf16_f32 {v(r)}, {v(r)}, {v(r)}\nv_lshlrev_b32 {v(r)}, 16, {v(r)}'
def meanstd(e,S,n):
    e(f'''v_mov_b32 {v(S+2)}, {v(S)}
    v_mov_b32 {v(S+3)}, {v(S+1)}
    s_nop 1
    v_permlane32_swap_b32 {v(S)}, {v(S+2)}
    v_permlane32_swap_b32 {v(S+1)}, {v(S+3)}
    s_nop 0
    v_add_f32 {v(S)}, {v(S)}, {v(S+2)}
    v_add_f32 {v(S+1)}, {v(S+1)}, {v(S+3)}
    v_mul_f32 {v(S)}, {fl(1.0/n)}, {v(S)}
    v_mul_f32 {v(S+1)}, {fl(1.0/n)}, {v(S+1)}
    v_fma_f32 {v(S+1)}, -{v(S)}, {v(S)}, {v(S+1)}
    v_max_f32 {v(S+1)}, 0, {v(S+1)}
    {bf(S)}
    {bf(S+1)}
    v_add_f32 {v(S+1)}, {fl(1e-5)}, {v(S+1)}
    {bf(S+1)}
    v_sqrt_f32 {v(S+1)}, {v(S+1)}
    s_nop 0
    {bf(S+1)}''')
W=58
def img_addr():
    return f'''v_and_b32 {v(W)}, 31, v0
    v_mul_u32_u24 {v(W)}, 136, {v(W)}
    v_lshrrev_b32 {v(W+1)}, 5, v0
    v_lshl_add_u32 {v(W)}, {v(W+1)}, 3, {v(W)}
    v_add_u32 {v(W)}, {s(sLW)}, {v(W)}
    v_bfe_u32 {v(W+1)}, {v(vZ0)}, 7, 4
    v_mul_u32_u24 {v(W+1)}, 136, {v(W+1)}
    v_and_b32 {v(W+2)}, 63, {v(vZ0)}
    v_add3_u32 {v(W+1)}, {s(sLW)}, {v(W+1)}, {v(W+2)}'''.split('\n')
def chk(): return [f'v_cmp_eq_u64 s[54:55], {s(sNon,2)}, {v(PL+4*j+2,2)}\ns_and_b64 s[56:57], s[54:55], '+('s[56:57]' if j else 'exec') for j in range(7)]
def retry(lab):
    return [f'{lab}_re:','s_mov_b32 s46, 0x100000',f'{lab}_r2:']+pay_load()+['s_waitcnt vmcnt(0)']+chk()+[f's_andn2_b64 s[56:57], exec, s[56:57]\ns_cbranch_scc0 {lab}_got\ns_sub_u32 s46, s46, 1\ns_cbranch_scc0 {lab}_r2\ns_branch {lab}_got']
def z2stat(lab):
    def w(e):
        i=max(j for j,x in enumerate(e.l) if x.startswith(f'buffer_load_dwordx4 {v(PL+24,4)}')); return f's_waitcnt vmcnt({sum(x.startswith("buffer_") for x in e.l[i+1:])})'
    f=[w]+chk()+[f's_andn2_b64 s[56:57], exec, s[56:57]\ns_cbranch_scc1 {lab}_re\n{lab}_got:']
    for j in range(1,7): f+=[f'v_add_f32 {v(PL)}, {v(PL)}, {v(PL+4*j)}',f'v_add_f32 {v(PL+1)}, {v(PL+1)}, {v(PL+4*j+1)}']
    m=A(); meanstd(m,PL,864)
    return f+m.l+[f'v_rcp_f32 {v(PL+1)}, {v(PL+1)}','s_nop 0',f'v_mul_f32 {v(PL)}, {v(PL)}, {v(PL+1)}']
def z2out():
    f=[]
    for j in range(8):
        for r in range(4): f.append(f'v_fma_f32 {v(T+4*j+r)}, {v(T+4*j+r)}, {v(PL+1)}, -{v(PL)}')
        for r in (0,1): f.append(f'v_cvt_pk_bf16_f32 {v(T+4*j+r)}, {v(T+4*j+2*r)}, {v(T+4*j+2*r+1)}')
        f.append(f'ds_write_b64 {v(W)}, {v(T+4*j,2)} offset:{16*j}')
        if j%4==3:
            f+=[f'ds_read_b64_tr_b16 {v(PL+8+2*j-6+4*i+2*r,2)}, {v(W+1)} offset:{i*16*136+r*4*136+16*(j-3)}' for i in (0,1) for r in (0,1)]
    return f,[f'buffer_store_dwordx4 {v(PL+8+8*t+4*i,4)}, {v(vL16)}, {s(sWS,4)}, {s(sZ2a+t)} offen offset:{i*1024}{SC}' for t in (0,1) for i in (0,1)]
def xphase(e,q,stamp,lead):
    XA=16; S=88
    e(f'''v_and_b32 {v(24)}, 31, v0
    v_lshrrev_b32 {v(25)}, 5, v0
    v_and_b32 {v(26)}, 15, v0
    v_xor_b32 {v(26)}, {v(26)}, {v(25)}
    v_lshlrev_b32 {v(26)}, 4, {v(26)}
    v_lshl_add_u32 {v(26)}, {v(24)}, 8, {v(26)}
    v_add_u32 {v(XA)}, {s(sLW)}, {v(26)}
    v_lshrrev_b32 {v(25)}, 3, {v(24)}
    v_mul_u32_u24 {v(25)}, {40960-2048}, {v(25)}
    v_add_u32 {v(25)}, 8192, {v(25)}
    v_mov_b32 {v(27)}, 0x3f803f80''')
    for j in range(1,8): e(f'v_xor_b32 {v(XA+j)}, {32*j}, {v(XA)}')
    for j in range(8): e(f'v_add_u32 {v(32+j)}, {v(25)}, {v(XA+j)}\nv_add_u32 {v(40+j)}, 81920, {v(XA+j)}')
    e(f'''v_lshrrev_b32 v48, 2, v0
    v_lshrrev_b32 v49, 5, v0
    v_xor_b32 v48, v48, v49
    v_and_b32 v48, 1, v48
    v_lshlrev_b32 v48, 4, v48
    v_bfe_u32 v49, v0, 1, 1
    v_bfe_u32 v50, v0, 3, 2
    v_lshl_add_u32 v49, v50, 1, v49
    v_add_u32 v48, v48, v49
    v_and_b32 v49, 1, v0
    v_lshlrev_b32 v49, 4, v49
    v_mov_b32 v50, 0x3f80
    v_lshlrev_b32 v49, v49, v50''')
    for r in range(8): e(f'v_cmp_eq_u32 {s(60+2*r,2)}, {r}, v48')
    for r in range(4): e(f'v_mov_b32 {v(S+r)}, 0')
    for r in range(8): e(f'v_cndmask_b32 {v(80+r)}, 0, v49, {s(60+2*r,2)}')
    def st(p,every):
        for r in range(32):
            if r%every==0: e(q.pop(-1 if p in (4,0,1) else p-2))
            x=v(X+32*p+r); e(f'v_dot2_f32_bf16 {v(S+2*(r&1))}, {x}, v27, {v(S+2*(r&1))}\nv_dot2_f32_bf16 {v(S+1+2*(r&1))}, {x}, {x}, {v(S+1+2*(r&1))}')
    for j in range(8): e(q.pop())
    if 'j' in PFO: e(pf(sWI,17))
    for p in (4,0,1,2,3):
        e(f's_waitcnt vmcnt({q.vm("x%d"%p)})')
        if p==4: stamp(1)
        if p==3: stamp(2)
        for j in range(8): e(f'ds_read_b128 {v(X+32*p+4*j,4)}, {v((32 if p==4 else XA if p<2 else 40)+j)} offset:{40960*(p&1)}')
        if p==4 and lead: e(lead)
        e('s_waitcnt lgkmcnt(0)')
        st(p,4 if p!=3 else 10)
    e(f's_nop 2\nv_add_f32 {v(S)}, {v(S)}, {v(S+2)}\nv_add_f32 {v(S+1)}, {v(S+1)}, {v(S+3)}')
    meanstd(e,S,640)
    e(f'v_rcp_f32 {v(vRstd)}, {v(S+1)}\nv_mov_b32 {v(vStd)}, {v(S+1)}')
    for r in range(16): e(f'v_sub_f32 {v(64+r)}, 0, {v(S)}')
    e(f'''v_mul_f32 {v(vK1)}, {fl(-2.302208198)}, {v(vRstd)}
    v_mul_f32 {v(vK2)}, {v(vRstd)}, {v(vRstd)}
    v_mul_f32 {v(vK2)}, {fl(0.044715)}, {v(vK2)}
    v_mul_f32 {v(vK2)}, {v(vK1)}, {v(vK2)}''')
    for j in range(22):
        for h in (0,1):
            D=16+16*(j%3)
            if j<20: e(f'v_mfma_f32_32x32x16_bf16 {v(D,16)}, {v(80+4*h,4)}, {v(X+8*j+4*h,4)}, {v(64 if h==0 else D,16)}')
            if j<19 and (2*j+h)%5 in (0,2): e(q.pop(3))
            if 'r' in PFO and (j,h)==(9,1): e(pf(sWQ,19))
            if j==19 and h==1:
                e(f's_waitcnt vmcnt({q.vm(0)})\ns_barrier')
                for m in range(DPF): e(rdT(0,m))
            if j<2: e('s_nop 3')
            if j>=2:
                D=16+16*((j-2)%3)+8*h
                for r in range(4): e(f'v_cvt_pk_bf16_f32 {v(X+8*(j-2)+4*h+r)}, {v(D+2*r)}, {v(D+2*r+1)}')
    e(f's_waitcnt lgkmcnt({2*(DPF-1)})'); stamp(3)
def zadd(t,x): return [f'v_add_u32 {v(vZ0+t)}, {x}, {v(vZ0+t)}']
def qadd(x): return [f'v_add_u32 {v(vQM)}, {x}, {v(vQM)}',f'v_add_u32 {v(vQR)}, {x}, {v(vQR)}']
def pf(srd_,n,stride=128):
    return f'''s_mul_i32 {s(sT0)}, {s(sPf)}, {n*stride}
    s_bfm_b64 exec, {n}, 0
    buffer_load_dword v94, v93, {s(srd_,4)}, {s(sT0)} offen
    s_mov_b64 exec, -1'''
def PF1(): return ([pf(sX,20)] if 'x' in PFO else [])+([pf(sWI,17)] if 'i' in PFO else [])+([pf(sWQ,19)] if 'q' in PFO else [])
def PF2():
    return [f'v_lshrrev_b32 v61, 2, v0\nv_mul_u32_u24 v61, {4096-512}, v61\nv_add_u32 v61, v61, v93',pf(52,12,1024).replace('v93','v61'),
    f'''s_mul_i32 {s(sUn)}, {s(sW)}, 192
    s_add_u32 {s(sUn)}, {s(sUn)}, s2
    s_cmp_ge_u32 {s(sUn)}, 470
    s_cbranch_scc1 k1_nou
    s_cmp_lt_u32 {s(sUn)}, 200
    s_cselect_b64 s[52:53], s[56:57], s[58:59]
    s_cselect_b32 s54, 20, 27
    s_mul_i32 s54, s54, 40960
    v_lshrrev_b32 v60, 5, v0
    s_mul_i32 {s(sT0)}, {s(sUn)}, 6554
    s_lshr_b32 {s(sT0)}, {s(sT0)}, 16
    s_mul_i32 {s(sT1)}, {s(sT0)}, 10
    s_sub_u32 {s(sT1)}, {s(sUn)}, {s(sT1)}
    s_mul_i32 s60, {s(sT0)}, 40
    s_mov_b32 s61, 4
    s_mov_b32 s62, 20
    s_mov_b32 s63, 8
    s_cmp_lt_u32 {s(sT0)}, 16
    s_cbranch_scc1 k1_u
    s_lshl_b32 s60, {s(sT0)}, 5
    s_sub_u32 s60, s60, 640
    s_mov_b32 s62, 16
    s_cmp_ge_u32 {s(sT0)}, 20
    s_cbranch_scc1 k1_u
    s_mul_i32 s60, {s(sT0)}, 160
    s_sub_u32 s60, s60, {2560-16}
    s_mov_b32 s61, 40
    s_mov_b32 s62, 80
    s_mov_b32 s63, 20
    k1_u:
    s_mul_i32 s60, s60, 1280
    s_mul_i32 s61, s61, 1280
    s_mul_i32 s62, s62, 1280
    s_lshl_b32 {s(sT1)}, {s(sT1)}, 7
    s_add_u32 s60, s60, {s(sT1)}
    v_mul_u32_u24 v61, s63, v60
    v_bfe_u32 v62, v0, 3, 2
    v_add_u32 v61, v61, v62
    v_mul_u32_u24 v61, 1280, v61
    v_and_b32 v62, 7, v0
    v_lshl_add_u32 v61, v62, 4, v61
    s_add_u32 m0, {s(sLW)}, 122880
    s_add_u32 s64, s60, s61
    buffer_load_dwordx4 v61, s[52:55], s60 offen lds
    s_add_u32 m0, m0, 1024
    s_add_u32 s60, s60, s62
    buffer_load_dwordx4 v61, s[52:55], s64 offen lds
    s_add_u32 m0, m0, 1024
    s_add_u32 s64, s60, s61
    buffer_load_dwordx4 v61, s[52:55], s60 offen lds
    s_add_u32 m0, m0, 1024
    s_nop 0
    buffer_load_dwordx4 v61, s[52:55], s64 offen lds
    k1_nou:''']
def build(stamp_f):
    e=A(); stamp=lambda i: stamp_f(e,i)
    e(f'''s_cmp_ge_u32 s2, 256
    s_cbranch_scc1 k1_end
    s_load_dwordx2 {s(sX,2)}, s[0:1], 0
    s_load_dwordx2 {s(sWQ,2)}, s[0:1], 8
    s_load_dwordx2 {s(sWI,2)}, s[0:1], 32
    s_load_dwordx2 {s(sDB,2)}, s[0:1], 72
    s_load_dwordx2 {s(sWS,2)}, s[0:1], 80
    s_load_dwordx2 s[52:53], s[0:1], 40
    s_load_dwordx2 s[56:57], s[0:1], 16
    s_load_dwordx2 s[58:59], s[0:1], 56
    v_lshrrev_b32 v1, 6, v0
    v_and_b32 v0, 63, v0
    v_readfirstlane_b32 {s(sW)}, v1''')
    stamp(0)
    srd(e,sX,2048*1280); srd(e,sWQ,640*3840); srd(e,sWI,640*3456); srd(e,sDB,256); srd(e,sWS,WSZ); srd(e,52,2048*4096)
    e(f'''s_bfe_u32 {s(sRB)}, s2, 0x20001
    s_lshl_b32 {s(sRB)}, {s(sRB)}, 2
    s_bfe_u32 {s(sT0)}, s2, 0x20003
    s_add_u32 {s(sRB)}, {s(sRB)}, {s(sT0)}
    s_mul_i32 {s(sLW)}, {s(sW)}, 10240
    s_lshl_b32 {s(sT0)}, {s(sRB)}, 2
    s_add_u32 {s(sIt)}, {s(sT0)}, {s(sW)}
    s_mul_i32 {s(sLine)}, {s(sIt)}, {32*1280}
    v_lshrrev_b32 v16, 4, v0
    v_and_b32 v17, 15, v0
    v_xor_b32 v17, v17, v16
    v_lshlrev_b32 v17, 4, v17
    v_mul_u32_u24 v16, 1280, v16
    v_add_u32 v28, v16, v17
    v_xor_b32 v29, 64, v28
    v_xor_b32 v30, 128, v28
    v_xor_b32 v31, 192, v28
    s_lshl_b32 {s(sPf)}, s2, 2
    s_add_u32 {s(sPf)}, {s(sPf)}, {s(sW)}
    v_lshlrev_b32 v93, 7, v0
    s_waitcnt lgkmcnt(0)''')
    def dmaX(p,i):
        l=(i>>1)*40960+8192+(i&1)*1024 if p==4 else p*40960+i*1024
        return [f's_add_u32 m0, {s(sLW)}, {l}',f's_add_u32 {s(sOff)}, {s(sLine)}, {4*i*1280+p*256}',f'buffer_load_dwordx4 {v(28+(i&3))}, {s(sX,4)}, {s(sOff)} offen lds']
    def newq():
        q=DQ()
        for p in (4,0,1,2,3): q.add(f'x{p}',lambda i:dmaX(p,i),8)
        return q,[q.pop() for i in range(8)]
    e(f'''s_lshl_b32 {s(sStR)}, {s(sRB)}, 6
    s_add_u32 {s(sStR)}, {s(sStR)}, {s(sW)}
    s_lshl_b32 {s(sStR)}, {s(sStR)}, 9
    s_add_u32 {s(sStR)}, {s(sStR)}, {ST}
    s_and_b32 {s(sT0)}, s2, 0xe1
    s_or_b32 {s(sN2)}, {s(sT0)}, {s(sW)}
    s_cbranch_scc1 k1_nl
    buffer_load_dword {v(vNon)}, off, {s(sWS,4)}, {s(sStR)} offset:8 sc1
    k1_nl:''')
    e(PF1())
    e(newq()[1])
    e(f'''v_lshlrev_b32 {v(vL16)}, 4, v0
    v_lshrrev_b32 v16, 5, v0
    v_bfe_u32 v17, v0, 2, 2
    v_lshl_add_u32 v16, v16, 3, v17
    v_bfe_u32 v17, v0, 4, 1
    v_and_b32 v18, 3, v0
    v_lshl_add_u32 v19, v17, 2, v18
    v_lshlrev_b32 {v(vZ0)}, 3, v19
    v_lshl_add_u32 {v(vZ0)}, v16, 7, {v(vZ0)}
    v_and_b32 v20, 8, v0
    v_lshl_add_u32 {v(vZ0)}, v20, 3, {v(vZ0)}
    v_xor_b32 {v(vZ1)}, 64, {v(vZ0)}
    v_mul_u32_u24 v16, 320, v16
    v_add_u32 v16, 81920, v16
    v_mul_u32_u24 v20, 160, v17
    v_lshl_add_u32 v20, v18, 3, v20
    v_add_u32 {v(vQM)}, v16, v20
    v_mul_u32_u24 v19, 40, v19
    v_add3_u32 {v(vQR)}, v16, v19, 32
    v_lshrrev_b32 v16, 3, v0
    v_mul_u32_u24 v16, 3456, v16
    v_and_b32 v18, 7, v0
    v_lshlrev_b32 v17, 2, v17
    v_xor_b32 v18, v18, v17
    v_lshl_add_u32 {v(vDZ)}, v18, 4, v16
    s_lshr_b32 {s(sT0)}, s2, 5
    s_and_b32 {s(sT1)}, s2, 1
    s_mul_i32 {s(sB0)}, {s(sW)}, {80*3456}
    s_lshl_b32 {s(sZa)}, {s(sIt)}, 10
    s_lshl_b32 {s(sZ2a)}, {s(sIt)}, 11
    s_add_u32 {s(sZ2a)}, {s(sZ2a)}, {Z2T-27*131072}
    s_cmp_ge_u32 {s(sT0)}, 6
    s_cbranch_scc1 k1_B''')
    for j in range(5):
        e(f'''v_add_u32 v16, {64*j}, v0
        v_mul_u32_u24 v17, 3277, v16
        v_lshrrev_b32 v17, 16, v17
        v_mul_u32_u24 v17, {3840-320}, v17
        v_lshl_add_u32 {v(vD+j)}, v16, 4, v17''')
    e(f'''s_mul_i32 {s(sA)}, {s(sT1)}, 6
    s_add_u32 {s(sA)}, {s(sA)}, {s(sT0)}
    s_mov_b32 {s(sCi)}, {s(sA)}
    s_add_u32 {s(sT0)}, {s(sA)}, 15
    s_lshl_b32 {s(sT1)}, {s(sT0)}, 18
    s_add_u32 {s(sZ2a)}, {s(sZ2a)}, {s(sT1)}
    s_add_u32 {s(sZ2b)}, {s(sZ2a)}, 131072
    s_lshl_b32 {s(sT0)}, {s(sT0)}, 7
    s_add_u32 {s(sB0)}, {s(sB0)}, {s(sT0)}
    s_add_u32 {s(sB1)}, {s(sB0)}, {320*3456}
    s_mul_i32 {s(sQB)}, {s(sW)}, {32*3840}
    s_mul_i32 {s(sT0)}, {s(sA)}, 320
    s_add_u32 {s(sQB)}, {s(sQB)}, {s(sT0)}''')
    q=newq()[0]
    q.add(0,lambda i:dmaZ(0,i,sB0),10); q.add(1,lambda i:dmaZ(1,i,sB1),10)
    for j in range(5): q.add(2+j,lambda i:dmaQ((2+j)&3,i,j),10)
    xphase(e,q,stamp,f'''s_cmp_lg_u32 {s(sN2)}, 0
    s_cbranch_scc1 k1_nl2
    v_add_u32 {v(vNon)}, 1, {v(vNon)}
    v_max_u32 {v(vNon)}, 1, {v(vNon)}
    s_lshl_b32 {s(sT1)}, {s(sRB)}, 4
    s_mov_b64 exec, 1
    buffer_store_dword {v(vNon)}, off, {s(sDB,4)}, {s(sT1)} sc1
    s_mov_b64 exec, -1
    k1_nl2:''')
    dense=lambda g:(lambda n: g(n) if n%5 in (1,3) else None)
    sparse=lambda g:(lambda n: g if n%3==1 and n<35 else None)
    def P0(): phase(e,40,mfT(0),lambda m:rdT(m//40,m),{15:((1,),zadd(0,40960)+[non_load()])},q,dense(lambda n:3),img_addr()+pay_addr(),4)
    P0(); f=gelu(0)
    phase(e,40,mfT(1),lambda m:rdT(1,m) if m<40 else rdQ(m),{15:(63,zadd(1,40960)),35:((2,),[])},q,lambda n:(4 if n>15 else 3) if n%3==1 else None,f)
    stamp(4)
    f+=gelu(1)+stat1(0,True)+stat1(1,False)+publish('k1_na')
    phase(e,40,mfQ(0),rdQ,{35:((3,),qadd(40960))},q,sparse(5),f); stamp(8)
    phase(e,40,mfQ(1),rdQ,{35:((4,),qadd(-122880)+PF2())},q,sparse(6),f); stamp(9)
    assert not q.items
    f+=[f'''s_lshr_b32 {s(sTy)}, {s(sA)}, 2
    s_cmp_eq_u32 {s(sTy)}, 0
    s_cselect_b32 {s(sSc)}, {fl(0.32259641858)}, 1.0
    s_cselect_b32 {s(sQB)}, {QS}, {KV}''',f'''s_and_b32 {s(sT0)}, {s(sA)}, 3
    s_mul_i32 {s(sT0)}, {s(sT0)}, {8*HS}
    s_add_u32 {s(sQB)}, {s(sQB)}, {s(sT0)}''',f'''s_lshr_b32 {s(sT0)}, {s(sIt)}, 1
    s_mul_i32 {s(sT0)}, {s(sT0)}, {SS}
    s_add_u32 {s(sQB)}, {s(sQB)}, {s(sT0)}''',f'''s_and_b32 {s(sB0)}, {s(sW)}, 1
    s_lshl_b32 {s(sB1)}, {s(sUn)}, 12
    s_add_u32 {s(sB1)}, {s(sB1)}, {WF}''',f'v_mul_f32 v63, {s(sSc)}, {v(vRstd)}',
    f'v_add_u32 {v(vQM+2)}, 81920, {v(vQM)}',f'v_add_u32 {v(vQR+2)}, 81920, {v(vQR)}',
    'v_lshrrev_b32 v60, 4, v0','v_bfe_u32 v61, v0, 2, 2','v_lshl_add_u32 v60, v60, 3, v61','v_and_b32 v61, 3, v0','v_lshlrev_b32 v61, 3, v61',
    'v_lshl_add_u32 v60, v60, 7, v61',f's_add_u32 {s(sT0)}, {s(sLW)}, 122880\nv_add_u32 v62, {s(sT0)}, v60','v_and_b32 v60, 31, v0','v_lshrrev_b32 v61, 5, v0']
    TO=(4,0,1,2,3)
    def rdL(m): m=min(m,72+m%8); return rdQ(m,m%8,TO[m//16],2*((m>>3)&1))
    phase(e,40,mfQ(2),lambda m:rdQ(m) if m<40 else rdL(m-40),{35:(0,qadd(40960))},fill=f); stamp(10)
    assert not f
    e(f's_cmp_eq_u32 {s(sTy)}, 2\ns_cbranch_scc1 k1_V')
    E,P,VR,RL=96,112,128,144
    for isV in (0,1):
        L='k1_v' if isV else 'k1_q'
        f=[f's_cmp_ge_u32 {s(sUn)}, 470\ns_cbranch_scc1 {L}a\n'+'\n'.join(f'ds_read_b64_tr_b16 {v(RL+4*j+2*r,2)}, v62 offset:{32*j+512*r}' for j in range(4) for r in (0,1))+f'\n{L}a:']
        if isV:
            e('k1_V:')
            f+=[f's_lshl_b32 {s(sT0)}, {s(sB0)}, 11\ns_add_u32 {s(sQB)}, {s(sT0)}, {s(sQB)}','v_lshlrev_b32 v61, 9, v61','v_bfe_u32 v64, v0, 4, 1',f'v_mul_u32_u24 v64, {4*HS}, v64','v_and_b32 v65, 15, v0',
                'v_lshl_add_u32 v64, v65, 4, v64','v_add_u32 v64, v64, v61','v_lshrrev_b32 v65, 2, v60',f'v_mul_u32_u24 v65, {HS}, v65','v_and_b32 v60, 3, v0','v_lshl_add_u32 v65, v60, 4, v65','v_add_u32 v65, v65, v61',
                'v_lshrrev_b32 v56, 4, v0','v_lshlrev_b32 v56, 8, v56',f'v_add_u32 v56, v56, {v(vL16)}']+[f'v_mov_b32 {v(68+r)}, 0x3f803f80' for r in range(4)]
            f+=[f's_add_u32 {s(sT0)}, {s(sQB)}, {p*HS+2048+256}\ns_mov_b32 exec_lo, 0xfff0fff0\ns_mov_b32 exec_hi, 0xfff0fff0\nbuffer_store_dwordx4 v[68:71], v56, {s(sWS,4)}, {s(sT0)} offen{SC}\ns_mov_b64 exec, -1' for p in range(8)]
        else:
            f+=[f's_lshl_b32 {s(sT0)}, {s(sB0)}, 8\ns_add_u32 {s(sDel)}, {s(sT0)}, {s(sQB)}',f's_lshl_b32 {s(sT0)}, {s(sB0)}, 10\ns_add_u32 {s(sQB)}, {s(sT0)}, {s(sQB)}',f'v_mul_u32_u24 v61, {HS}, v61','v_lshl_add_u32 v61, v60, 3, v61',('@',5)]
        f+=[f's_cmp_ge_u32 {s(sUn)}, 470\ns_cbranch_scc1 {L}b\n'+'\n'.join(f'buffer_store_dwordx4 {v(RL+4*j,4)}, {v(vL16)}, {s(sWS,4)}, {s(sB1)} offen offset:{1024*j}{SC}' for j in range(4))+f'\n{L}b:']
        f+=[('@',PAYAT)]+pay_load()
        zo,zs=z2out(); late=[]
        for k,p in enumerate(TO):
            Pk=P+8*(k&1); Vk=VR+8*(k&1)
            f+=[('@',16*k+19)]+[f'v_accvgpr_read_b32 {v(E+r)}, {a(AQ+16*p+r)}' for r in range(16)]+late; late=[]
            for r in range(8): f+=[f'v_mul_f32 {v(E+2*r)}, {v(E+2*r)}, v63',f'v_mul_f32 {v(E+2*r+1)}, {v(E+2*r+1)}, v63',f'v_cvt_pk_bf16_f32 {v(Pk+r)}, {v(E+2*r)}, {v(E+2*r+1)}']
            if isV:
                o=4352+64*(k&1)
                f+=[f'ds_write_b64 {v(W)}, {v(Pk+2*j,2)} offset:{o+16*j}' for j in range(4)]
                f+=[f'ds_read_b64_tr_b16 {v(Vk+4*i+2*r,2)}, {v(W+1)} offset:{o+i*16*136+r*4*136}' for i in (0,1) for r in (0,1)]
                late=[f's_add_u32 {s(sOff)}, {s(sQB)}, {(p*HS if p<4 else 256)+2048}']+[f'buffer_store_dwordx4 {v(Vk+4*i,4)}, {v(64 if p<4 else 65)}, {s(sWS,4)}, {s(sOff)} offen offset:{1024*i}{SC}' for i in (0,1)]
            elif p<4: f+=[f's_add_u32 {s(sOff)}, {s(sQB)}, {(p+4*h)*HS}\nbuffer_store_dwordx4 {v(Pk+4*h,4)}, {v(vL16)}, {s(sWS,4)}, {s(sOff)} offen{SC}' for h in (0,1)]
            else: f+=[f's_add_u32 {s(sOff)}, {s(sDel)}, {2*j*HS+6144}\nbuffer_store_dwordx2 {v(Pk+2*j,2)}, v61, {s(sWS,4)}, {s(sOff)} offen{SC}' for j in range(4)]
            if k==1: f+=z2stat(L)
            if k==2: f+=zo[:32]; late+=zs[:2]
            if k==3: f+=zo[32:]; late=[('+',99)]+late+zs[2:]
        f+=[('+',99)]+late
        phase(e,80,lambda n:f'v_mfma_f32_32x32x16_bf16 {a(AQ+16*TO[n//16],16)}, {a(FR+4*(n%8),4)}, {v(X+96+4*(n%16),4)}, {a(AQ+16*TO[n//16],16)}',rdL,{},fill=f,bud=BL)
        stamp(5); print('# A tail items',len(f)); flush(e,f)
        if not isV: e('s_branch k1_fin')
    e('k1_fin:'); stamp(7); stamp(-1)
    e('k1_end:\ns_endpgm')
    for l in ('k1_q','k1_v','k1_b'): e(retry(l))
    for l in ('k1_na','k1_nb','k1_nc'): e(non_spin(l))
    e(f'''k1_B:
    s_lshl_b32 {s(sA)}, {s(sT1)}, 1
    s_add_u32 {s(sA)}, {s(sA)}, {s(sT0)}
    s_sub_u32 {s(sA)}, {s(sA)}, 6
    s_mul_i32 {s(sLn)}, {s(sA)}, 0x04040404
    s_sub_u32 {s(sLn)}, {s(sLn)}, 0x00010203
    s_cmp_eq_u32 {s(sA)}, 0
    s_cselect_b32 {s(sN2)}, 2, 3
    s_cselect_b32 {s(sLn)}, 0x0d0e, {s(sLn)}
    s_add_u32 {s(sTy)}, {s(sZa)}, {Z1}
    s_mov_b32 {s(sUn)}, {s(sB0)}
    s_and_b32 {s(sT0)}, {s(sLn)}, 0xff
    s_lshl_b32 {s(sT0)}, {s(sT0)}, 7
    s_add_u32 {s(sB0)}, {s(sUn)}, {s(sT0)}
    s_add_u32 {s(sB1)}, {s(sB0)}, {320*3456}
    s_bfe_u32 {s(sT0)}, {s(sLn)}, 0x80008
    s_lshl_b32 {s(sT0)}, {s(sT0)}, 7
    s_add_u32 {s(sQB)}, {s(sUn)}, {s(sT0)}
    s_add_u32 {s(sSc)}, {s(sQB)}, {320*3456}
    v_add_u32 {v(vL2)}, 0x10000, {v(vL16)}''')
    q=newq()[0]
    for j,bs in enumerate((sB0,sB1,sQB,sSc)): q.add(j,lambda i:dmaZ(j,i,bs),10)
    xphase(e,q,stamp,None)
    P0(); assert not q.items
    stamp(4)
    e(f'''s_mov_b32 {s(sIt)}, 0
    s_mov_b32 {s(sDel)}, 40960
    s_mov_b32 {s(sLine)}, 0
    s_branch k1_pb
    k1_loop:''')
    q.add(5,lambda i:dmaZ(s(sSc),i,sB1),10); f=gelu(1,sZb); stamp(8)
    phase(e,40,mfT(0),lambda m:rdT(m//40,m),{1:(None,zadd(1,s(sDel))+[f'v_xor_b32 {v(vZ1)}, {s(sCi)}, {v(vZ1)}']),15:(None,zadd(0,40960))},q,lambda n:5 if n<3 or n%4==1 else None,f,BB)
    flush(e,f); assert not q.items
    e(f'''s_sub_u32 {s(sDel)}, -81920, {s(sDel)}
    s_sub_u32 {s(sLine)}, 81920, {s(sLine)}
    s_lshl_b32 {s(sT0)}, {s(sA)}, 2
    s_add_u32 {s(sT0)}, {s(sT0)}, {s(sIt)}
    s_cmp_eq_u32 {s(sT0)}, 1
    s_cbranch_scc1 k1_s1
    k1_pb:
    s_and_b32 {s(sT0)}, {s(sLn)}, 0xff
    s_lshl_b32 {s(sZa)}, {s(sT0)}, 18
    s_add_u32 {s(sZa)}, {s(sZa)}, {s(sTy)}
    s_add_u32 {s(sZb)}, {s(sZa)}, 131072
    s_cmp_eq_u32 {s(sT0)}, 13
    s_cselect_b32 {s(sZb)}, {s(sZa)}, {s(sZb)}
    s_cmp_eq_u32 {s(sT0)}, 14
    s_cselect_b32 {s(sZb)}, {OOR}, {s(sZb)}
    s_cmp_ge_u32 {s(sT0)}, 13
    s_cselect_b32 {s(sZa)}, {OOR}, {s(sZa)}
    s_cselect_b32 {s(sCi)}, 64, 0''')
    q.add(4,lambda i:dmaZ(s(sLine),i,sB0),10); f=gelu(0,sZa); stamp(9)
    mid=f'''s_bfe_u32 {s(sT0)}, {s(sLn)}, 0x80010
    s_lshl_b32 {s(sT0)}, {s(sT0)}, 7
    s_add_u32 {s(sB0)}, {s(sUn)}, {s(sT0)}
    s_add_u32 {s(sB1)}, {s(sB0)}, {320*3456}
    s_add_u32 {s(sSc)}, {s(sLine)}, 40960
    s_add_u32 {s(sT0)}, {s(sIt)}, 2
    s_cmp_le_u32 {s(sT0)}, {s(sN2)}
    s_cselect_b32 {s(sWI+2)}, {640*3456}, 0
    s_lshr_b32 {s(sLn)}, {s(sLn)}, 8'''
    phase(e,40,mfT(1),lambda m:rdT(1-m//40,m),{0:(None,[mid]),1:(None,zadd(0,s(sDel))+[f'v_xor_b32 {v(vZ0)}, {s(sCi)}, {v(vZ0)}']),15:(63,zadd(1,40960)),35:(10,[])},q,lambda n:4 if n>15 and n%2==0 else None,f,BB)
    flush(e,f); assert not q.items; stamp(10)
    e(f'''s_cmp_lg_u32 {s(sCi)}, 0
    s_cbranch_scc1 k1_s0
    k1_next:
    s_add_u32 {s(sIt)}, {s(sIt)}, 1
    s_cmp_le_u32 {s(sIt)}, {s(sN2)}
    s_cbranch_scc1 k1_loop''')
    stamp(5)
    e(f's_cmp_lg_u32 {s(sA)}, 0\ns_cbranch_scc1 k1_nop'); e(pay_load()); e('k1_nop:')
    flush(e,gelu(1,sZb))
    e(f's_cmp_lg_u32 {s(sA)}, 0\ns_cbranch_scc1 k1_fin'); stamp(6)
    flush(e,z2stat('k1_b'))
    e(f's_add_u32 {s(sZ2a)}, {s(sZ2a)}, {28*131072}\ns_add_u32 {s(sZ2b)}, {s(sZ2a)}, 131072')
    zo,zs=z2out()
    for r in range(32): e(f'v_accvgpr_read_b32 {v(T+r)}, {a(ASV+r)}')
    flush(e,zo+[('+',0)]+zs)
    e(f's_sub_u32 {s(sZ2a)}, {s(sZ2a)}, 131072')
    for r in range(16): e(f'v_accvgpr_read_b32 {v(T+r)}, {a(ASV+32+r)}')
    flush(e,zo[:32]+[('+',0)]+zs[:2])
    e('s_branch k1_fin')
    sv=lambda t,o:[f'v_accvgpr_write_b32 {a(ASV+o+r)}, {v(T+16*t+r)}' for r in range(16)]
    e('k1_s1:'); e(stat1(1,False)); e(f's_mov_b32 {s(sCi)}, 12'); e(publish('k1_nb')); e(sv(1,16)); e('s_branch k1_pb')
    e('k1_s0:'); e(stat1(0,True)); e(f's_cmp_eq_u32 {s(sIt)}, 0\ns_cbranch_scc0 k1_s2'); e(sv(0,0)); e('s_branch k1_next')
    e(f'k1_s2:\ns_mov_b32 {s(sCi)}, 13'); e(publish('k1_nc')); e(sv(0,32)); e(f's_mov_b32 {s(sCi)}, 64\ns_branch k1_next')
    return e
```

```python
from lib import *
import os
LEAD=int(os.environ.get('LEAD','3')); NPF=int(os.environ.get('NPF','1'))
sWS,sDM,sSP,sWO,sBS=4,8,12,16,20
sW,sH,sQB,sTB,sFB,sT0,sT1,sT2,sKV,sZ,sSo,sMk,sMz,sMw,sIt,sU0,sU1,sUn,sWq,sKh,sSl,sSt,sLim=range(24,47)
vL16,vA,vK,vR,vB0,vB1,vDW0,vDW1,vIdx,vBs,vT=1,2,3,4,5,6,7,8,9,10,11
SA,SB,O0,O1,G0,G1=16,32,48,64,80,96
QM,QR,KM,KR,V0,V1,GA0,GA1,GA2,GBa,GBb,Z=112,120,124,128,132,136,140,144,148,152,156,160
EX=176
LK,LZ,LW=0,7168,15360
def dma(j,slot):
    o=slot*32768
    if j==0: return [f's_add_u32 m0, {s(sMw)}, {o}', None, f'buffer_load_dwordx4 {v(vDW0)}, {s(sSP,4)}, {s(sSo)} offen lds']
    if j==1: return [f's_add_u32 m0, {s(sMw)}, {o+1024}', None, f'buffer_load_dwordx4 {v(vDW1)}, {s(sSP,4)}, {s(sSo)} offen lds']
    if j==2: return [f's_add_u32 m0, {s(sMz)}, {o}', f's_add_u32 {s(sSo)}, {s(sSo)}, {s(sSt)}', f'buffer_load_dwordx4 {v(vL16)}, {s(sDM,4)}, {s(sZ)} offen lds']
    return [f's_add_u32 m0, {s(sMk)}, {o}', f's_add_u32 {s(sZ)}, {s(sZ)}, 4096', f'buffer_load_dwordx4 {v(vL16)}, {s(sDM,4)}, {s(sKV)} offen lds']
def em(e,d,alt='s_nop 0'): e([d[0],d[1] or alt,d[2]])
def mf(D,Aa,B,C=None): return f'v_mfma_f32_32x32x16_bf16 {v(D,16)}, {v(Aa,4)}, {v(B,4)}, '+(C or v(D,16))
def mf8(D,Aa,B): return f'v_mfma_f32_32x32x8_bf16 {v(D,16)}, {v(Aa,2)}, {v(B,2)}, {v(D,16)}'
def pv(D,Aa,P): return f'v_smfmac_f32_32x32x32_bf16 {v(D,16)}, {v(Aa,4)}, {v(P,8)}, {v(vIdx)}'
def rd(D,ad,off): return f'ds_read_b128 {v(D,4)}, {v(ad)} offset:{off}'
def stage(e,par):
    c=par*32768; n=(1-par)*32768; dp=par if LEAD==4 else 1-par
    def ex(S,lo,hi):
        for r in range(lo,hi): e(f'v_exp_f32 {v(S+r)}, {v(S+r)}')
    e(mf(G0,GA0,GBa)); e(rd(GA0,vA,c+LZ+1024)); ex(SA,0,3)
    e(pv(O1,V1,SB+8)); e(rd(V1,vA,c+2048+1024)); e(rd(GA2,vA,c+LZ+4096+1024)); ex(SA,3,5)
    e(mf(SB,KM,QM+4,'0')); ex(SA,5,8)
    e(mf8(SB,KR,QR+2)); e('s_waitcnt lgkmcnt(3)'); ex(SA,8,11)
    if par:
        for r in (vA,vK,vR,vB0,vB1): e(f'v_xor_b32 {v(r)}, 0x10000, {v(r)}')
    e(pv(O0,V0,SA)); e('s_waitcnt vmcnt(%d) lgkmcnt(0)\ns_barrier'%(4*LEAD-8))
    e(rd(KM,vK,n)); e(f'ds_read_b64 {v(KR,2)}, {v(vR)} offset:{n}'); ex(SA,11,13)
    e(mf(G1,GA1,GBa)); e(rd(GBa,vB0,n)); e(rd(GA1,vA,n+LZ+4096)); ex(SA,13,16)
    e(mf(G0,GA0,GBb)); e(rd(GA0,vA,n+LZ)); ex(SB,0,3)
    e(pv(O0,V1,SA+8)); em(e,dma(0,dp),'s_waitcnt lgkmcnt(1)'); ex(SB,3,5)
    e(mf(SA,KM,QM,'0')); em(e,dma(1,dp),f's_add_u32 {s(sKV)}, {s(sKV)}, {SS}'); ex(SB,5,8)
    e(mf8(SA,KR,QR)); em(e,dma(2,dp)); ex(SB,8,11)
    e(pv(O1,V0,SB)); d=dma(3,dp); e(d[:2]); e(rd(V0,vA,n+2048)); e(d[2]); ex(SB,11,13)
    e(mf(G1,GA2,GBb)); e('s_waitcnt lgkmcnt(1)')
    if dp:
        e(f'''s_xor_b32 {s(sMk)}, {s(sMk)}, 0x10000
        s_xor_b32 {s(sMz)}, {s(sMz)}, 0x10000
        s_xor_b32 {s(sMw)}, {s(sMw)}, 0x10000
        s_cmp_lt_u32 {s(sIt)}, {17-LEAD}
        s_cselect_b32 {s(sDM+2)}, {s(sDM+2)}, 0
        s_cmp_lt_u32 {s(sIt)}, {s(sLim)}
        s_cselect_b32 {s(sSP+2)}, {s(sSP+2)}, 0''')
    if par:
        e(f'''s_add_u32 {s(sIt)}, {s(sIt)}, 1
        s_cmp_eq_u32 {s(sIt)}, 14
        s_cbranch_scc1 k2_misc
        k2_go:
        s_cmp_lt_u32 {s(sIt)}, 16''')
    e(rd(GBb,vB1,n)); ex(SB,13,16)
PRI=os.environ.get('PRI','1')
def pp(e,par,grp):
    c=par*32768; n=(1-par)*32768; dp=1-par
    hi=f's_setprio {PRI}'; lo='s_setprio 0'
    def ex(S):
        for r in range(16): e(f'v_exp_f32 {v(S+r)}, {v(S+r)}')
    bar='s_waitcnt vmcnt(4)\ns_barrier'
    if grp: e(bar)
    ex(SA)
    if par:
        for r in (vK,vR,vB0): e(f'v_xor_b32 {v(r)}, 0x10000, {v(r)}')
    if not grp: e(bar)
    e('s_waitcnt lgkmcnt(2)')
    e(mf(SB,KM,QM+4,'0')); e(hi)
    e(mf8(SB,KR,QR+2)); e(rd(KM,vK,n)); e(f'ds_read_b64 {v(KR,2)}, {v(vR)} offset:{n}')
    e(mf(G0,GA0,GBa)); e(rd(GA0,vA,c+LZ+1024)); em(e,dma(0,dp))
    e(mf(G1,GA1,GBa)); e('s_waitcnt lgkmcnt(3)'); e(rd(GA1,vA,c+LZ+4096+1024)); e(rd(GBa,vB1,c))
    e(pv(O0,V0,SA)); em(e,dma(1,dp),f's_add_u32 {s(sKV)}, {s(sKV)}, {SS}')
    e(pv(O0,V1,SA+8)); e(lo)
    ex(SB)
    if par:
        for r in (vA,vB1): e(f'v_xor_b32 {v(r)}, 0x10000, {v(r)}')
    e('s_waitcnt lgkmcnt(0)')
    e(mf(SA,KM,QM,'0')); e(hi); em(e,dma(2,dp))
    e(mf8(SA,KR,QR)); em(e,dma(3,dp))
    e(mf(G0,GA0,GBa)); e(rd(GA0,vA,n+LZ))
    if dp:
        e(f'''s_xor_b32 {s(sMk)}, {s(sMk)}, 0x10000
        s_xor_b32 {s(sMz)}, {s(sMz)}, 0x10000
        s_xor_b32 {s(sMw)}, {s(sMw)}, 0x10000''')
    e(mf(G1,GA1,GBa)); e(rd(GA1,vA,n+LZ+4096)); e(rd(GBa,vB0,n))
    if dp:
        e(f'''s_cmp_lt_u32 {s(sIt)}, 14
        s_cselect_b32 {s(sDM+2)}, {s(sDM+2)}, 0
        s_cmp_lt_u32 {s(sIt)}, {s(sLim)}
        s_cselect_b32 {s(sSP+2)}, {s(sSP+2)}, 0''')
    e(pv(O1,V0,SB)); e(rd(V0,vA,n+2048))
    if par:
        e(f'''s_add_u32 {s(sIt)}, {s(sIt)}, 1
        s_cmp_eq_u32 {s(sIt)}, 14
        s_cbranch_scc1 k2_misc
        k2_go{grp}:
        s_cmp_lt_u32 {s(sIt)}, 16''')
    e(pv(O1,V1,SB+8)); e(rd(V1,vA,n+3072)); e(lo)
def build(stamp_f):
    e=A(); stamp=lambda i: stamp_f(e,i)
    e(f'''s_cmp_ge_u32 s2, 256
    s_cbranch_scc1 k2_end
    s_load_dwordx2 {s(sWS,2)}, s[0:1], 80
    s_load_dwordx2 {s(sDM,2)}, s[0:1], 80
    s_load_dwordx2 {s(sSP,2)}, s[0:1], 40
    s_load_dwordx2 {s(sBS,2)}, s[0:1], 48
    v_lshrrev_b32 v1, 6, v0
    v_and_b32 v0, 63, v0
    v_readfirstlane_b32 {s(sW)}, v1''')
    stamp(0)
    srd(e,sWS,WSZ); srd(e,sDM,WSZ); srd(e,sSP,2048*4096); srd(e,sBS,4096)
    e(f'''s_and_b32 {s(sWq)}, {s(sW)}, 3
    s_lshr_b32 {s(sKh)}, {s(sW)}, 2
    s_and_b32 {s(sH)}, s2, 7
    s_lshl_b32 {s(sH)}, {s(sH)}, 2
    s_lshr_b32 {s(sT0)}, s2, 6
    s_add_u32 {s(sH)}, {s(sH)}, {s(sT0)}
    s_bfe_u32 {s(sQB)}, s2, 0x30003
    s_lshl_b32 {s(sQB)}, {s(sQB)}, 2
    s_add_u32 {s(sQB)}, {s(sQB)}, {s(sWq)}
    s_bfe_u32 {s(sTB)}, s2, 0x20001
    s_lshl_b32 {s(sTB)}, {s(sTB)}, 2
    s_bfe_u32 {s(sT0)}, s2, 0x20003
    s_add_u32 {s(sTB)}, {s(sTB)}, {s(sT0)}
    s_lshr_b32 {s(sSl)}, s2, 5
    s_min_u32 {s(sFB)}, {s(sSl)}, 6
    s_and_b32 {s(sT0)}, s2, 1
    s_mul_i32 {s(sT0)}, {s(sT0)}, 7
    s_add_u32 {s(sFB)}, {s(sFB)}, {s(sT0)}
    s_mul_i32 {s(sT2)}, {s(sH)}, {HS}
    s_min_u32 {s(sMk)}, {s(sW)}, 6
    s_lshl_b32 {s(sMk)}, {s(sMk)}, 10
    s_add_u32 {s(sKV)}, {s(sT2)}, {s(sMk)}
    s_lshl_b32 {s(sZ)}, {s(sFB)}, 1
    s_add_u32 {s(sZ)}, {s(sZ)}, {s(sKh)}
    s_min_u32 {s(sZ)}, {s(sZ)}, 26
    s_lshl_b32 {s(sZ)}, {s(sZ)}, 7
    s_add_u32 {s(sZ)}, {s(sZ)}, {s(sWq)}
    s_lshl_b32 {s(sZ)}, {s(sZ)}, 10
    s_add_u32 {s(sZ)}, {s(sZ)}, {Z2T}
    s_lshl_b32 {s(sMz)}, {s(sW)}, 10
    s_lshl_b32 {s(sMw)}, {s(sMz)}, 1
    s_add_u32 {s(sMz)}, {s(sMz)}, {LZ}
    s_add_u32 {s(sMw)}, {s(sMw)}, {LW}
    s_lshl_b32 {s(sSo)}, {s(sTB)}, 3
    s_add_u32 {s(sSo)}, {s(sSo)}, {s(sW)}
    s_lshl_b32 {s(sSo)}, {s(sSo)}, 16
    s_mul_i32 {s(sT0)}, {s(sQB)}, {SS}
    s_add_u32 {s(sT0)}, {s(sT0)}, {s(sT2)}
    s_add_u32 {s(sT0)}, {s(sT0)}, {QS}
    s_add_u32 {s(sT1)}, {s(sT0)}, 6144
    v_lshlrev_b32 {v(vL16)}, 4, v0
    v_lshrrev_b32 v12, 3, v0
    v_lshrrev_b32 v13, 4, v0
    v_and_b32 v14, 7, v0
    v_xor_b32 v13, v13, v14
    v_lshlrev_b32 v13, 4, v13
    v_lshl_add_u32 {v(vDW0)}, v12, 12, v13
    v_xor_b32 {v(vDW1)}, 0x8040, {v(vDW0)}
    s_mov_b32 {s(sSt)}, 128
    s_mov_b32 {s(sLim)}, {17-LEAD}
    s_cmp_lt_u32 s2, {224 if NPF else 999}
    s_cbranch_scc1 k2_np
    s_sub_u32 {s(sSo)}, s2, 224
    s_lshl_b32 {s(sSo)}, {s(sSo)}, 3
    s_add_u32 {s(sSo)}, {s(sSo)}, {s(sW)}
    s_lshl_b32 {s(sSo)}, {s(sSo)}, 15
    s_add_u32 {s(sSo)}, {s(sSo)}, 512
    s_mov_b32 {s(sSt)}, 256
    s_mov_b32 {s(sLim)}, {5 if LEAD==3 else 4}
    s_mov_b32 {s(sZ)}, 0xf0000000
    v_add_u32 {v(vDW1)}, 128, {v(vDW0)}
    k2_np:
    v_and_b32 v12, 31, v0
    v_lshrrev_b32 v13, 5, v0
    v_lshlrev_b32 {v(vR)}, 3, v12
    v_lshl_add_u32 {v(vT)}, v13, 30, {v(vR)}
    s_waitcnt lgkmcnt(0)''')
    stamp(4)
    for j in range(4): em(e,dma(j,0))
    for i in (0,1):
        e(f'buffer_load_dwordx4 {v(QM+4*i,4)}, {v(vL16)}, {s(sWS,4)}, {s(sT0)} offen offset:{1024*i}')
        e(f'buffer_load_dwordx2 {v(QR+2*i,2)}, {v(vT)}, {s(sWS,4)}, {s(sT1)} offen offset:{256*i}')
    def pst(st):
        for j in range(4): em(e,dma(j,st),f's_add_u32 {s(sKV)}, {s(sKV)}, {SS}' if j==1 else 's_nop 0')
    pst(1)
    e(f'''s_lshl_b32 {s(sT0)}, {s(sKh)}, 10
    v_add_u32 {v(vK)}, {s(sT0)}, {v(vL16)}
    v_add_u32 {v(vA)}, {s(sT0)}, {v(vK)}
    s_lshl_b32 {s(sT0)}, {s(sKh)}, 8
    s_add_u32 {s(sT0)}, {s(sT0)}, 6144
    v_add_u32 {v(vR)}, {s(sT0)}, {v(vR)}
    s_lshl_b32 {s(sT0)}, {s(sKh)}, 2
    v_add_u32 v13, {s(sT0)}, v13
    v_bfe_u32 v14, v0, 1, 3
    v_xor_b32 v13, v13, v14
    v_lshlrev_b32 v13, 4, v13
    v_lshl_add_u32 v13, v12, 7, v13
    s_lshl_b32 {s(sT0)}, {s(sWq)}, 12
    s_add_u32 {s(sT0)}, {s(sT0)}, {LW}
    v_add_u32 {v(vB0)}, {s(sT0)}, v13
    v_xor_b32 {v(vB1)}, 32, {v(vB0)}
    v_mov_b32 {v(vIdx)}, 0xdddddddd
    s_mov_b32 {s(sIt)}, 0''')
    for r in range(O0,G1+16): e(f'v_mov_b32 {v(r)}, 0')
    stamp(5); e('s_waitcnt vmcnt(4)'); stamp(6); e('s_barrier'); stamp(1)
    e([rd(KM,vK,0),f'ds_read_b64 {v(KR,2)}, {v(vR)}',rd(GBa,vB0,0),rd(GA1,vA,LZ+4096),rd(GA0,vA,LZ),rd(V0,vA,2048),rd(V1,vA,3072)])
    e('s_waitcnt lgkmcnt(2)'); e(mf(SA,KM,QM,'0')); e(mf8(SA,KR,QR))
    for st in range(2,LEAD): pst(st)
    if LEAD==3:
        for r in (sMk,sMz,sMw): e(f's_xor_b32 {s(r)}, {s(r)}, 0x10000')
    stamp(7)
    e(f's_cmp_eq_u32 {s(sKh)}, 0\ns_cbranch_scc0 k2b_loop\n.p2align 6\nk2a_loop:')
    n0=len(e.l); pp(e,0,0); pp(e,1,0); e('s_cbranch_scc1 k2a_loop\ns_branch k2_done\n.p2align 6\nk2b_loop:'); pp(e,0,1); pp(e,1,1)
    ABL=os.environ.get('ABL','')
    def drop(x):
        if 'g' in ABL and x.startswith('v_mfma_f32_32x32x16') and (v(G0,16) in x or v(G1,16) in x): return True
        if 'p' in ABL and 'smfmac' in x: return True
        if 'r' in ABL and '32x32x8' in x: return True
        if 'e' in ABL and 'v_exp' in x: return True
        if 'l' in ABL and x.startswith('ds_read') and any(v(r,4) in x for r in (GA0,GA1,GA2,GBa,GBb)): return True
        if 'b' in ABL and x=='s_barrier': return True
        if 'D' in ABL and x.endswith(' lds'): return True
        if 'M' in ABL and (x.startswith('s_add_u32') and s(sIt) not in x): return True
        if 'L' in ABL and x.startswith('ds_read'): return True
        if 'W' in ABL and x.startswith('s_waitcnt'): return True
        return False
    e.l[n0:]=[x for x in e.l[n0:] if not drop(x)]
    if 'S' in ABL or 'T' in ABL:
        import re
        L=e.l[n0:]; o=[]; pend=None; cnt={}
        for x in L:
            m=re.match(r'v_(s?mfma c?|mfma|smfmac)_f32_(32x32x\d+)_bf16 v\[(\d+):\d+\], v\[(\d+):\d+\], v\[(\d+):',x)
            if m:
                D,Aa,B=int(m[3]),int(m[4]),int(m[5])
                if D in (G0,G1):
                    if 'T' in ABL: o.append(x); continue
                    c=cnt.get(D,0); cnt[D]=c^8
                    p=[f'v_mfma_f32_16x16x32_bf16 {v(D+c+4*j,4)}, {v(Aa,4)}, {v((GBa,GBb)[j],4)}, {v(D+c+4*j,4)}' for j in (0,1)]
                elif D in (SA,SB):
                    c=8 if m[2]=='32x32x8' else 0
                    p=[f'v_mfma_f32_16x16x32_bf16 {v(D+c+4*j,4)}, {v((KM,GA2)[j],4)}, {v(QM+c//2,4)}, 0' for j in (0,1)]
                else:
                    c=B%16
                    p=[f'v_smfmac_f32_16x16x64_bf16 {v(D+c+4*j,4)}, {v((V0,V1)[j],4)}, {v(B,8)}, {v(vIdx)}' for j in (0,1)]
                o.append(p[0]); pend=p[1]
            else:
                o.append(x)
                if pend and 'v_exp' in x: o.append(pend); pend=None
        e.l[n0:]=o
    if 'P' in ABL: e.l.insert(n0-2,f's_cmp_eq_u32 {s(sKh)}, 0'); e.l.insert(n0-1,'s_cbranch_scc1 k2_pp'); e.l.insert(n0,'s_setprio 1'); e.l.insert(n0+1,'k2_pp:')
    if 'd' in ABL: e.l.insert(n0-2,f's_mov_b32 {s(sSP+2)}, 0'); e.l.insert(n0-2,f's_mov_b32 {s(sDM+2)}, 0')
    e('s_cbranch_scc1 k2b_loop\nk2_done:'); stamp(2)
    e(f'''s_lshl_b32 {s(sT0)}, {s(sW)}, 13
    v_add_u32 v12, {s(sT0)}, {v(vL16)}
    v_xor_b32 v13, 0x8000, v12
    s_waitcnt vmcnt(0) lgkmcnt(0)
    s_barrier
    s_cmp_eq_u32 {s(sKh)}, 0
    s_cbranch_scc0 k2_hi''')
    for j in range(8): e(f'ds_write_b128 v12, {v(G0+4*j,4)} offset:{1024*j}')
    e('s_waitcnt lgkmcnt(0)\ns_barrier')
    for j in range(8): e(rd(EX+4*j,13,1024*j))
    e(f'''s_lshl_b32 {s(sT0)}, {s(sH)}, 5
    s_add_u32 {s(sT0)}, {s(sT0)}, {s(sQB)}
    s_lshl_b32 {s(sT0)}, {s(sT0)}, 11
    s_add_u32 {s(sU0)}, {s(sT0)}, {ACT}
    s_lshr_b32 {s(sT0)}, {s(sH)}, 2
    s_lshl_b32 {s(sT0)}, {s(sT0)}, 5
    s_add_u32 {s(sT0)}, {s(sT0)}, {s(sQB)}
    s_lshl_b32 {s(sT0)}, {s(sT0)}, 11
    s_bfe_u32 {s(sT1)}, {s(sH)}, 0x10001
    s_lshl_b32 {s(sT1)}, {s(sT1)}, 9
    s_add_u32 {s(sT0)}, {s(sT0)}, {s(sT1)}
    s_and_b32 {s(sT1)}, {s(sH)}, 1
    s_lshl_b32 {s(sT1)}, {s(sT1)}, 3
    s_add_u32 {s(sT0)}, {s(sT0)}, {s(sT1)}
    s_add_u32 {s(sU1)}, {s(sT0)}, {ACT+32*65536}
    s_mov_b32 s50, {fl(2.0**-64)}
    s_mov_b32 s51, {fl(2.0**64)}''')
    for i in (0,1):
        e(f's_waitcnt lgkmcnt({4-4*i})')
        for r in range(13): e(f'v_add_f32 {v(O0+16*i+r)}, {v(O0+16*i+r)}, {v(EX+16*i+r)}')
    e(f'''v_cmp_le_f32 s[52:53], s50, {v(O0+12)}
    v_cmp_ge_f32 s[54:55], s51, {v(O0+12)}
    v_cmp_le_f32 s[56:57], s50, {v(O1+12)}
    v_cmp_ge_f32 s[58:59], s51, {v(O1+12)}
    s_and_b64 s[52:53], s[52:53], s[54:55]
    s_and_b64 s[56:57], s[56:57], s[58:59]
    s_and_b64 s[52:53], s[52:53], s[56:57]
    s_andn2_b64 s[52:53], exec, s[52:53]
    {'s_cbranch_scc1 k2_slow' if not os.environ.get('ABL') else ''}
    k2_ofin:
    v_rcp_f32 v14, {v(O0+12)}
    v_rcp_f32 v15, {v(O1+12)}
    v_lshlrev_b32 {v(vT)}, 1, {v(vT)}''')
    for i in (0,1):
        O=O0+16*i
        for r in range(12): e(f'v_mul_f32 {v(O+r)}, {v(O+r)}, {v(14+i)}')
        for r in range(6): e(f'v_cvt_pk_bf16_f32 {v(O+r)}, {v(O+2*r)}, {v(O+2*r+1)}')
        e(f'buffer_store_dwordx4 {v(O,4)}, {v(vL16)}, {s(sWS,4)}, {s(sU0)} offen offset:{1024*i}')
        e(f'buffer_store_dwordx2 {v(O+4,2)}, {v(vT)}, {s(sWS,4)}, {s(sU1)} offen offset:{1024*i}')
    e('s_branch k2_fin')
    e('k2_hi:\ns_nop 4')
    for j in range(8): e(f'ds_write_b128 v12, {v(O0+4*j,4)} offset:{1024*j}')
    e(f'v_lshlrev_b32 {v(vBs)}, 16, {v(vBs)}')
    for r in range(32): e(f'v_add_f32 {v(G0+r)}, {v(G0+r)}, {v(vBs)}')
    e('s_waitcnt lgkmcnt(0)\ns_barrier')
    for j in range(8): e(rd(EX+4*j,13,1024*j))
    for r in range(16): e(f'v_lshlrev_b32 {v(SA+2*r)}, 16, {v(Z+r)}\nv_and_b32 {v(SA+2*r+1)}, 0xffff0000, {v(Z+r)}')
    for j in range(4):
        e(f's_waitcnt lgkmcnt({6-2*j})\ns_add_u32 {s(sT0)}, {s(sU0+(j>>1))}, {ACT+40*65536+65536*(j&1)}')
        for r in range(8*j,8*j+8): e(f'v_add_f32 {v(G0+r)}, {v(G0+r)}, {v(EX+r)}')
        for r in range(8*j,8*j+8): e(f'v_mul_f32 {v(G0+r)}, {v(G0+r)}, {v(SA+r)}')
        for r in range(4): e(f'v_cvt_pk_bf16_f32 {v(G0+8*j+r)}, {v(G0+8*j+2*r)}, {v(G0+8*j+2*r+1)}')
        e(f'buffer_store_dwordx4 {v(G0+8*j,4)}, {v(vL16)}, {s(sWS,4)}, {s(sT0)} offen')
    e('k2_fin:'); stamp(3); stamp(-1)
    e('k2_end:\ns_endpgm')
    e(f'''k2_misc:
    v_and_b32 v12, 31, v0
    v_lshrrev_b32 v13, 5, v0
    s_lshl_b32 {s(sTB)}, {s(sTB)}, 2
    s_add_u32 {s(sTB)}, {s(sTB)}, {s(sWq)}
    s_mov_b32 {s(sUn)}, -1
    s_cmp_eq_u32 {s(sKh)}, 0
    s_cbranch_scc1 k2_lo
    s_lshl_b32 {s(sU0)}, {s(sFB)}, 8
    s_add_u32 {s(sU0)}, {s(sU0)}, {s(sTB)}
    s_lshl_b32 {s(sU0)}, {s(sU0)}, 10
    s_add_u32 {s(sU1)}, {s(sU0)}, 131072
    s_cmp_eq_u32 {s(sFB)}, 13
    s_cselect_b32 {s(sU1)}, 0xf0000000, {s(sU1)}
    s_cmp_eq_u32 {s(sSl)}, 7
    s_cselect_b32 {s(sU0)}, 0xf0000000, {s(sU0)}
    s_cselect_b32 {s(sU1)}, 0xf0000000, {s(sU1)}
    s_lshl_b32 {s(sT1)}, {s(sTB)}, 6
    v_lshlrev_b32 v14, 1, v12
    buffer_load_ushort {v(vBs)}, v14, {s(sBS,4)}, {s(sT1)} offen''')
    for j in range(4): e(f's_add_u32 {s(sT0)}, {s(sU0+(j>>1))}, {Z1+65536*(j&1)}\nbuffer_load_dwordx4 {v(Z+4*j,4)}, {v(vL16)}, {s(sWS,4)}, {s(sT0)} offen')
    e(f'''s_branch k2_go1
    k2_lo:
    s_branch k2_go0''')
    e(f'''k2_slow:
    v_and_b32 v12, 31, v0
    v_lshlrev_b32 v12, 3, v12
    v_mov_b32 v14, 0xff800000
    v_mov_b32 v15, 0xff800000''')
    for ps in (0,1):
        e(f'''s_mov_b32 {s(sIt)}, 0
        k2_sl{ps}:
        s_lshr_b32 {s(sT0)}, {s(sIt)}, 1
        s_mul_i32 {s(sT0)}, {s(sT0)}, {SS}
        s_add_u32 {s(sT0)}, {s(sT0)}, {s(sT2)}
        s_and_b32 {s(sT1)}, {s(sIt)}, 1
        s_lshl_b32 s50, {s(sT1)}, 8
        s_add_u32 s50, s50, {s(sT0)}
        s_add_u32 s50, s50, 6144
        s_lshl_b32 {s(sT1)}, {s(sT1)}, 10
        s_add_u32 {s(sT0)}, {s(sT0)}, {s(sT1)}
        s_add_u32 {s(sT1)}, {s(sT0)}, {s(sT1)}
        buffer_load_dwordx4 {v(KM,4)}, {v(vL16)}, {s(sWS,4)}, {s(sT0)} offen
        buffer_load_dwordx2 {v(KR,2)}, v12, {s(sWS,4)}, s50 offen
        buffer_load_dwordx4 {v(V0,4)}, {v(vL16)}, {s(sWS,4)}, {s(sT1)} offen offset:2048
        buffer_load_dwordx4 {v(V1,4)}, {v(vL16)}, {s(sWS,4)}, {s(sT1)} offen offset:3072
        s_waitcnt vmcnt(0)''')
        for i in (0,1): e(mf(SA+16*i,KM,QM+4*i,v(G0+16*i,16) if ps else '0')); e(mf8(SA+16*i,KR,QR+2*i))
        e('s_nop 11')
        for r in range(32): e(f'v_exp_f32 {v(SA+r)}, {v(SA+r)}' if ps else f'v_max_f32 {v(14+r//16)}, {v(14+r//16)}, {v(SA+r)}')
        if ps:
            e('s_nop 1')
            for i in (0,1): e(pv(O0+16*i,V0,SA+16*i)); e(pv(O0+16*i,V1,SA+16*i+8))
        e(f's_add_u32 {s(sIt)}, {s(sIt)}, 1\ns_cmp_lt_u32 {s(sIt)}, 64\ns_cbranch_scc1 k2_sl{ps}')
        if ps==0:
            for i in (0,1): e(f'v_mov_b32 v13, {v(14+i)}\ns_nop 1\nv_permlane32_swap_b32 v13, {v(14+i)}\ns_nop 0\nv_max_f32 {v(14+i)}, v13, {v(14+i)}')
            for r in range(32): e(f'v_sub_f32 {v(G0+r)}, 0, {v(14+r//16)}\nv_mov_b32 {v(O0+r)}, 0')
    e('s_nop 11\ns_branch k2_ofin')
    return e
```

```python
import re
class A:
    def __init__(s): s.l=[]
    def __call__(s, t):
        if isinstance(t,(list,tuple)):
            for x in t: s(x)
            return
        for x in t.split('\n'):
            x=x.strip()
            if x: s.l.append(x)
    def text(s): return '\n'.join((x if x.endswith(':') or x.startswith('.') else '    '+x) for x in s.l)+'\n'
def v(i,n=1): return f'v{i}' if n==1 else f'v[{i}:{i+n-1}]'
def a(i,n=1): return f'a{i}' if n==1 else f'a[{i}:{i+n-1}]'
def s(i,n=1): return f's{i}' if n==1 else f's[{i}:{i+n-1}]'
def cost(x):
    op=(x.split() or [''])[0]
    if re.match(r'v_(exp|rcp|rsq|sqrt|log)',op): return 8
    if op.startswith('ds_') or op.startswith('buffer_'): return 8
    if op.endswith(':'): return 0
    return 4
def take(fill,budget):
    out=[]
    while fill and budget>=cost(fill[0]):
        budget-=cost(fill[0]); out.append(fill.pop(0))
    return out
def srd(e,base,nrec):
    e(f's_mov_b32 {s(base+2)}, {nrec}\ns_mov_b32 {s(base+3)}, 0x00020000')
def regs(tok):
    m=re.fullmatch(r'([vas])(\d+)',tok)
    if m: return {(m[1],int(m[2]))}
    m=re.fullmatch(r'([vas])\[(\d+):(\d+)\]',tok)
    if m: return {(m[1],i) for i in range(int(m[2]),int(m[3])+1)}
    if tok in('vcc','exec','m0'): return {(tok,0)}
    return set()
def parse(x):
    x=x.split(';')[0].strip()
    p=x.split(None,1); op=p[0]
    toks=[t.strip().lstrip('-').strip('|') for t in (p[1] if len(p)>1 else '').split(',')]
    if toks: toks=toks[:-1]+toks[-1].split()
    R=[regs(t) for t in toks]
    d=dict(op=op,w=set(),r=set(),c=set(),k='o')
    if op.startswith('v_mfma') or op.startswith('v_smfmac'):
        d['k']='m'; d['w']=R[0]; d['r']=R[1]|R[2]
        if op.startswith('v_smfmac'): d['c']=R[0]; d['r']|=R[3]
        else: d['c']=R[3]
        d['p']=8 if '32x32' in op else 4
    elif op.startswith('v_'):
        d['k']='v'; d['w']=R[0]; d['r']=set().union(*R[1:]) if len(R)>1 else set()
        if 'swap' in op: d['w']=R[0]|R[1]; d['r']=R[0]|R[1]
        if re.match(r'v_(fmac|mac|dot2c)',op): d['r']|=R[0]
        if op.startswith('v_cndmask') and len(toks)==3: d['r'].add(('vcc',0))
    elif op.startswith('ds_') or op.startswith('buffer_') or op.startswith('global_'):
        d['k']='x'
        ld=('read' in op or 'load' in op) and 'lds' not in toks
        if ld: d['w']=R[0]; d['r']=set().union(*R[1:])
        else: d['r']=set().union(*R)
        if 'lds' in toks: d['r'].add(('m0',0))
        d['st']=R[0] if ('store_dwordx4' in op or 'store_dwordx3' in op) else set()
    elif op.startswith('s_'):
        d['k']='s'
        if not re.match(r's_(cmp|cbranch|branch|waitcnt|barrier|nop|endpgm|setprio|bitcmp)',op): d['w']=R[0]
        d['r']=set().union(*R[1:]) if len(R)>1 else set()
    d['n']=int(toks[0],0)+1 if op=='s_nop' else 1
    return d
def check(lines):
    I=[(x,parse(x)) for x in lines if not x.endswith(':') and not x.startswith('.') and not x.startswith(';')]
    bad=0
    for i,(x,c) in enumerate(I):
        dist=0
        for j in range(i-1,max(-1,i-22),-1):
            y,p=I[j]
            if p['op'] in('s_branch','s_endpgm'): break
            need=0
            V=lambda S:{r for r in S if r[0] in 'va' and len(r[0])==1}
            SG=lambda S:{r for r in S if r[0] in('s','vcc')}
            if p['k']=='m':
                big=12 if p['p']==8 else 8
                if c['k'] in 'vx' and p['w']&(c['r']|c['w']): need=big
                if c['k']=='m':
                    if p['w']&c['r']: need=big
                    elif p['w']&c['c'] and not(p['w']==c['c'] and p['p']==c['p']): need=big-2
                if c['k']=='v' and p['c']&c['w']: need=max(need,p['p']-1)
            if p['k']=='v':
                if c['k']=='m' and V(p['w'])&(c['r']|c['c']): need=2
                if c['k']=='v' and cost(y)==8 and p['w']&c['r']: need=1
                if c['k']=='v' and 'dot2' in p['op'] and p['w']&(c['r']|c['w']) and c['op']!=p['op']: need=3
                if c['k']=='v' and SG(p['w'])&c['r']: need=2
                if c['k']=='x' and SG(p['w'])&c['r']: need=5
                if c['k']=='v' and ('permlane' in c['op'] or 'dpp' in x or 'row_' in x) and p['w']&c['r']: need=2
                if c['k']=='v' and re.match(r'v_read(first)?lane',c['op']) and V(p['w'])&c['r']: need=max(need,1)
            if p['k']=='s' and ('m0',0) in p['w'] and c['k']=='x' and ('m0',0) in c['r']: need=1
            if p['k']=='x' and c['k']=='v' and p['st']&c['w']: need=2
            if dist<need:
                bad<4 and print(f'HAZARD need {need} have {dist}: [{y}] -> [{x}]'); bad+=1
            dist+=p['n']
    return bad
def kernel(name,body,nv,acc):
    code=f'.globl {name}\n.p2align 8\n.type {name},@function\n{name}:\n'+body.text()
    kd=f'''.p2align 6
.amdhsa_kernel {name}
  .amdhsa_next_free_vgpr {nv}
  .amdhsa_next_free_sgpr 102
  .amdhsa_accum_offset {acc}
  .amdhsa_group_segment_fixed_size 0
  .amdhsa_kernarg_size 88
  .amdhsa_user_sgpr_count 2
  .amdhsa_user_sgpr_kernarg_segment_ptr 1
  .amdhsa_system_sgpr_workgroup_id_x 1
.end_amdhsa_kernel
'''
    return code,kd
TL=48*1024; SS=6656; HS=32*SS
KV=0; QS=0x700000; Z1=0xE00000; Z2T=0x1200000; ACT=0x1600000; WF=0x1C00000; ST=0x1E00000; WSZ=0x2000000

import struct
def fl(x): return hex(struct.unpack('<I',struct.pack('<f',x))[0])
TS=0x1F00000
def mkstamp(on,k,sWS,sW):
    def f(e,i):
        if not on: return
        if i>=0:
            e(f's_memtime {s(76+2*i if i<8 else 66+2*(i-8),2)}')
            if i==0: e('s_memrealtime s[92:93]')
            return
        e(f'''s_waitcnt vmcnt(0)
        s_memrealtime s[94:95]
        s_memtime s[96:97]
        s_lshl_b32 s3, s2, 3
        s_add_u32 s3, s3, {s(sW)}
        s_lshl_b32 s3, s3, 6
        s_add_u32 s3, s3, {TS+k*0x40000}
        s_waitcnt lgkmcnt(0)''')
        for j in range(16): e(f'v_mov_b32 v2, {s(76+2*j if j<11 else 66+2*(j-11))}\nbuffer_store_dword v2, off, {s(sWS,4)}, s3 offset:{4*j}')
    return f
```

```python
from lib import *
import os
PFO=os.environ.get('PFO','xis')
sX,sWQ,sWI,sWS,sDB=4,8,12,16,20
sW,sRB,sA,sLW,sT0,sT1,sOff,sDel,sIt,sN2,sLine,sZa,sZb,sCi,sB0,sB1,sQB,sTy,sZ2a,sZ2b,sSc=range(24,45)
sStR,sNon,sNN,sUn,sPf,sLn=47,48,49,50,51,45
vL16,vZ0,vZ1,vQM,vQR,vD,vDZ,vStd,vRstd,vK1,vK2=1,2,3,4,5,6,11,12,13,14,15
T=16; TMP=48; PK=64; X=96
FR=0; AQ=64; ASV=144
SC=os.environ.get('SC',' sc1')
OOR='0xf0000000'
DPF=5; DB=8; BB=int(os.environ.get('BB','18')); BL=int(os.environ.get('BL','18')); PAYAT=int(os.environ.get('PAYAT','14'))
vNon=92
def dmaZ(slot,i,base):
    return [f's_add_u32 m0, {s(sLW)}, {slot}' if isinstance(slot,str) and i==0 else (f's_add_u32 m0, m0, 1024' if i else f's_add_u32 m0, {s(sLW)}, {slot*40960}'),
            f's_add_u32 {s(sOff)}, {s(base)}, {i*8*3456}',
            f'buffer_load_dwordx4 {v(vDZ)}, {s(sWI,4)}, {s(sOff)} offen lds']
def dmaQ(slot,i,q):
    return [f's_add_u32 m0, m0, 1024' if i else f's_add_u32 m0, {s(sLW)}, {slot*40960}',
            f's_add_u32 {s(sOff)}, {s(sQB)}, {(128*q+16*(i//5))*3840}',
            f'buffer_load_dwordx4 {v(vD+i%5)}, {s(sWQ,4)}, {s(sOff)} offen lds']
def rdT(t,m):
    return [f'ds_read_b64_tr_b16 {a(FR+4*(m%8)+2*r,2)}, {v(vZ0+t)} offset:{(m%20)*2048+r*512}' for r in (0,1)]
def rdQ(m,kk=None,p=None,b=0):
    if kk is None: kk,p=divmod(m%40,5)
    return [f'ds_read_b64_tr_b16 {a(FR+4*(m%8)+2*r,2)}, {v((vQM if p<4 else vQR)+b)} offset:{kk*5120+r*1280+(40*p if p<4 else 0)}' for r in (0,1)]
class DQ:
    def __init__(q): q.items=[]; q.n=0; q.last={}
    def add(q,tag,f,n):
        for i in range(n): q.items.append((tag,f(i)))
    def pop(q,maxtag=99):
        if not q.items or (isinstance(q.items[0][0],int) and q.items[0][0]>maxtag): return []
        t,i=q.items.pop(0); q.last[t]=q.n; q.n+=1; return i
    def vm(q,tag):
        assert all(t!=tag for t,_ in q.items), tag
        return min(63,q.n-1-q.last[tag])
def flush(e,f):
    for x in f:
        if isinstance(x,tuple): e('s_waitcnt lgkmcnt(0)' if x[0]=='+' else 's_nop 7')
        else: e(x(e) if callable(x) else x)
    del f[:]
def phase(e,N,mf,rdf,ev,q=None,gate=None,fill=None,bud=16):
    carry=0; hold=0
    for n in range(N):
        e(mf(n)); vm,ex=ev.get(n,(None,[]))
        if isinstance(vm,tuple): vm=q.vm(vm[0])
        e(f's_waitcnt lgkmcnt({2*(DPF-2)})' if vm is None else f's_waitcnt vmcnt({vm}) lgkmcnt({2*(DPF-2)})\ns_barrier')
        e(ex)
        g=gate(n) if gate else None
        d=q.pop(g) if g is not None else []
        e(d[:2]); e(rdf(n+DPF)); e(d[2:])
        carry=min(carry,8)+bud-(DB if d else 0)
        while fill and n>=hold:
            x=fill[0]
            if isinstance(x,tuple): hold=x[1] if x[0]=='@' else n+x[1]; (fill.pop(0) if hold<N else None); continue
            c=4 if callable(x) else sum(cost(y) for y in x.split('\n'))
            if c>carry and carry<bud: break
            fill.pop(0); carry-=c; e(x(e) if callable(x) else x)
def mfT(t): return lambda n: f'v_mfma_f32_32x32x16_bf16 {v(T+16*t,16)}, {a(FR+4*(n%8),4)}, {v(X+4*n,4)}, '+('0' if n==0 else v(T+16*t,16))
def mfQ(q):
    return lambda n: f'v_mfma_f32_32x32x16_bf16 {a(AQ+16*(n%5),16)}, {a(FR+4*(n%8),4)}, {v(X+4*(8*q+n//5),4)}, '+('0' if q==0 and n<5 else a(AQ+16*(n%5),16))
def gelu(tl,z=None):
    f=[('@',3)]
    for p in range(8*tl,8*tl+8):
        r=(T+2*p,T+2*p+1); t=(TMP,TMP+1)
        for op in ('v_mul_f32 {t}, {r}, {r}','v_fma_f32 {t}, {t}, {k2}, {k1}','v_mul_f32 {t}, {t}, {r}','v_exp_f32 {t}, {t}',
                   'v_fma_f32 {t}, {t}, {sd}, {sd}','v_rcp_f32 {t}, {t}','v_mul_f32 {r}, {r}, {t}'):
            for j in (0,1): f.append(op.format(t=v(t[j]),r=v(r[j]),k1=v(vK1),k2=v(vK2),sd=v(vStd)))
        if z:
            f.append(f'v_cvt_pk_bf16_f32 {v(PK+p)}, {v(r[0])}, {v(r[1])}')
            if p%4==3: f.append(f'buffer_store_dwordx4 {v(PK+p-3,4)}, {v(vL2)}, {s(sWS,4)}, {s(z)} offen offset:{0 if p%8==3 else 512}{SC}')
    return f
S2=TMP+2; vL2=95
def stat1(t,init):
    f=[]
    for r in range(16):
        x=v(T+16*t+r)
        f+=[f'v_mov_b32 {v(S2)}, {x}',f'v_mul_f32 {v(S2+1)}, {x}, {x}'] if init and r==0 else [f'v_add_f32 {v(S2)}, {v(S2)}, {x}',f'v_fma_f32 {v(S2+1)}, {x}, {x}, {v(S2+1)}']
    return f
def publish(lab):
    S=S2
    f=[f'v_mov_b32 {v(S+2)}, {v(S)}', f'v_mov_b32 {v(S+3)}, {v(S+1)}',
        f'v_and_b32 {v(S+4)}, 0x1ff, {v(vL16)}',
        f'''v_readfirstlane_b32 {s(sNon)}, {v(vNon)}
        s_cmp_lg_u32 {s(sNon)}, 0
        s_cbranch_scc0 {lab}_sp
        {lab}_bk:''',
        f'v_permlane32_swap_b32 {v(S)}, {v(S+2)}', f'v_permlane32_swap_b32 {v(S+1)}, {v(S+3)}',
        f's_lshl_b32 {s(sT0)}, {s(sCi)}, 11\ns_add_u32 {s(sT0)}, {s(sT0)}, {s(sStR)}\ns_not_b32 {s(sNN)}, {s(sNon)}',
        f'v_add_f32 {v(S)}, {v(S)}, {v(S+2)}', f'v_add_f32 {v(S+1)}, {v(S+1)}, {v(S+3)}',
        f'v_mov_b32 {v(S+2)}, {s(sNon)}', f'v_mov_b32 {v(S+3)}, {s(sNN)}',
        f'buffer_store_dwordx4 {v(S,4)}, {v(S+4)}, {s(sWS,4)}, {s(sT0)} offen sc1']
    return f
def non_load(): return f's_lshl_b32 {s(sT1)}, {s(sRB)}, 4\nbuffer_load_dword {v(vNon)}, off, {s(sDB,4)}, {s(sT1)} sc1'
def non_spin(lab):
    return f'''{lab}_sp:
    s_mov_b32 s46, 0x100000
    {lab}_s2:
    {non_load()}
    s_waitcnt vmcnt(0)
    v_readfirstlane_b32 {s(sNon)}, {v(vNon)}
    s_cmp_lg_u32 {s(sNon)}, 0
    s_cbranch_scc1 {lab}_bk
    s_sub_u32 s46, s46, 1
    s_cbranch_scc0 {lab}_s2
    s_branch {lab}_bk'''
PV=TMP+9; PL=160
def pay_addr(): return [f'v_lshrrev_b32 {v(PV)}, 5, v0',f'v_mul_u32_u24 {v(PV)}, {7*2048-512}, {v(PV)}',f'v_add_u32 {v(PV)}, {v(vL16)}, {v(PV)}']
def pay_load():
    return [(f's_add_u32 {s(sT1)}, {s(sStR)}, {j*2048}\n' if j%2==0 else '')+f'buffer_load_dwordx4 {v(PL+4*j,4)}, {v(PV)}, {s(sWS,4)}, {s(sT1)} offen offset:{(j&1)*2048} sc1' for j in range(7)]
def bf(r): return f'v_cvt_pk_bf16_f32 {v(r)}, {v(r)}, {v(r)}\nv_lshlrev_b32 {v(r)}, 16, {v(r)}'
def meanstd(e,S,n):
    e(f'''v_mov_b32 {v(S+2)}, {v(S)}
    v_mov_b32 {v(S+3)}, {v(S+1)}
    s_nop 1
    v_permlane32_swap_b32 {v(S)}, {v(S+2)}
    v_permlane32_swap_b32 {v(S+1)}, {v(S+3)}
    s_nop 0
    v_add_f32 {v(S)}, {v(S)}, {v(S+2)}
    v_add_f32 {v(S+1)}, {v(S+1)}, {v(S+3)}
    v_mul_f32 {v(S)}, {fl(1.0/n)}, {v(S)}
    v_mul_f32 {v(S+1)}, {fl(1.0/n)}, {v(S+1)}
    v_fma_f32 {v(S+1)}, -{v(S)}, {v(S)}, {v(S+1)}
    v_max_f32 {v(S+1)}, 0, {v(S+1)}
    {bf(S)}
    {bf(S+1)}
    v_add_f32 {v(S+1)}, {fl(1e-5)}, {v(S+1)}
    {bf(S+1)}
    v_sqrt_f32 {v(S+1)}, {v(S+1)}
    s_nop 0
    {bf(S+1)}''')
W=58
def img_addr():
    return f'''v_and_b32 {v(W)}, 31, v0
    v_mul_u32_u24 {v(W)}, 136, {v(W)}
    v_lshrrev_b32 {v(W+1)}, 5, v0
    v_lshl_add_u32 {v(W)}, {v(W+1)}, 3, {v(W)}
    v_add_u32 {v(W)}, {s(sLW)}, {v(W)}
    v_bfe_u32 {v(W+1)}, {v(vZ0)}, 7, 4
    v_mul_u32_u24 {v(W+1)}, 136, {v(W+1)}
    v_and_b32 {v(W+2)}, 63, {v(vZ0)}
    v_add3_u32 {v(W+1)}, {s(sLW)}, {v(W+1)}, {v(W+2)}'''.split('\n')
def chk(): return [f'v_cmp_eq_u64 s[54:55], {s(sNon,2)}, {v(PL+4*j+2,2)}\ns_and_b64 s[56:57], s[54:55], '+('s[56:57]' if j else 'exec') for j in range(7)]
def retry(lab):
    return [f'{lab}_re:','s_mov_b32 s46, 0x100000',f'{lab}_r2:']+pay_load()+['s_waitcnt vmcnt(0)']+chk()+[f's_andn2_b64 s[56:57], exec, s[56:57]\ns_cbranch_scc0 {lab}_got\ns_sub_u32 s46, s46, 1\ns_cbranch_scc0 {lab}_r2\ns_branch {lab}_got']
def z2stat(lab):
    def w(e):
        i=max(j for j,x in enumerate(e.l) if x.startswith(f'buffer_load_dwordx4 {v(PL+24,4)}')); return f's_waitcnt vmcnt({sum(x.startswith("buffer_") for x in e.l[i+1:])})'
    f=[w]+chk()+[f's_andn2_b64 s[56:57], exec, s[56:57]\ns_cbranch_scc1 {lab}_re\n{lab}_got:']
    for j in range(1,7): f+=[f'v_add_f32 {v(PL)}, {v(PL)}, {v(PL+4*j)}',f'v_add_f32 {v(PL+1)}, {v(PL+1)}, {v(PL+4*j+1)}']
    m=A(); meanstd(m,PL,864)
    return f+m.l+[f'v_rcp_f32 {v(PL+1)}, {v(PL+1)}','s_nop 0',f'v_mul_f32 {v(PL)}, {v(PL)}, {v(PL+1)}']
def z2out():
    f=[]
    for j in range(8):
        for r in range(4): f.append(f'v_fma_f32 {v(T+4*j+r)}, {v(T+4*j+r)}, {v(PL+1)}, -{v(PL)}')
        for r in (0,1): f.append(f'v_cvt_pk_bf16_f32 {v(T+4*j+r)}, {v(T+4*j+2*r)}, {v(T+4*j+2*r+1)}')
        f.append(f'ds_write_b64 {v(W)}, {v(T+4*j,2)} offset:{16*j}')
        if j%4==3:
            f+=[f'ds_read_b64_tr_b16 {v(PL+8+2*j-6+4*i+2*r,2)}, {v(W+1)} offset:{i*16*136+r*4*136+16*(j-3)}' for i in (0,1) for r in (0,1)]
    return f,[f'buffer_store_dwordx4 {v(PL+8+8*t+4*i,4)}, {v(vL16)}, {s(sWS,4)}, {s(sZ2a+t)} offen offset:{i*1024}{SC}' for t in (0,1) for i in (0,1)]
def xphase(e,q,stamp,lead):
    XA=16; S=88
    e(f'''v_and_b32 {v(24)}, 31, v0
    v_lshrrev_b32 {v(25)}, 5, v0
    v_and_b32 {v(26)}, 15, v0
    v_xor_b32 {v(26)}, {v(26)}, {v(25)}
    v_lshlrev_b32 {v(26)}, 4, {v(26)}
    v_lshl_add_u32 {v(26)}, {v(24)}, 8, {v(26)}
    v_add_u32 {v(XA)}, {s(sLW)}, {v(26)}
    v_lshrrev_b32 {v(25)}, 3, {v(24)}
    v_mul_u32_u24 {v(25)}, {40960-2048}, {v(25)}
    v_add_u32 {v(25)}, 8192, {v(25)}
    v_mov_b32 {v(27)}, 0x3f803f80''')
    for j in range(1,8): e(f'v_xor_b32 {v(XA+j)}, {32*j}, {v(XA)}')
    for j in range(8): e(f'v_add_u32 {v(32+j)}, {v(25)}, {v(XA+j)}\nv_add_u32 {v(40+j)}, 81920, {v(XA+j)}')
    e(f'''v_lshrrev_b32 v48, 2, v0
    v_lshrrev_b32 v49, 5, v0
    v_xor_b32 v48, v48, v49
    v_and_b32 v48, 1, v48
    v_lshlrev_b32 v48, 4, v48
    v_bfe_u32 v49, v0, 1, 1
    v_bfe_u32 v50, v0, 3, 2
    v_lshl_add_u32 v49, v50, 1, v49
    v_add_u32 v48, v48, v49
    v_and_b32 v49, 1, v0
    v_lshlrev_b32 v49, 4, v49
    v_mov_b32 v50, 0x3f80
    v_lshlrev_b32 v49, v49, v50''')
    for r in range(8): e(f'v_cmp_eq_u32 {s(60+2*r,2)}, {r}, v48')
    for r in range(4): e(f'v_mov_b32 {v(S+r)}, 0')
    for r in range(8): e(f'v_cndmask_b32 {v(80+r)}, 0, v49, {s(60+2*r,2)}')
    def st(p,every):
        for r in range(32):
            if r%every==0: e(q.pop(-1 if p in (4,0,1) else p-2))
            x=v(X+32*p+r); e(f'v_dot2_f32_bf16 {v(S+2*(r&1))}, {x}, v27, {v(S+2*(r&1))}\nv_dot2_f32_bf16 {v(S+1+2*(r&1))}, {x}, {x}, {v(S+1+2*(r&1))}')
    for j in range(8): e(q.pop())
    if 'j' in PFO: e(pf(sWI,17))
    for p in (4,0,1,2,3):
        e(f's_waitcnt vmcnt({q.vm("x%d"%p)})')
        if p==4: stamp(1)
        if p==3: stamp(2)
        for j in range(8): e(f'ds_read_b128 {v(X+32*p+4*j,4)}, {v((32 if p==4 else XA if p<2 else 40)+j)} offset:{40960*(p&1)}')
        if p==4 and lead: e(lead)
        e('s_waitcnt lgkmcnt(0)')
        st(p,4 if p!=3 else 10)
    e(f's_nop 2\nv_add_f32 {v(S)}, {v(S)}, {v(S+2)}\nv_add_f32 {v(S+1)}, {v(S+1)}, {v(S+3)}')
    meanstd(e,S,640)
    e(f'v_rcp_f32 {v(vRstd)}, {v(S+1)}\nv_mov_b32 {v(vStd)}, {v(S+1)}')
    for r in range(16): e(f'v_sub_f32 {v(64+r)}, 0, {v(S)}')
    e(f'''v_mul_f32 {v(vK1)}, {fl(-2.302208198)}, {v(vRstd)}
    v_mul_f32 {v(vK2)}, {v(vRstd)}, {v(vRstd)}
    v_mul_f32 {v(vK2)}, {fl(0.044715)}, {v(vK2)}
    v_mul_f32 {v(vK2)}, {v(vK1)}, {v(vK2)}''')
    for j in range(22):
        for h in (0,1):
            D=16+16*(j%3)
            if j<20: e(f'v_mfma_f32_32x32x16_bf16 {v(D,16)}, {v(80+4*h,4)}, {v(X+8*j+4*h,4)}, {v(64 if h==0 else D,16)}')
            if j<19 and (2*j+h)%5 in (0,2): e(q.pop(3))
            if 'r' in PFO and (j,h)==(9,1): e(pf(sWQ,19))
            if j==19 and h==1:
                e(f's_waitcnt vmcnt({q.vm(0)})\ns_barrier')
                for m in range(DPF): e(rdT(0,m))
            if j<2: e('s_nop 3')
            if j>=2:
                D=16+16*((j-2)%3)+8*h
                for r in range(4): e(f'v_cvt_pk_bf16_f32 {v(X+8*(j-2)+4*h+r)}, {v(D+2*r)}, {v(D+2*r+1)}')
    e(f's_waitcnt lgkmcnt({2*(DPF-1)})'); stamp(3)
def zadd(t,x): return [f'v_add_u32 {v(vZ0+t)}, {x}, {v(vZ0+t)}']
def qadd(x): return [f'v_add_u32 {v(vQM)}, {x}, {v(vQM)}',f'v_add_u32 {v(vQR)}, {x}, {v(vQR)}']
def pf(srd_,n,stride=128):
    return f'''s_mul_i32 {s(sT0)}, {s(sPf)}, {n*stride}
    s_bfm_b64 exec, {n}, 0
    buffer_load_dword v94, v93, {s(srd_,4)}, {s(sT0)} offen
    s_mov_b64 exec, -1'''
def PF1(): return ([pf(sX,20)] if 'x' in PFO else [])+([pf(sWI,17)] if 'i' in PFO else [])+([pf(sWQ,19)] if 'q' in PFO else [])
def PF2():
    return [f'v_lshrrev_b32 v61, 2, v0\nv_mul_u32_u24 v61, {4096-512}, v61\nv_add_u32 v61, v61, v93',pf(52,12,1024).replace('v93','v61'),
    f'''s_mul_i32 {s(sUn)}, {s(sW)}, 192
    s_add_u32 {s(sUn)}, {s(sUn)}, s2
    s_cmp_ge_u32 {s(sUn)}, 470
    s_cbranch_scc1 k1_nou
    s_cmp_lt_u32 {s(sUn)}, 200
    s_cselect_b64 s[52:53], s[56:57], s[58:59]
    s_cselect_b32 s54, 20, 27
    s_mul_i32 s54, s54, 40960
    v_lshrrev_b32 v60, 5, v0
    s_mul_i32 {s(sT0)}, {s(sUn)}, 6554
    s_lshr_b32 {s(sT0)}, {s(sT0)}, 16
    s_mul_i32 {s(sT1)}, {s(sT0)}, 10
    s_sub_u32 {s(sT1)}, {s(sUn)}, {s(sT1)}
    s_mul_i32 s60, {s(sT0)}, 40
    s_mov_b32 s61, 4
    s_mov_b32 s62, 20
    s_mov_b32 s63, 8
    s_cmp_lt_u32 {s(sT0)}, 16
    s_cbranch_scc1 k1_u
    s_lshl_b32 s60, {s(sT0)}, 5
    s_sub_u32 s60, s60, 640
    s_mov_b32 s62, 16
    s_cmp_ge_u32 {s(sT0)}, 20
    s_cbranch_scc1 k1_u
    s_mul_i32 s60, {s(sT0)}, 160
    s_sub_u32 s60, s60, {2560-16}
    s_mov_b32 s61, 40
    s_mov_b32 s62, 80
    s_mov_b32 s63, 20
    k1_u:
    s_mul_i32 s60, s60, 1280
    s_mul_i32 s61, s61, 1280
    s_mul_i32 s62, s62, 1280
    s_lshl_b32 {s(sT1)}, {s(sT1)}, 7
    s_add_u32 s60, s60, {s(sT1)}
    v_mul_u32_u24 v61, s63, v60
    v_bfe_u32 v62, v0, 3, 2
    v_add_u32 v61, v61, v62
    v_mul_u32_u24 v61, 1280, v61
    v_and_b32 v62, 7, v0
    v_lshl_add_u32 v61, v62, 4, v61
    s_add_u32 m0, {s(sLW)}, 122880
    s_add_u32 s64, s60, s61
    buffer_load_dwordx4 v61, s[52:55], s60 offen lds
    s_add_u32 m0, m0, 1024
    s_add_u32 s60, s60, s62
    buffer_load_dwordx4 v61, s[52:55], s64 offen lds
    s_add_u32 m0, m0, 1024
    s_add_u32 s64, s60, s61
    buffer_load_dwordx4 v61, s[52:55], s60 offen lds
    s_add_u32 m0, m0, 1024
    s_nop 0
    buffer_load_dwordx4 v61, s[52:55], s64 offen lds
    k1_nou:''']
def PF3():
    if 'w' not in PFO: return []
    return [f's_mov_b64 s[52:53], s[98:99]\ns_mov_b32 s54, {2048*4096}\ns_mov_b32 s55, 0x00020000\ns_mul_i32 {s(sT0)}, {s(sPf)}, 12288\nbuffer_load_dword v94, v93, s[52:55], {s(sT0)} offen',f's_add_u32 {s(sT0)}, {s(sT0)}, 8192\ns_mov_b32 exec_hi, 0\nbuffer_load_dword v94, v93, s[52:55], {s(sT0)} offen\ns_mov_b32 exec_hi, -1']
def build(stamp_f):
    e=A(); stamp=lambda i: stamp_f(e,i)
    e(f'''s_cmp_ge_u32 s2, 256
    s_cbranch_scc1 k1_end
    s_load_dwordx2 {s(sX,2)}, s[0:1], 0
    s_load_dwordx2 {s(sWQ,2)}, s[0:1], 8
    s_load_dwordx2 {s(sWI,2)}, s[0:1], 32
    s_load_dwordx2 {s(sDB,2)}, s[0:1], 72
    s_load_dwordx2 {s(sWS,2)}, s[0:1], 80
    s_load_dwordx2 s[52:53], s[0:1], 40
    s_load_dwordx2 s[98:99], s[0:1], 40
    s_load_dwordx2 s[56:57], s[0:1], 16
    s_load_dwordx2 s[58:59], s[0:1], 56
    v_lshrrev_b32 v1, 6, v0
    v_and_b32 v0, 63, v0
    v_readfirstlane_b32 {s(sW)}, v1''')
    stamp(0)
    srd(e,sX,2048*1280); srd(e,sWQ,640*3840); srd(e,sWI,640*3456); srd(e,sDB,256); srd(e,sWS,WSZ); srd(e,52,2048*4096)
    e(f'''s_bfe_u32 {s(sRB)}, s2, 0x20001
    s_lshl_b32 {s(sRB)}, {s(sRB)}, 2
    s_bfe_u32 {s(sT0)}, s2, 0x20003
    s_add_u32 {s(sRB)}, {s(sRB)}, {s(sT0)}
    s_mul_i32 {s(sLW)}, {s(sW)}, 10240
    s_lshl_b32 {s(sT0)}, {s(sRB)}, 2
    s_add_u32 {s(sIt)}, {s(sT0)}, {s(sW)}
    s_mul_i32 {s(sLine)}, {s(sIt)}, {32*1280}
    v_lshrrev_b32 v16, 4, v0
    v_and_b32 v17, 15, v0
    v_xor_b32 v17, v17, v16
    v_lshlrev_b32 v17, 4, v17
    v_mul_u32_u24 v16, 1280, v16
    v_add_u32 v28, v16, v17
    v_xor_b32 v29, 64, v28
    v_xor_b32 v30, 128, v28
    v_xor_b32 v31, 192, v28
    s_lshl_b32 {s(sPf)}, s2, 2
    s_add_u32 {s(sPf)}, {s(sPf)}, {s(sW)}
    v_lshlrev_b32 v93, 7, v0
    s_waitcnt lgkmcnt(0)''')
    def dmaX(p,i):
        l=(i>>1)*40960+8192+(i&1)*1024 if p==4 else p*40960+i*1024
        return [f's_add_u32 m0, {s(sLW)}, {l}',f's_add_u32 {s(sOff)}, {s(sLine)}, {4*i*1280+p*256}',f'buffer_load_dwordx4 {v(28+(i&3))}, {s(sX,4)}, {s(sOff)} offen lds']
    def newq():
        q=DQ()
        for p in (4,0,1,2,3): q.add(f'x{p}',lambda i:dmaX(p,i),8)
        return q,[q.pop() for i in range(8)]
    e(f'''s_lshl_b32 {s(sStR)}, {s(sRB)}, 6
    s_add_u32 {s(sStR)}, {s(sStR)}, {s(sW)}
    s_lshl_b32 {s(sStR)}, {s(sStR)}, 9
    s_add_u32 {s(sStR)}, {s(sStR)}, {ST}
    s_and_b32 {s(sT0)}, s2, 0xe1
    s_or_b32 {s(sN2)}, {s(sT0)}, {s(sW)}
    s_cbranch_scc1 k1_nl
    buffer_load_dword {v(vNon)}, off, {s(sWS,4)}, {s(sStR)} offset:8 sc1
    k1_nl:''')
    e(PF1())
    e(newq()[1])
    e(f'''v_lshlrev_b32 {v(vL16)}, 4, v0
    v_lshrrev_b32 v16, 5, v0
    v_bfe_u32 v17, v0, 2, 2
    v_lshl_add_u32 v16, v16, 3, v17
    v_bfe_u32 v17, v0, 4, 1
    v_and_b32 v18, 3, v0
    v_lshl_add_u32 v19, v17, 2, v18
    v_lshlrev_b32 {v(vZ0)}, 3, v19
    v_lshl_add_u32 {v(vZ0)}, v16, 7, {v(vZ0)}
    v_and_b32 v20, 8, v0
    v_lshl_add_u32 {v(vZ0)}, v20, 3, {v(vZ0)}
    v_xor_b32 {v(vZ1)}, 64, {v(vZ0)}
    v_mul_u32_u24 v16, 320, v16
    v_add_u32 v16, 81920, v16
    v_mul_u32_u24 v20, 160, v17
    v_lshl_add_u32 v20, v18, 3, v20
    v_add_u32 {v(vQM)}, v16, v20
    v_mul_u32_u24 v19, 40, v19
    v_add3_u32 {v(vQR)}, v16, v19, 32
    v_lshrrev_b32 v16, 3, v0
    v_mul_u32_u24 v16, 3456, v16
    v_and_b32 v18, 7, v0
    v_lshlrev_b32 v17, 2, v17
    v_xor_b32 v18, v18, v17
    v_lshl_add_u32 {v(vDZ)}, v18, 4, v16
    s_lshr_b32 {s(sT0)}, s2, 5
    s_and_b32 {s(sT1)}, s2, 1
    s_mul_i32 {s(sB0)}, {s(sW)}, {80*3456}
    s_mul_i32 {s(sZa)}, {s(sIt)}, {2*TL}
    s_add_u32 {s(sZa)}, {s(sZa)}, {ACT}
    v_bfe_u32 v17, v0, 4, 1
    v_mul_u32_u24 v17, {TL-256}, v17
    v_and_b32 v18, 32, v0
    v_mad_i32_i24 v17, v18, -8, v17
    v_add_u32 {v(vL2)}, v17, {v(vL16)}
    s_lshl_b32 {s(sZ2a)}, {s(sIt)}, 11
    s_add_u32 {s(sZ2a)}, {s(sZ2a)}, {Z2T-27*131072}
    s_cmp_ge_u32 {s(sT0)}, 6
    s_cbranch_scc1 k1_B''')
    for j in range(5):
        e(f'''v_add_u32 v16, {64*j}, v0
        v_mul_u32_u24 v17, 3277, v16
        v_lshrrev_b32 v17, 16, v17
        v_mul_u32_u24 v17, {3840-320}, v17
        v_lshl_add_u32 {v(vD+j)}, v16, 4, v17''')
    e(f'''s_mul_i32 {s(sA)}, {s(sT1)}, 6
    s_add_u32 {s(sA)}, {s(sA)}, {s(sT0)}
    s_mov_b32 {s(sCi)}, {s(sA)}
    s_add_u32 {s(sT0)}, {s(sA)}, 15
    s_lshl_b32 {s(sT1)}, {s(sT0)}, 18
    s_add_u32 {s(sZ2a)}, {s(sZ2a)}, {s(sT1)}
    s_add_u32 {s(sZ2b)}, {s(sZ2a)}, 131072
    s_lshl_b32 {s(sT0)}, {s(sT0)}, 7
    s_add_u32 {s(sB0)}, {s(sB0)}, {s(sT0)}
    s_add_u32 {s(sB1)}, {s(sB0)}, {320*3456}
    s_mul_i32 {s(sQB)}, {s(sW)}, {32*3840}
    s_mul_i32 {s(sT0)}, {s(sA)}, 320
    s_add_u32 {s(sQB)}, {s(sQB)}, {s(sT0)}''')
    q=newq()[0]
    q.add(0,lambda i:dmaZ(0,i,sB0),10); q.add(1,lambda i:dmaZ(1,i,sB1),10)
    for j in range(5): q.add(2+j,lambda i:dmaQ((2+j)&3,i,j),10)
    xphase(e,q,stamp,f'''s_cmp_lg_u32 {s(sN2)}, 0
    s_cbranch_scc1 k1_nl2
    v_add_u32 {v(vNon)}, 1, {v(vNon)}
    v_max_u32 {v(vNon)}, 1, {v(vNon)}
    s_lshl_b32 {s(sT1)}, {s(sRB)}, 4
    s_mov_b64 exec, 1
    buffer_store_dword {v(vNon)}, off, {s(sDB,4)}, {s(sT1)} sc1
    s_mov_b64 exec, -1
    k1_nl2:''')
    dense=lambda g:(lambda n: g(n) if n%5 in (1,3) else None)
    sparse=lambda g:(lambda n: g if n%3==1 and n<35 else None)
    def P0(): phase(e,40,mfT(0),lambda m:rdT(m//40,m),{15:((1,),zadd(0,40960)+[non_load()])},q,dense(lambda n:3),img_addr()+pay_addr(),4)
    P0(); f=gelu(0)
    phase(e,40,mfT(1),lambda m:rdT(1,m) if m<40 else rdQ(m),{15:(63,zadd(1,40960)),35:((2,),[])},q,lambda n:(4 if n>15 else 3) if n%3==1 else None,f)
    stamp(4)
    f+=gelu(1)+stat1(0,True)+stat1(1,False)+publish('k1_na')
    phase(e,40,mfQ(0),rdQ,{35:((3,),qadd(40960))},q,sparse(5),f); stamp(8)
    phase(e,40,mfQ(1),rdQ,{35:((4,),qadd(-122880)+PF2())},q,sparse(6),f); stamp(9)
    assert not q.items
    f+=[f'''s_lshr_b32 {s(sTy)}, {s(sA)}, 2
    s_cmp_eq_u32 {s(sTy)}, 0
    s_cselect_b32 {s(sSc)}, {fl(0.32259641858)}, 1.0
    s_mov_b32 {s(sQB)}, {KV}''',f'''s_and_b32 {s(sT0)}, {s(sA)}, 3
    s_mul_i32 {s(sT0)}, {s(sT0)}, {8*HS}
    s_add_u32 {s(sQB)}, {s(sQB)}, {s(sT0)}''',f'''s_lshr_b32 {s(sT0)}, {s(sIt)}, 1
    s_mul_i32 {s(sT0)}, {s(sT0)}, {SS}
    s_add_u32 {s(sQB)}, {s(sQB)}, {s(sT0)}''',f'''s_and_b32 {s(sB0)}, {s(sW)}, 1
    s_lshl_b32 {s(sB1)}, {s(sUn)}, 12
    s_add_u32 {s(sB1)}, {s(sB1)}, {WF}''',f'v_mul_f32 v63, {s(sSc)}, {v(vRstd)}',
    f'v_add_u32 {v(vQM+2)}, 81920, {v(vQM)}',f'v_add_u32 {v(vQR+2)}, 81920, {v(vQR)}',
    'v_lshrrev_b32 v60, 4, v0','v_bfe_u32 v61, v0, 2, 2','v_lshl_add_u32 v60, v60, 3, v61','v_and_b32 v61, 3, v0','v_lshlrev_b32 v61, 3, v61',
    'v_lshl_add_u32 v60, v60, 7, v61',f's_add_u32 {s(sT0)}, {s(sLW)}, 122880\nv_add_u32 v62, {s(sT0)}, v60','v_and_b32 v60, 31, v0','v_lshrrev_b32 v61, 5, v0']
    TO=(4,0,1,2,3)
    def rdL(m): m=min(m,72+m%8); return rdQ(m,m%8,TO[m//16],2*((m>>3)&1))
    phase(e,40,mfQ(2),lambda m:rdQ(m) if m<40 else rdL(m-40),{35:(0,qadd(40960))},fill=f); stamp(10)
    assert not f
    e(f's_cmp_eq_u32 {s(sTy)}, 2\ns_cbranch_scc1 k1_V')
    E,P,VR,RL=96,112,128,144
    for isV in (0,1):
        L='k1_v' if isV else 'k1_q'
        f=[f's_cmp_ge_u32 {s(sUn)}, 470\ns_cbranch_scc1 {L}a\n'+'\n'.join(f'ds_read_b64_tr_b16 {v(RL+4*j+2*r,2)}, v62 offset:{32*j+512*r}' for j in range(4) for r in (0,1))+f'\n{L}a:']
        if isV:
            e('k1_V:')
            f+=[f's_lshl_b32 {s(sT0)}, {s(sB0)}, 11\ns_add_u32 {s(sQB)}, {s(sT0)}, {s(sQB)}','v_lshlrev_b32 v61, 9, v61','v_bfe_u32 v64, v0, 4, 1',f'v_mul_u32_u24 v64, {4*HS}, v64','v_and_b32 v65, 15, v0',
                'v_lshl_add_u32 v64, v65, 4, v64','v_add_u32 v64, v64, v61','v_lshrrev_b32 v65, 2, v60',f'v_mul_u32_u24 v65, {HS}, v65','v_and_b32 v60, 3, v0','v_lshl_add_u32 v65, v60, 4, v65','v_add_u32 v65, v65, v61',
                'v_lshrrev_b32 v56, 4, v0','v_lshlrev_b32 v56, 8, v56',f'v_add_u32 v56, v56, {v(vL16)}']+[f'v_mov_b32 {v(68+r)}, 0x3f803f80' for r in range(4)]
            f+=[f's_add_u32 {s(sT0)}, {s(sQB)}, {p*HS+2048+256}\ns_mov_b32 exec_lo, 0xfff0fff0\ns_mov_b32 exec_hi, 0xfff0fff0\nbuffer_store_dwordx4 v[68:71], v56, {s(sWS,4)}, {s(sT0)} offen{SC}\ns_mov_b64 exec, -1' for p in range(8)]
        else:
            f+=[f's_lshl_b32 {s(sT0)}, {s(sB0)}, 8\ns_add_u32 {s(sDel)}, {s(sT0)}, {s(sQB)}',f's_lshl_b32 {s(sT0)}, {s(sB0)}, 10\ns_add_u32 {s(sQB)}, {s(sT0)}, {s(sQB)}',f'v_mul_u32_u24 v61, {HS}, v61','v_lshl_add_u32 v61, v60, 3, v61',f'''s_add_u32 {s(sDel)}, {s(sDel)}, 6144
                s_mov_b32 {s(sLine)}, {HS}
                s_mov_b32 {s(sN2)}, {2*HS}
                s_cmp_lg_u32 {s(sTy)}, 0
                s_cbranch_scc1 k1_k
                s_lshl_b32 {s(sT0)}, {s(sA)}, 12
                s_add_u32 {s(sQB)}, {s(sZa)}, {s(sT0)}
                s_lshr_b32 {s(sT0)}, {s(sT0)}, 2
                s_add_u32 {s(sDel)}, {s(sZa)}, {s(sT0)}
                s_add_u32 {s(sDel)}, {s(sDel)}, 16384
                s_mov_b32 {s(sLine)}, 512
                s_mov_b32 {s(sN2)}, 256
                v_lshrrev_b32 v61, 5, v0
                v_mul_u32_u24 v61, 248, v61
                v_sub_u32 v61, {v(vL2)}, v61
                s_branch k1_k2
                k1_k:
                v_mov_b32 {v(vL2)}, {v(vL16)}
                k1_k2:''',('@',5)]
        f+=[f's_cmp_ge_u32 {s(sUn)}, 470\ns_cbranch_scc1 {L}b\n'+'\n'.join(f'buffer_store_dwordx4 {v(RL+4*j,4)}, {v(vL16)}, {s(sWS,4)}, {s(sB1)} offen offset:{1024*j}{SC}' for j in range(4))+f'\n{L}b:']
        f+=[('@',PAYAT)]+pay_load()+PF3()
        zo,zs=z2out(); late=[]
        for k,p in enumerate(TO):
            Pk=P+8*(k&1); Vk=VR+8*(k&1)
            f+=[('@',16*k+19)]+[f'v_accvgpr_read_b32 {v(E+r)}, {a(AQ+16*p+r)}' for r in range(16)]+late; late=[]
            for r in range(8): f+=[f'v_mul_f32 {v(E+2*r)}, {v(E+2*r)}, v63',f'v_mul_f32 {v(E+2*r+1)}, {v(E+2*r+1)}, v63',f'v_cvt_pk_bf16_f32 {v(Pk+r)}, {v(E+2*r)}, {v(E+2*r+1)}']
            if isV:
                o=4352+64*(k&1)
                f+=[f'ds_write_b64 {v(W)}, {v(Pk+2*j,2)} offset:{o+16*j}' for j in range(4)]
                f+=[f'ds_read_b64_tr_b16 {v(Vk+4*i+2*r,2)}, {v(W+1)} offset:{o+i*16*136+r*4*136}' for i in (0,1) for r in (0,1)]
                late=[f's_add_u32 {s(sOff)}, {s(sQB)}, {(p*HS if p<4 else 256)+2048}']+[f'buffer_store_dwordx4 {v(Vk+4*i,4)}, {v(64 if p<4 else 65)}, {s(sWS,4)}, {s(sOff)} offen offset:{1024*i}{SC}' for i in (0,1)]
            elif p<4: f+=[f's_mul_i32 {s(sOff)}, {s(sLine)}, {p+4*h}\ns_add_u32 {s(sOff)}, {s(sQB)}, {s(sOff)}\nbuffer_store_dwordx4 {v(Pk+4*h,4)}, {v(vL2)}, {s(sWS,4)}, {s(sOff)} offen{SC}' for h in (0,1)]
            else: f+=[f's_mul_i32 {s(sOff)}, {s(sN2)}, {j}\ns_add_u32 {s(sOff)}, {s(sDel)}, {s(sOff)}\nbuffer_store_dwordx2 {v(Pk+2*j,2)}, v61, {s(sWS,4)}, {s(sOff)} offen{SC}' for j in range(4)]
            if k==1: f+=z2stat(L)
            if k==2: f+=zo[:32]; late+=zs[:2]
            if k==3: f+=zo[32:]; late=[('+',99)]+late+zs[2:]
        f+=[('+',99)]+late
        phase(e,80,lambda n:f'v_mfma_f32_32x32x16_bf16 {a(AQ+16*TO[n//16],16)}, {a(FR+4*(n%8),4)}, {v(X+96+4*(n%16),4)}, {a(AQ+16*TO[n//16],16)}',rdL,{},fill=f,bud=BL)
        stamp(5); print('# A tail items',len(f)); flush(e,f)
        if not isV: e('s_branch k1_fin')
    e(f'k1_fin:\ns_cmp_ge_u32 {s(sPf)}, 32\ns_cbranch_scc1 k1_f2\ns_lshl_b32 {s(sT0)}, {s(sPf)}, 12\ns_add_u32 {s(sT0)}, {s(sT0)}, 0x1E80000\nv_lshlrev_b32 v2, 6, v0\nv_mov_b32 v3, 0\nbuffer_store_dword v3, v2, {s(sWS,4)}, {s(sT0)} offen\nk1_f2:'); stamp(7); stamp(-1)
    e('k1_end:\ns_endpgm')
    for l in ('k1_q','k1_v','k1_b'): e(retry(l))
    for l in ('k1_na','k1_nb','k1_nc'): e(non_spin(l))
    e(f'''k1_B:
    s_lshl_b32 {s(sA)}, {s(sT1)}, 1
    s_add_u32 {s(sA)}, {s(sA)}, {s(sT0)}
    s_sub_u32 {s(sA)}, {s(sA)}, 6
    s_mul_i32 {s(sLn)}, {s(sA)}, 0x04040404
    s_sub_u32 {s(sLn)}, {s(sLn)}, 0x00010203
    s_cmp_eq_u32 {s(sA)}, 0
    s_cselect_b32 {s(sN2)}, 2, 3
    s_cselect_b32 {s(sLn)}, 0x0d0e, {s(sLn)}
    s_add_u32 {s(sTy)}, {s(sZa)}, 20480
    s_mov_b32 {s(sUn)}, {s(sB0)}
    s_and_b32 {s(sT0)}, {s(sLn)}, 0xff
    s_lshl_b32 {s(sT0)}, {s(sT0)}, 7
    s_add_u32 {s(sB0)}, {s(sUn)}, {s(sT0)}
    s_add_u32 {s(sB1)}, {s(sB0)}, {320*3456}
    s_bfe_u32 {s(sT0)}, {s(sLn)}, 0x80008
    s_lshl_b32 {s(sT0)}, {s(sT0)}, 7
    s_add_u32 {s(sQB)}, {s(sUn)}, {s(sT0)}
    s_add_u32 {s(sSc)}, {s(sQB)}, {320*3456}''')
    q=newq()[0]
    for j,bs in enumerate((sB0,sB1,sQB,sSc)): q.add(j,lambda i:dmaZ(j,i,bs),10)
    xphase(e,q,stamp,None)
    P0(); assert not q.items
    stamp(4)
    e(f'''s_mov_b32 {s(sIt)}, 0
    s_mov_b32 {s(sDel)}, 40960
    s_mov_b32 {s(sLine)}, 0
    s_branch k1_pb
    k1_loop:''')
    q.add(5,lambda i:dmaZ(s(sSc),i,sB1),10); f=gelu(1,sZb); stamp(8)
    phase(e,40,mfT(0),lambda m:rdT(m//40,m),{1:(None,zadd(1,s(sDel))+[f'v_xor_b32 {v(vZ1)}, {s(sCi)}, {v(vZ1)}']),15:(None,zadd(0,40960))},q,lambda n:5 if n<3 or n%4==1 else None,f,BB)
    flush(e,f); assert not q.items
    e(f'''s_sub_u32 {s(sDel)}, -81920, {s(sDel)}
    s_sub_u32 {s(sLine)}, 81920, {s(sLine)}
    s_lshl_b32 {s(sT0)}, {s(sA)}, 2
    s_add_u32 {s(sT0)}, {s(sT0)}, {s(sIt)}
    s_cmp_eq_u32 {s(sT0)}, 1
    s_cbranch_scc1 k1_s1
    k1_pb:
    s_and_b32 {s(sT0)}, {s(sLn)}, 0xff
    s_lshl_b32 {s(sZa)}, {s(sT0)}, 11
    s_add_u32 {s(sZa)}, {s(sZa)}, {s(sTy)}
    s_add_u32 {s(sZb)}, {s(sZa)}, 1024
    s_cmp_eq_u32 {s(sT0)}, 13
    s_cselect_b32 {s(sZb)}, {s(sZa)}, {s(sZb)}
    s_cmp_eq_u32 {s(sT0)}, 14
    s_cselect_b32 {s(sZb)}, {OOR}, {s(sZb)}
    s_cmp_ge_u32 {s(sT0)}, 13
    s_cselect_b32 {s(sZa)}, {OOR}, {s(sZa)}
    s_cselect_b32 {s(sCi)}, 64, 0''')
    q.add(4,lambda i:dmaZ(s(sLine),i,sB0),10); f=gelu(0,sZa); stamp(9)
    mid=f'''s_bfe_u32 {s(sT0)}, {s(sLn)}, 0x80010
    s_lshl_b32 {s(sT0)}, {s(sT0)}, 7
    s_add_u32 {s(sB0)}, {s(sUn)}, {s(sT0)}
    s_add_u32 {s(sB1)}, {s(sB0)}, {320*3456}
    s_add_u32 {s(sSc)}, {s(sLine)}, 40960
    s_add_u32 {s(sT0)}, {s(sIt)}, 2
    s_cmp_le_u32 {s(sT0)}, {s(sN2)}
    s_cselect_b32 {s(sWI+2)}, {640*3456}, 0
    s_lshr_b32 {s(sLn)}, {s(sLn)}, 8'''
    phase(e,40,mfT(1),lambda m:rdT(1-m//40,m),{0:(None,[mid]),1:(None,zadd(0,s(sDel))+[f'v_xor_b32 {v(vZ0)}, {s(sCi)}, {v(vZ0)}']),15:(63,zadd(1,40960)),35:(10,[])},q,lambda n:4 if n>15 and n%2==0 else None,f,BB)
    flush(e,f); assert not q.items; stamp(10)
    e(f'''s_cmp_lg_u32 {s(sCi)}, 0
    s_cbranch_scc1 k1_s0
    k1_next:
    s_add_u32 {s(sIt)}, {s(sIt)}, 1
    s_cmp_le_u32 {s(sIt)}, {s(sN2)}
    s_cbranch_scc1 k1_loop''')
    stamp(5)
    e(f's_cmp_lg_u32 {s(sA)}, 0\ns_cbranch_scc1 k1_nop'); e(pay_load()); e('k1_nop:')
    flush(e,gelu(1,sZb))
    e(f's_cmp_lg_u32 {s(sA)}, 0\ns_cbranch_scc1 k1_fin'); stamp(6)
    flush(e,z2stat('k1_b'))
    e(f's_add_u32 {s(sZ2a)}, {s(sZ2a)}, {28*131072}\ns_add_u32 {s(sZ2b)}, {s(sZ2a)}, 131072')
    zo,zs=z2out()
    for r in range(32): e(f'v_accvgpr_read_b32 {v(T+r)}, {a(ASV+r)}')
    flush(e,zo+[('+',0)]+zs)
    e(f's_sub_u32 {s(sZ2a)}, {s(sZ2a)}, 131072')
    for r in range(16): e(f'v_accvgpr_read_b32 {v(T+r)}, {a(ASV+32+r)}')
    flush(e,zo[:32]+[('+',0)]+zs[:2])
    e('s_branch k1_fin')
    sv=lambda t,o:[f'v_accvgpr_write_b32 {a(ASV+o+r)}, {v(T+16*t+r)}' for r in range(16)]
    e('k1_s1:'); e(stat1(1,False)); e(f's_mov_b32 {s(sCi)}, 12'); e(publish('k1_nb')); e(sv(1,16)); e('s_branch k1_pb')
    e('k1_s0:'); e(stat1(0,True)); e(f's_cmp_eq_u32 {s(sIt)}, 0\ns_cbranch_scc0 k1_s2'); e(sv(0,0)); e('s_branch k1_next')
    e(f'k1_s2:\ns_mov_b32 {s(sCi)}, 13'); e(publish('k1_nc')); e(sv(0,32)); e(f's_mov_b32 {s(sCi)}, 64\ns_branch k1_next')
    return e
```

```python
from lib import *
import os
LEAD=int(os.environ.get('LEAD','3')); NPF=int(os.environ.get('NPF','1'))
sWS,sDM,sSP,sX,sBS,sO=4,8,12,16,20,60
FL=0x1E80000; SC=' sc1'; OOR='0xf0000000'
sW,sH,sQB,sTB,sFB,sT0,sT1,sT2,sKV,sZ,sSo,sMk,sMz,sMw,sIt,sU0,sU1,sUn,sWq,sKh,sSl,sSt,sLim=range(24,47)
vL16,vA,vK,vR,vB0,vB1,vDW0,vDW1,vIdx,vBs,vT=1,2,3,4,5,6,7,8,9,10,11
SA,SB,O0,O1,G0,G1=16,32,48,64,80,96
QM,QR,KM,KR,V0,V1,GA0,GA1,GBa,Z=112,120,124,128,132,136,140,144,148,152
sWf,sFl,sAo,sOo,sNk=47,48,32,36,49
vL4=172; vSt=173; sUa,sPfW=64,65; WS_=[176,196,216,236,152,112,132]; AR,AC,XR=16,72,4
LK,LZ,LW=0,7168,15360
def dma(j,slot):
    o=slot*32768
    if j==0: return [f's_add_u32 m0, {s(sMw)}, {o}', None, f'buffer_load_dwordx4 {v(vDW0)}, {s(sSP,4)}, {s(sSo)} offen lds']
    if j==1: return [f's_add_u32 m0, {s(sMw)}, {o+1024}', None, f'buffer_load_dwordx4 {v(vDW1)}, {s(sSP,4)}, {s(sSo)} offen lds']
    if j==2: return [f's_add_u32 m0, {s(sMz)}, {o}', f's_add_u32 {s(sSo)}, {s(sSo)}, {s(sSt)}', f'buffer_load_dwordx4 {v(vL16)}, {s(sDM,4)}, {s(sZ)} offen lds']
    return [f's_add_u32 m0, {s(sMk)}, {o}', f's_add_u32 {s(sZ)}, {s(sZ)}, 4096', f'buffer_load_dwordx4 {v(vL16)}, {s(sDM,4)}, {s(sKV)} offen lds']
def em(e,d,alt='s_nop 0'): e([d[0],d[1] or alt,d[2]])
def mf(D,Aa,B,C=None): return f'v_mfma_f32_32x32x16_bf16 {v(D,16)}, {v(Aa,4)}, {v(B,4)}, '+(C or v(D,16))
def mf8(D,Aa,B): return f'v_mfma_f32_32x32x8_bf16 {v(D,16)}, {v(Aa,2)}, {v(B,2)}, {v(D,16)}'
def pv(D,Aa,P): return f'v_smfmac_f32_32x32x32_bf16 {v(D,16)}, {v(Aa,4)}, {v(P,8)}, {v(vIdx)}'
def rd(D,ad,off): return f'ds_read_b128 {v(D,4)}, {v(ad)} offset:{off}'
NOG=int(os.environ.get('NOG','0')); WT=int(os.environ.get('WT','7'))
NA,NB,BR,PAD,PA0,RO=[int(os.environ.get(x,'0')) for x in ('NA','NB','BR','PAD','PA0','RO')]
RO=RO or 2; NX=[int(c) for c in os.environ.get('NX','444772')]; NIT=16-len(NX)//2
PRI=os.environ.get('PRI','0')
ABL=os.environ.get('ABL','')
def wld(j,n): return ['s_nop 0'] if 'w' in ABL else ([f's_add_u32 {s(sWf)}, {s(sWf)}, 40960'] if n==0 else [])+[f'buffer_load_dwordx4 {v(WS_[j]+4*n,4)}, {v(vL16 if n<4 else vL4)}, {s(sWS,4)}, {s(sWf)} offen offset:{(n&3)*1024}']
def pp_(e,par,grp,pe=0,xl=None,vm=4,nx=0):
    c=par*32768; n=(1-par)*32768; dp=1-par; last=pe==31
    if WT and not par and not pe: vm=5
    mid,hi,lo='s_setprio 1','s_setprio 2','s_setprio 0'
    def ex(S):
        for r in range(16): e(f'v_exp_f32 {v(S+r)}, {v(S+r)}')
    order=[5,8,10,0,11,9,1,3] if pe<=28 else [2,4,0,5,6,7,8] if last else [2,6,4,7,10,5,8,0,11]
    def X(p):
        if xl and p in order[:nx]: e(xl.pop(0))
    def D(j,p,alt='s_nop 0'): em(e,dma(j,dp),alt) if pe<=28 else X(p)
    def N(x):
        if not last: e(x)
    wr=lambda b,j: f'ds_write_b128 v12, {v(b+4*j,4)} offset:{1024*j}'
    bar=f's_waitcnt vmcnt({vm})\ns_barrier' if not last else ''
    if grp: e(bar)
    ex(SA)
    if par:
        for r in (vK,vR,vB0): N(f'v_xor_b32 {v(r)}, 0x10000, {v(r)}')
    if not grp: e(bar)
    e(mid); e('s_waitcnt lgkmcnt(2)')
    e(mf(SB,KM,QM+4,'0')); e(hi); X(0)
    e(mf8(SB,KR,QR+2)); N(rd(KM,vK,n)); N(f'ds_read_b64 {v(KR,2)}, {v(vR)} offset:{n}'); X(1)
    if WT and par and not pe: e(f's_cmp_ge_u32 {s(sIt)}, {NIT-WT}\ns_cselect_b32 {s(sT0)}, {s(sPfW)}, {OOR}\ns_add_u32 {s(sPfW)}, {s(sPfW)}, 40960\nbuffer_load_dword v15, v14, {s(sWS,4)}, {s(sT0)} offen')
    e(mf(G0,GA0,GBa)); e(rd(GA0,vA,c+LZ+1024)); D(0,2)
    e(mf(G1,GA1,GBa)); e(f's_waitcnt lgkmcnt({1 if last else 3})'); e(rd(GA1,vA,c+LZ+4096+1024)); e(rd(GBa,vB1,c)); X(3)
    e(pv(O0,V0,SA)); D(1,4,f's_add_u32 {s(sKV)}, {s(sKV)}, {SS}')
    e(pv(O0,V1,SA+8)); X(5); last and e('s_nop 1'); e(lo)
    ex(SB)
    if par:
        for r in (vA,vB1): N(f'v_xor_b32 {v(r)}, 0x10000, {v(r)}')
    e(mid); e('s_waitcnt lgkmcnt(0)')
    if last:
        if grp:
            e(pv(O1,V0,SB)); e(hi); e([wr(O0,0),wr(O0,1)]); X(6); e(pv(O1,V1,SB+8)); e([wr(O0,2),wr(O0,3)]); X(7)
            e(mf(G0,GA0,GBa)); X(8); e(mf(G1,GA1,GBa)); e('s_nop 7'); e([wr(O0,j) for j in range(4,8)])
        else:
            e(mf(G0,GA0,GBa)); e(hi); X(6); e(mf(G1,GA1,GBa)); X(7); e(pv(O1,V0,SB)); X(8); e('s_nop 8'); e([wr(G0,0),wr(G0,1)])
            e(pv(O1,V1,SB+8)); e([wr(G0,j) for j in range(2,8)])
        e(lo); return
    e(mf(SA,KM,QM,'0')); e(hi); D(2,6)
    e(mf8(SA,KR,QR)); D(3,7)
    e(mf(G0,GA0,GBa)); e(rd(GA0,vA,n+LZ))
    if dp and pe<28:
        for r in (sMk,sMz,sMw): e(f's_xor_b32 {s(r)}, {s(r)}, 0x10000')
    X(8)
    e(mf(G1,GA1,GBa)); e(rd(GA1,vA,n+LZ+4096)); e(rd(GBa,vB0,n))
    if dp and not pe: e(f's_cmp_lt_u32 {s(sIt)}, {s(sLim)}\ns_cselect_b32 {s(sSP+2)}, {s(sSP+2)}, 0')
    X(9)
    e(pv(O1,V0,SB)); e(rd(V0,vA,n+2048)); X(10)
    if par and not pe: e(f's_add_u32 {s(sIt)}, {s(sIt)}, 1\n'+(f's_cmp_eq_u32 {s(sIt)}, 33\ns_cbranch_scc1 k2_end\n' if RO&(2<<grp) else '')+f's_cmp_lt_u32 {s(sIt)}, {NIT}')
    e(pv(O1,V1,SB+8)); e(rd(V1,vA,n+3072)); X(11); e(lo)
PN=os.environ.get('PN','000000000000')
def pp(e,par,grp,*a,nog=0):
    m=A(); pp_(m,par,grp,*a); k=0
    if nog: m.l=[x.replace('lgkmcnt(3)','lgkmcnt(2)') for x in m.l if not any(v(r,4) in x for r in (GA0,GA1,GBa))]
    for x in m.l:
        if 'mfma' in x:
            d=int(PN[(k-1)%12+(12*par if len(PN)>12 else 0)],16) if k%6 else 0
            if d==15: (k==11 and par and not a) or e(f's_cmp_eq_u32 {s(sIt)}, 33\ns_cbranch_scc1 k2_end')
            elif d: e(f's_nop {d-1}')
            k+=1
        e(x)
def misc(grp):
    f=[f'''s_lshl_b32 {s(sT0)}, {s(sW)}, 13
    v_add_u32 v12, {s(sT0)}, {v(vL16)}
    v_xor_b32 v13, 0x8000, v12
    v_add_u32 {v(vL4)}, 4096, {v(vL16)}''']
    if not grp:
        return f+[f'''s_mov_b32 s50, {fl(2.0**-64)}
        s_mov_b32 s51, {fl(2.0**64)}
        s_lshl_b32 {s(sFl)}, {s(sQB)}, 6
        s_add_u32 {s(sFl)}, {s(sFl)}, {s(sH)}
        s_lshl_b32 {s(sFl)}, {s(sFl)}, 6
        s_add_u32 {s(sFl)}, {s(sFl)}, {FL}''']
    f+=[f'''s_lshl_b32 {s(sTB)}, {s(sTB)}, 2
    s_add_u32 {s(sTB)}, {s(sTB)}, {s(sWq)}
    s_lshr_b32 {s(sFl)}, {s(sTB)}, 1
    s_lshl_b32 {s(sFl)}, {s(sFl)}, 5
    s_add_u32 {s(sFl)}, {s(sFl)}, {s(sFB)}
    s_lshl_b32 {s(sFl)}, {s(sFl)}, 1
    s_and_b32 {s(sT0)}, {s(sTB)}, 1
    s_add_u32 {s(sFl)}, {s(sFl)}, {s(sT0)}
    s_lshl_b32 {s(sFl)}, {s(sFl)}, 6
    s_add_u32 {s(sFl)}, {s(sFl)}, {FL+2048}''',f'''s_mul_i32 {s(sU0)}, {s(sTB)}, {2*TL}
    s_lshl_b32 {s(sT0)}, {s(sFB)}, 11
    s_add_u32 {s(sU0)}, {s(sU0)}, {s(sT0)}
    s_add_u32 {s(sU0)}, {s(sU0)}, {ACT+20480}
    s_cmp_eq_u32 {s(sSl)}, 7
    s_cselect_b32 {s(sU0)}, {OOR}, {s(sU0)}
    s_cselect_b32 {s(sFl)}, {OOR}, {s(sFl)}
    s_cmp_eq_u32 {s(sFB)}, 13
    s_cselect_b32 {s(sU1)}, {OOR}, {s(sU0)}
    s_lshl_b32 {s(sT1)}, {s(sTB)}, 6
    v_and_b32 v14, 31, v0
    v_lshlrev_b32 v14, 1, v14
    buffer_load_ushort {v(vBs)}, v14, {s(sBS,4)}, {s(sT1)} offen''']
    return f+[f'buffer_load_dwordx4 {v(Z+4*j,4)}, {v(vSt)}, {s(sWS,4)}, {s(sU0+(j>>1))} offen offset:{512*j}' for j in range(4)]
def peel(e,grp,stamp):
    stamp(5)
    f=misc(grp); f=f[:1]+[wld(j,n) for j in range(5-grp) for n in range(5)]+f[1:]
    if grp: f=f[:9]+f[21:]+f[9:21]
    ends=[0,5 if WT else 4]
    for k,nx in enumerate(NX):
        n0=len(e.l); pe=32-len(NX)+k
        pp(e,k&1,grp,pe,f,ends[-2]+ends[-1] if k==0 else tot-mark[-2],nx)
        if k==0: tot=0; mark=[0]
        ops=[x for x in e.l[n0:] if x.startswith('buffer_')]
        mark.append(tot+max([i+1 for i,x in enumerate(ops) if x.endswith(' lds')]+[0])); tot+=len(ops)
        if pe==29: stamp(6)
    assert not f,len(f)
LB=(65536,0); RS=336; ASC=os.environ.get('ASC',' sc1'); ROT=int(os.environ.get('ROT','1')); BJ=int(os.environ.get('BJ','1')); PUT=int(os.environ.get('PUT','3')); FJ=int(os.environ.get('FJ','4'))
def tail(e,nk,own,stamp):
    for j in range(5,nk):
        for n in range(5): e(wld(j,n))
    if own:
        for i in range(4): e(f'buffer_load_dwordx2 {v(XR+2*i,2)}, v3, {s(sX,4)}, {s(sOo+i)} offen')
    L=f'k2_p{nk}{own}'
    e(f'''s_mov_b64 exec, s[52:53]
    {L}:
    buffer_load_dword v14, v13, {s(sWS,4)}, {s(sT1)} offen{SC}
    s_sub_u32 {s(sSt)}, {s(sSt)}, 1
    s_cbranch_scc1 {L}x
    s_waitcnt vmcnt(0)
    v_cmp_eq_u32 vcc, 0, v14
    s_cbranch_vccnz {L}
    {L}x:
    s_mov_b64 exec, -1'''); stamp(10)
    q=[]
    def ald(i,j): q.append((i,j)); e(f'buffer_load_dwordx4 {v(AR+28*(i&1)+4*j,4)}, {v(vL16 if j<4 else vL4)}, {s(sWS,4)}, {s(sAo+i)} offen offset:{(j&3)*1024}{ASC}')
    for i in (0,1):
        for j in range(nk): ald(i,j)
    Y=132; S=(40,68,12)
    def rds(): e([f'ds_read_b128 {v(Y+4*k if k<5 else S[k-5],4)}, v2 offset:{(k+3)%8*16*RS}' for k in range(8)]+['v_xor_b32 v2, 0x10000, v2'])
    def fin(i):
        E=Y+4; w=lambda k:[f's_waitcnt lgkmcnt({k})'] if i==3 else []
        p2=lambda op,d,x,y,z=None: [f'v_pk_{op}_f32 {v(d+2*h,2)}, {v(x+2*h,2)}, '+(y if isinstance(y,str) else v(y+2*h,2))+(f', {v(z+2*h,2)}' if z else '') for h in (0,1)]
        if i<3: p2=lambda op,d,x,y,z=None: [f'v_{op}_f32 {v(d+h)}, '+(y[:4].replace('[','') if isinstance(y,str) else v(y+h))+f', {v(x+h)}'+(f', {v(z+h)}' if z else '') for h in range(4)]
        pk=lambda d,x: p2('add',d,d,x)
        f=(w(6) or ['s_waitcnt lgkmcnt(0)'])+pk(Y,Y+4)+w(4)+pk(Y+8,Y+12)+w(3)+pk(Y,Y+16)+pk(Y,Y+8)+p2('mul',E,Y,'s[54:55]')+[f'v_exp_f32 {v(E+r)}, {v(E+r)}' for r in range(4)]
        f+=[f'v_lshlrev_b32 {v(Y+16+2*r)}, 16, {v(XR+2*i+r)}' for r in (0,1)]+p2('add',E,E,'s[56:57]')+[f'v_rcp_f32 {v(E+r)}, {v(E+r)}' for r in range(4)]
        f+=[f'v_and_b32 {v(Y+17+2*r)}, 0xffff0000, {v(XR+2*i+r)}' for r in (0,1)]+w(0)+pk(S[0],S[1])+p2('mul',Y,Y,E)+pk(S[0],S[2])+p2('fma',Y,Y,S[0],Y+16)
        f+=[f'v_cvt_pk_bf16_f32 {v(Y+r)}, {v(Y+2*r)}, {v(Y+2*r+1)}' for r in (0,1)]+[f'buffer_store_dwordx2 {v(Y,2)}, v3, {s(sO,4)}, {s(sOo+i)} offen']
        return f
    f=[]
    def put(k):
        for _ in range(k):
            if f: x=f.pop(0); e(x); x.startswith('buffer') and q.append('st')
    def sync(i):
        put(99); e('s_waitcnt lgkmcnt(0)\ns_barrier'); own and rds()
        if i in (0,3): stamp(11+i//3)
    for i in range(4):
        C=AC+20*(i&1)
        for j in range(nk):
            e(f's_waitcnt vmcnt({len(q)-1-q.index((i,j))})')
            if own and i and j==FJ: f=fin(i-1)
            for n in range(5):
                e(f'v_mfma_f32_16x16x32_bf16 {v(C+4*n,4)}, {v(WS_[j]+4*n,4)}, {v(AR+28*(i&1)+4*j,4)}, '+(v(C+4*n,4) if j else '0')); put(PUT+(nk==5))
            if i<2: ald(i+2,j)
            if i and j==BJ: sync(i-1)
        if len(f)>=4: put(4)
        else: e('s_nop 3')
        for n in range(5): e(f'ds_write_b128 v0, {v(C+4*n,4)} offset:{64*n}')
        e('v_xor_b32 v0, 0x10000, v0')
    sync(3)
    if own: f=fin(3); put(99)
def build(stamp_f):
    e=A(); stamp=lambda i: stamp_f(e,i)
    e(f'''s_cmp_ge_u32 s2, 256
    s_cbranch_scc1 k2_end
    s_load_dwordx2 {s(sWS,2)}, s[0:1], 80
    s_load_dwordx2 {s(sDM,2)}, s[0:1], 80
    s_load_dwordx2 {s(sSP,2)}, s[0:1], 40
    s_load_dwordx2 {s(sBS,2)}, s[0:1], 48
    s_load_dwordx2 {s(sX,2)}, s[0:1], 0
    s_load_dwordx2 {s(sO,2)}, s[0:1], 64
    v_lshrrev_b32 v1, 6, v0
    v_and_b32 v0, 63, v0
    v_readfirstlane_b32 {s(sW)}, v1''')
    stamp(0)
    srd(e,sWS,WSZ); srd(e,sDM,WSZ); srd(e,sSP,2048*4096); srd(e,sBS,4096); srd(e,sX,2048*1280); srd(e,sO,2048*1280)
    e(f'''s_and_b32 {s(sWq)}, {s(sW)}, 3
    s_lshr_b32 {s(sKh)}, {s(sW)}, 2
    s_and_b32 {s(sH)}, s2, 7
    s_lshl_b32 {s(sH)}, {s(sH)}, 2
    s_lshr_b32 {s(sT0)}, s2, 6
    s_add_u32 {s(sH)}, {s(sH)}, {s(sT0)}
    s_bfe_u32 {s(sQB)}, s2, 0x30003
    s_lshl_b32 {s(sQB)}, {s(sQB)}, 2
    s_add_u32 {s(sQB)}, {s(sQB)}, {s(sWq)}
    s_bfe_u32 {s(sTB)}, s2, 0x20001
    s_lshl_b32 {s(sTB)}, {s(sTB)}, 2
    s_bfe_u32 {s(sT0)}, s2, 0x20003
    s_add_u32 {s(sTB)}, {s(sTB)}, {s(sT0)}
    s_lshr_b32 {s(sSl)}, s2, 5
    s_min_u32 {s(sFB)}, {s(sSl)}, 6
    s_and_b32 {s(sT0)}, s2, 1
    s_mul_i32 {s(sT0)}, {s(sT0)}, 7
    s_add_u32 {s(sFB)}, {s(sFB)}, {s(sT0)}
    s_mul_i32 {s(sT2)}, {s(sH)}, {HS}
    s_min_u32 {s(sMk)}, {s(sW)}, 6
    s_lshl_b32 {s(sMk)}, {s(sMk)}, 10
    s_add_u32 {s(sKV)}, {s(sT2)}, {s(sMk)}
    s_lshl_b32 {s(sZ)}, {s(sFB)}, 1
    s_add_u32 {s(sZ)}, {s(sZ)}, {s(sKh)}
    s_min_u32 {s(sZ)}, {s(sZ)}, 26
    s_lshl_b32 {s(sZ)}, {s(sZ)}, 7
    s_add_u32 {s(sZ)}, {s(sZ)}, {s(sWq)}
    s_lshl_b32 {s(sZ)}, {s(sZ)}, 10
    s_add_u32 {s(sZ)}, {s(sZ)}, {Z2T}
    s_lshl_b32 {s(sMz)}, {s(sW)}, 10
    s_lshl_b32 {s(sMw)}, {s(sMz)}, 1
    s_add_u32 {s(sMz)}, {s(sMz)}, {LZ}
    s_add_u32 {s(sMw)}, {s(sMw)}, {LW}
    s_lshl_b32 {s(sSo)}, {s(sTB)}, 3
    s_add_u32 {s(sSo)}, {s(sSo)}, {s(sW)}
    s_lshl_b32 {s(sSo)}, {s(sSo)}, 16
    s_mul_i32 {s(sT0)}, {s(sQB)}, {4*TL}
    s_add_u32 {s(sT0)}, {s(sT0)}, {ACT}
    s_lshl_b32 {s(sU0)}, {s(sH)}, 9
    s_add_u32 {s(sU0)}, {s(sU0)}, {s(sT0)}
    s_lshr_b32 {s(sT1)}, {s(sH)}, 1
    s_lshl_b32 {s(sT1)}, {s(sT1)}, 8
    s_add_u32 {s(sT0)}, {s(sT0)}, {s(sT1)}
    s_and_b32 {s(sT1)}, {s(sH)}, 1
    s_lshl_b32 {s(sT1)}, {s(sT1)}, 3
    s_add_u32 {s(sT0)}, {s(sT0)}, {s(sT1)}
    s_add_u32 {s(sU1)}, {s(sT0)}, 16384
    s_add_u32 {s(sT0)}, {s(sU0)}, {2*TL}
    s_add_u32 {s(sT1)}, {s(sU1)}, {2*TL}
    v_lshlrev_b32 {v(vL16)}, 4, v0
    v_lshrrev_b32 v12, 3, v0
    v_lshrrev_b32 v13, 4, v0
    v_and_b32 v14, 7, v0
    v_xor_b32 v13, v13, v14
    v_lshlrev_b32 v13, 4, v13
    v_lshl_add_u32 {v(vDW0)}, v12, 12, v13
    v_xor_b32 {v(vDW1)}, 0x8040, {v(vDW0)}
    s_mov_b32 {s(sSt)}, 128
    s_mov_b32 {s(sLim)}, {17-LEAD}
    s_cmp_lt_u32 s2, {224 if NPF else 999}
    s_cbranch_scc1 k2_np
    s_sub_u32 {s(sSo)}, s2, 224
    s_lshl_b32 {s(sSo)}, {s(sSo)}, 3
    s_add_u32 {s(sSo)}, {s(sSo)}, {s(sW)}
    s_lshl_b32 {s(sSo)}, {s(sSo)}, 15
    s_add_u32 {s(sSo)}, {s(sSo)}, 512
    s_mov_b32 {s(sSt)}, 256
    s_mov_b32 {s(sLim)}, {5 if LEAD==3 else 4}
    s_mov_b32 {s(sZ)}, 0xf0000000
    v_add_u32 {v(vDW1)}, 128, {v(vDW0)}
    k2_np:
    v_and_b32 v12, 31, v0
    v_lshrrev_b32 v13, 5, v0
    v_lshlrev_b32 {v(vR)}, 3, v12
    v_bfe_u32 v14, v0, 4, 1
    v_mul_u32_u24 v14, {TL-256}, v14
    v_lshl_add_u32 v14, v12, 4, v14
    v_lshl_add_u32 {v(vSt)}, v13, 8, v14
    v_lshl_add_u32 {v(vT)}, v13, 30, v14
    s_waitcnt lgkmcnt(0)''')
    stamp(4)
    for j in range(4): em(e,dma(j,0))
    for i in (0,1):
        e(f'buffer_load_dwordx4 {v(QM+4*i,4)}, {v(vSt)}, {s(sWS,4)}, {s((sU0,sT0)[i])} offen')
        e(f'buffer_load_dwordx2 {v(QR+2*i,2)}, {v(vT)}, {s(sWS,4)}, {s((sU1,sT1)[i])} offen')
    def pst(st):
        for j in range(4): em(e,dma(j,st),f's_add_u32 {s(sKV)}, {s(sKV)}, {SS}' if j==1 else 's_nop 0')
    pst(1)
    e(f'''s_lshl_b32 {s(sT0)}, {s(sKh)}, 10
    v_add_u32 {v(vK)}, {s(sT0)}, {v(vL16)}
    v_add_u32 {v(vA)}, {s(sT0)}, {v(vK)}
    s_lshl_b32 {s(sT0)}, {s(sKh)}, 8
    s_add_u32 {s(sT0)}, {s(sT0)}, 6144
    v_add_u32 {v(vR)}, {s(sT0)}, {v(vR)}
    s_lshl_b32 {s(sT0)}, {s(sKh)}, 2
    v_add_u32 v13, {s(sT0)}, v13
    v_bfe_u32 v14, v0, 1, 3
    v_xor_b32 v13, v13, v14
    v_lshlrev_b32 v13, 4, v13
    v_lshl_add_u32 v13, v12, 7, v13
    s_lshl_b32 {s(sT0)}, {s(sWq)}, 12
    s_add_u32 {s(sT0)}, {s(sT0)}, {LW}
    v_add_u32 {v(vB0)}, {s(sT0)}, v13
    v_xor_b32 {v(vB1)}, 32, {v(vB0)}
    v_mov_b32 {v(vIdx)}, 0xdddddddd
    s_lshl_b32 {s(sT0)}, {s(sW)}, 3
    s_mov_b32 s54, 0x140e0700
    s_mov_b32 s55, 0x29231e19
    s_lshr_b64 s[54:55], s[54:55], {s(sT0)}
    s_and_b32 {s(sNk)}, s54, 0xff
    s_mul_i32 {s(sWf)}, {s(sNk)}, 40960
    s_mul_i32 {s(sT0)}, {s(sSl)}, 5120
    s_add_u32 {s(sWf)}, {s(sWf)}, {s(sT0)}
    s_add_u32 {s(sWf)}, {s(sWf)}, {WF-40960}
    s_bfe_u32 {s(sT0)}, s2, 0x20003
    s_mul_i32 {s(sT0)}, {s(sT0)}, 1280
    s_add_u32 {s(sPfW)}, {s(sWf)}, {s(sT0)}
    s_sub_u32 {s(sPfW)}, {s(sPfW)}, {(NIT-1-WT)*40960}
    v_add_u32 v14, 54, v0
    v_lshrrev_b32 v14, 6, v14
    v_lshlrev_b32 v14, 30, v14
    v_lshl_add_u32 v14, v0, 7, v14
    s_mov_b32 {s(sIt)}, 0''')
    for r in range(O0,G1+16): e(f'v_mov_b32 {v(r)}, 0')
    e('s_waitcnt vmcnt(4)'); e('s_barrier'); stamp(1)
    e([rd(KM,vK,0),f'ds_read_b64 {v(KR,2)}, {v(vR)}',rd(GBa,vB0,0),rd(GA1,vA,LZ+4096),rd(GA0,vA,LZ),rd(V0,vA,2048),rd(V1,vA,3072)])
    e('s_waitcnt lgkmcnt(2)'); e(mf(SA,KM,QM,'0')); e(mf8(SA,KR,QR))
    TP=int(os.environ.get('TP','0'))
    if TP: e(f's_lshl_b32 {s(sT0)}, {s(sW)}, 7\ns_add_u32 {s(sT0)}, {s(sT0)}, {ACT+47*1024}\nv_mul_u32_u24 v13, {TL*128//TP}, v0\ns_bfm_b64 exec, {TP}, 0\nbuffer_load_dword v15, v13, {s(sWS,4)}, {s(sT0)} offen\ns_mov_b64 exec, -1')
    elif WT: e(f's_mov_b32 {s(sT0)}, {OOR}\nbuffer_load_dword v15, v14, {s(sWS,4)}, {s(sT0)} offen')
    for st in range(2,LEAD): pst(st)
    if LEAD==3:
        for r in (sMk,sMz,sMw): e(f's_xor_b32 {s(r)}, {s(r)}, 0x10000')
    stamp(7)
    if NOG: e('s_cmp_ge_u32 s2, 224\ns_cbranch_scc1 k2_n')
    e(f's_cmp_eq_u32 {s(sKh)}, 0\ns_cbranch_scc0 k2b_loop\n.p2align '+os.environ.get('AL','6')); e(['s_nop 0']*PA0); e('k2a_loop:')
    pp(e,0,0); pp(e,1,0); e('s_cbranch_scc1 k2a_loop\ns_branch k2a_peel\n.p2align 6'); e(['s_nop 0']*PAD); e('k2b_loop:'); pp(e,0,1); pp(e,1,1); e('s_cbranch_scc1 k2b_loop\ns_branch k2b_peel')
    e(f'k2_n:\ns_cmp_eq_u32 {s(sKh)}, 0\ns_cbranch_scc0 k2d_loop')
    for g in (0,1): e(f'.p2align 6\nk2{"cd"[g]}_loop:'); pp(e,0,g,nog=1); pp(e,1,g,nog=1); e(f's_cbranch_scc1 k2{"cd"[g]}_loop\ns_branch k2{"ab"[g]}_peel')
    e('.p2align 6\nk2a_peel:'); peel(e,0,stamp); stamp(2)
    e('s_waitcnt lgkmcnt(0)\ns_barrier')
    for j in range(8): e(rd(G0+4*j,13,1024*j))
    for i in (0,1):
        e(f's_waitcnt lgkmcnt({4-4*i})')
        for r in range(0,14,2): e(f'v_pk_add_f32 {v(O0+16*i+r,2)}, {v(O0+16*i+r,2)}, {v(G0+16*i+r,2)}')
    e(f'''v_cmp_le_f32 s[52:53], s50, {v(O0+12)}
    v_cmp_ge_f32 s[54:55], s51, {v(O0+12)}
    v_cmp_le_f32 s[56:57], s50, {v(O1+12)}
    v_cmp_ge_f32 s[58:59], s51, {v(O1+12)}
    s_and_b64 s[52:53], s[52:53], s[54:55]
    s_and_b64 s[56:57], s[56:57], s[58:59]
    s_and_b64 s[52:53], s[52:53], s[56:57]
    s_andn2_b64 s[52:53], exec, s[52:53]
    s_cbranch_scc1 k2_slow
    k2_ofin:
    v_rcp_f32 v14, {v(O0+12)}
    v_rcp_f32 v15, {v(O1+12)}
    s_add_u32 {s(sT0)}, {s(sU0)}, {2*TL}
    s_add_u32 {s(sT1)}, {s(sU1)}, {2*TL}''')
    for i in (0,1):
        O=O0+16*i
        for r in range(12): e(f'v_mul_f32 {v(O+r)}, {v(O+r)}, {v(14+i)}')
        for r in range(6): e(f'v_cvt_pk_bf16_f32 {v(O+r)}, {v(O+2*r)}, {v(O+2*r+1)}')
        e(f'buffer_store_dwordx4 {v(O,4)}, {v(vSt)}, {s(sWS,4)}, {s((sU0,sT0)[i])} offen{SC}')
        e(f'buffer_store_dwordx2 {v(O+4,2)}, {v(vT)}, {s(sWS,4)}, {s((sU1,sT1)[i])} offen{SC}')
    e('s_branch k2_p3\n.p2align 6\nk2b_peel:'); peel(e,1,stamp); stamp(2)
    e(f's_waitcnt vmcnt(12) lgkmcnt(0)\ns_barrier')
    for j in range(8): e(rd(O0+4*j,13,1024*j))
    e(f'v_lshlrev_b32 v14, 16, {v(vBs)}\nv_lshlrev_b32 v15, 16, {v(vBs)}')
    for r in range(16): e(f'v_lshlrev_b32 {v(SA+2*r)}, 16, {v(Z+r)}\nv_and_b32 {v(SA+2*r+1)}, 0xffff0000, {v(Z+r)}\nv_pk_add_f32 {v(G0+2*r,2)}, {v(G0+2*r,2)}, v[14:15]')
    for j in range(4):
        e(f's_waitcnt lgkmcnt({6-2*j})')
        for r in range(8*j,8*j+8,2): e(f'v_pk_add_f32 {v(G0+r,2)}, {v(G0+r,2)}, {v(O0+r,2)}')
        for r in range(8*j,8*j+8,2): e(f'v_pk_mul_f32 {v(G0+r,2)}, {v(G0+r,2)}, {v(SA+r,2)}')
        for r in range(4): e(f'v_cvt_pk_bf16_f32 {v(G0+8*j+r)}, {v(G0+8*j+2*r)}, {v(G0+8*j+2*r+1)}')
        e(f'buffer_store_dwordx4 {v(G0+8*j,4)}, {v(vSt)}, {s(sWS,4)}, {s(sU0+(j>>1))} offen offset:{512*j}{SC}')
    e('k2_p3:'); stamp(8)
    e(f'''s_and_b32 {s(sT1)}, s2, 7
    s_lshl_b32 {s(sT1)}, {s(sT1)}, 2
    s_bfe_u32 {s(sT0)}, s2, 0x20003
    s_add_u32 {s(sT1)}, {s(sT1)}, {s(sT0)}
    s_mul_i32 s54, {s(sT1)}, {4*48}
    s_add_u32 s54, s54, {s(sNk)}
    s_lshl_b32 s54, s54, 10
    s_add_u32 s54, s54, {ACT}
    s_mul_i32 s55, {s(sT1)}, {64*1280}
    s_mul_i32 {s(sT0)}, {s(sSl)}, 160
    s_add_u32 s55, s55, {s(sT0)}
    s_lshl_b32 {s(sT0)}, {s(sW)}, 6
    s_sub_u32 {s(sT0)}, {s(sT0)}, 192
    v_add_u32 v9, {s(sT0)}, v0
    v_mul_u32_u24 v8, 3277, v9
    v_lshrrev_b32 v8, 16, v8
    v_mul_u32_u24 v3, {1280-160}, v8
    v_lshl_add_u32 v3, v9, 3, v3
    v_add_u32 v8, v8, v9
    v_lshlrev_b32 v8, 4, v8
    v_add_u32 v2, {LB[0]}, v8
    v_lshlrev_b32 v13, 6, v0
    v_mov_b32 v15, 1
    s_mul_i32 {s(sT0)}, {s(sW)}, {16*RS}
    s_add_u32 {s(sT0)}, {s(sT0)}, {LB[0]}
    v_and_b32 v4, 15, v0
    v_mul_u32_u24 v4, {RS}, v4
    v_and_b32 v0, 0x30, v0
    v_add3_u32 v0, {s(sT0)}, v4, v0''')
    for i in range(4):
        e(f'''s_add_u32 {s(sT0)}, {s(sSl) if ROT else 0}, {i}
        s_and_b32 {s(sT0)}, {s(sT0)}, 3
        s_mul_i32 {s(sOo+i)}, {s(sT0)}, {16*1280}
        s_add_u32 {s(sOo+i)}, {s(sOo+i)}, s55
        s_mul_i32 {s(sT0)}, {s(sT0)}, {TL}
        s_add_u32 {s(sAo+i)}, {s(sT0)}, s54''')
    e(f'''s_lshl_b32 {s(sT1)}, {s(sT1)}, 12
    s_add_u32 {s(sT1)}, {s(sT1)}, {FL}
    s_lshl_b32 {s(sT0)}, {s(sW)}, 3
    s_mov_b32 s54, 0x20000e00
    s_mov_b32 s55, 0x342e2a24
    s_mov_b32 s56, 0x06200e0e
    s_mov_b32 s57, 0x08080606
    s_lshr_b64 s[54:55], s[54:55], {s(sT0)}
    s_lshr_b64 s[56:57], s[56:57], {s(sT0)}
    s_bfm_b64 s[52:53], s56, s54
    s_mov_b32 {s(sSt)}, 0x100000
    s_mov_b32 s54, {fl(-1.4426950408889634)}
    s_mov_b32 s55, s54
    s_mov_b32 s56, 1.0
    s_mov_b32 s57, 1.0
    s_mov_b64 exec, 1
    s_waitcnt vmcnt(0)
    buffer_store_dword v15, off, {s(sWS,4)}, {s(sFl)}{SC}
    s_mov_b64 exec, -1'''); stamp(9)
    e(f'''s_cmp_lt_u32 {s(sW)}, 2
    s_cbranch_scc1 k2_t70
    s_cmp_lt_u32 {s(sW)}, 3
    s_cbranch_scc1 k2_t60
    s_cmp_lt_u32 {s(sW)}, 4
    s_cbranch_scc1 k2_t51''')
    for n in range(5): e(wld(4,n))
    e(f's_cmp_lt_u32 {s(sW)}, 6\ns_cbranch_scc1 k2_t51')
    for nk,own in ((6,1),(5,1),(6,0),(7,0)):
        e(f'k2_t{nk}{own}:'); tail(e,nk,own,stamp)
        if nk!=7: e('s_branch k2_fin')
    e('k2_fin:'); stamp(3); stamp(-1)
    e('k2_end:\ns_endpgm')
    e(f'''k2_slow:
    v_and_b32 v12, 31, v0
    v_lshlrev_b32 v12, 3, v12
    v_mov_b32 v14, 0xff800000
    v_mov_b32 v15, 0xff800000''')
    for ps in (0,1):
        e(f'''s_mov_b32 {s(sIt)}, 0
        k2_sl{ps}:
        s_lshr_b32 {s(sT0)}, {s(sIt)}, 1
        s_mul_i32 {s(sT0)}, {s(sT0)}, {SS}
        s_add_u32 {s(sT0)}, {s(sT0)}, {s(sT2)}
        s_and_b32 {s(sT1)}, {s(sIt)}, 1
        s_lshl_b32 s50, {s(sT1)}, 8
        s_add_u32 s50, s50, {s(sT0)}
        s_add_u32 s50, s50, 6144
        s_lshl_b32 {s(sT1)}, {s(sT1)}, 10
        s_add_u32 {s(sT0)}, {s(sT0)}, {s(sT1)}
        s_add_u32 {s(sT1)}, {s(sT0)}, {s(sT1)}
        buffer_load_dwordx4 {v(KM,4)}, {v(vL16)}, {s(sWS,4)}, {s(sT0)} offen
        buffer_load_dwordx2 {v(KR,2)}, v12, {s(sWS,4)}, s50 offen
        buffer_load_dwordx4 {v(V0,4)}, {v(vL16)}, {s(sWS,4)}, {s(sT1)} offen offset:2048
        buffer_load_dwordx4 {v(V1,4)}, {v(vL16)}, {s(sWS,4)}, {s(sT1)} offen offset:3072
        s_waitcnt vmcnt(0)''')
        for i in (0,1): e(mf(SA+16*i,KM,QM+4*i,v(G0+16*i,16) if ps else '0')); e(mf8(SA+16*i,KR,QR+2*i))
        e('s_nop 11')
        for r in range(32): e(f'v_exp_f32 {v(SA+r)}, {v(SA+r)}' if ps else f'v_max_f32 {v(14+r//16)}, {v(14+r//16)}, {v(SA+r)}')
        if ps:
            e('s_nop 1')
            for i in (0,1): e(pv(O0+16*i,V0,SA+16*i)); e(pv(O0+16*i,V1,SA+16*i+8))
        e(f's_add_u32 {s(sIt)}, {s(sIt)}, 1\ns_cmp_lt_u32 {s(sIt)}, 64\ns_cbranch_scc1 k2_sl{ps}')
        if ps==0:
            for i in (0,1): e(f'v_mov_b32 v13, {v(14+i)}\ns_nop 1\nv_permlane32_swap_b32 v13, {v(14+i)}\ns_nop 0\nv_max_f32 {v(14+i)}, v13, {v(14+i)}')
            for r in range(32): e(f'v_sub_f32 {v(G0+r)}, 0, {v(14+r//16)}\nv_mov_b32 {v(O0+r)}, 0')
    e('s_nop 11\ns_branch k2_ofin')
    return e
```

```python
from lib import *
import os
PFO=os.environ.get('PFO','xisc')
sX,sWQ,sWI,sWS,sDB=4,8,12,16,20
sW,sRB,sA,sLW,sT0,sT1,sOff,sDel,sIt,sN2,sLine,sZa,sZb,sCi,sB0,sB1,sQB,sTy,sZ2a,sZ2b,sSc=range(24,45)
sStR,sNon,sNN,sUn,sPf,sLn=47,48,49,50,51,45
vL16,vZ0,vZ1,vQM,vQR,vD,vDZ,vStd,vRstd,vK1,vK2=1,2,3,4,5,6,11,12,13,14,15
T=16; TMP=48; PK=64; X=96
FR=0; AQ=64; ASV=144
SC=os.environ.get('SC',' sc1')
OOR='0xf0000000'
DPF=5; DB=8; BB=int(os.environ.get('BB','18')); BL=int(os.environ.get('BL','18')); PAYAT=int(os.environ.get('PAYAT','14'))
vNon=92
def dmaZ(slot,i,base):
    return [f's_add_u32 m0, {s(sLW)}, {slot}' if isinstance(slot,str) and i==0 else (f's_add_u32 m0, m0, 1024' if i else f's_add_u32 m0, {s(sLW)}, {slot*40960}'),
            f's_add_u32 {s(sOff)}, {s(base)}, {i*8*3456}',
            f'buffer_load_dwordx4 {v(vDZ)}, {s(sWI,4)}, {s(sOff)} offen lds']
def dmaQ(slot,i,q):
    return [f's_add_u32 m0, m0, 1024' if i else f's_add_u32 m0, {s(sLW)}, {slot*40960}',
            f's_add_u32 {s(sOff)}, {s(sQB)}, {(128*q+16*(i//5))*3840}',
            f'buffer_load_dwordx4 {v(vD+i%5)}, {s(sWQ,4)}, {s(sOff)} offen lds']
def rdT(t,m):
    return [f'ds_read_b64_tr_b16 {a(FR+4*(m%8)+2*r,2)}, {v(vZ0+t)} offset:{(m%20)*2048+r*512}' for r in (0,1)]
def rdQ(m,kk=None,p=None,b=0):
    if kk is None: kk,p=divmod(m%40,5)
    return [f'ds_read_b64_tr_b16 {a(FR+4*(m%8)+2*r,2)}, {v((vQM if p<4 else vQR)+b)} offset:{kk*5120+r*1280+(40*p if p<4 else 0)}' for r in (0,1)]
class DQ:
    def __init__(q): q.items=[]; q.n=0; q.last={}
    def add(q,tag,f,n):
        for i in range(n): q.items.append((tag,f(i)))
    def pop(q,maxtag=99):
        if not q.items or (isinstance(q.items[0][0],int) and q.items[0][0]>maxtag): return []
        t,i=q.items.pop(0); q.last[t]=q.n; q.n+=1; return i
    def vm(q,tag):
        assert all(t!=tag for t,_ in q.items), tag
        return min(63,q.n-1-q.last[tag])
def flush(e,f):
    for x in f:
        if isinstance(x,tuple): e('s_waitcnt lgkmcnt(0)' if x[0]=='+' else 's_nop 7')
        else: e(x(e) if callable(x) else x)
    del f[:]
def phase(e,N,mf,rdf,ev,q=None,gate=None,fill=None,bud=16):
    carry=0; hold=0
    for n in range(N):
        e(mf(n)); vm,ex=ev.get(n,(None,[]))
        if isinstance(vm,tuple): vm=q.vm(vm[0])
        e(f's_waitcnt lgkmcnt({2*(DPF-2)})' if vm is None else f's_waitcnt vmcnt({vm}) lgkmcnt({2*(DPF-2)})\ns_barrier')
        e(ex)
        g=gate(n) if gate else None
        d=q.pop(g) if g is not None else []
        e(d[:2]); e(rdf(n+DPF)); e(d[2:])
        carry=min(carry,8)+bud-(DB if d else 0)
        while fill and n>=hold:
            x=fill[0]
            if isinstance(x,tuple): hold=x[1] if x[0]=='@' else n+x[1]; (fill.pop(0) if hold<N else None); continue
            c=4 if callable(x) else sum(cost(y) for y in x.split('\n'))
            if c>carry and carry<bud: break
            fill.pop(0); carry-=c; e(x(e) if callable(x) else x)
def mfT(t): return lambda n: f'v_mfma_f32_32x32x16_bf16 {v(T+16*t,16)}, {a(FR+4*(n%8),4)}, {v(X+4*n,4)}, '+('0' if n==0 else v(T+16*t,16))
def mfQ(q):
    return lambda n: f'v_mfma_f32_32x32x16_bf16 {a(AQ+16*(n%5),16)}, {a(FR+4*(n%8),4)}, {v(X+4*(8*q+n//5),4)}, '+('0' if q==0 and n<5 else a(AQ+16*(n%5),16))
def gelu(tl,z=None):
    f=[('@',3)]
    for p in range(8*tl,8*tl+8):
        r=(T+2*p,T+2*p+1); t=(TMP,TMP+1)
        for op in ('v_mul_f32 {t}, {r}, {r}','v_fma_f32 {t}, {t}, {k2}, {k1}','v_mul_f32 {t}, {t}, {r}','v_exp_f32 {t}, {t}',
                   'v_fma_f32 {t}, {t}, {sd}, {sd}','v_rcp_f32 {t}, {t}','v_mul_f32 {r}, {r}, {t}'):
            for j in (0,1): f.append(op.format(t=v(t[j]),r=v(r[j]),k1=v(vK1),k2=v(vK2),sd=v(vStd)))
        if z:
            f.append(f'v_cvt_pk_bf16_f32 {v(PK+p)}, {v(r[0])}, {v(r[1])}')
            if p%4==3: f.append(f'buffer_store_dwordx4 {v(PK+p-3,4)}, {v(vL2)}, {s(sWS,4)}, {s(z)} offen offset:{0 if p%8==3 else 512}{SC}')
    return f
S2=TMP+2; vL2=95
def stat1(t,init):
    f=[]
    for r in range(16):
        x=v(T+16*t+r)
        f+=[f'v_mov_b32 {v(S2)}, {x}',f'v_mul_f32 {v(S2+1)}, {x}, {x}'] if init and r==0 else [f'v_add_f32 {v(S2)}, {v(S2)}, {x}',f'v_fma_f32 {v(S2+1)}, {x}, {x}, {v(S2+1)}']
    return f
def publish(lab):
    S=S2
    f=[f'v_mov_b32 {v(S+2)}, {v(S)}', f'v_mov_b32 {v(S+3)}, {v(S+1)}',
        f'v_and_b32 {v(S+4)}, 0x1ff, {v(vL16)}',
        f'''v_readfirstlane_b32 {s(sNon)}, {v(vNon)}
        s_cmp_lg_u32 {s(sNon)}, 0
        s_cbranch_scc0 {lab}_sp
        {lab}_bk:''',
        f'v_permlane32_swap_b32 {v(S)}, {v(S+2)}', f'v_permlane32_swap_b32 {v(S+1)}, {v(S+3)}',
        f's_lshl_b32 {s(sT0)}, {s(sCi)}, 11\ns_add_u32 {s(sT0)}, {s(sT0)}, {s(sStR)}\ns_not_b32 {s(sNN)}, {s(sNon)}',
        f'v_add_f32 {v(S)}, {v(S)}, {v(S+2)}', f'v_add_f32 {v(S+1)}, {v(S+1)}, {v(S+3)}',
        f'v_mov_b32 {v(S+2)}, {s(sNon)}', f'v_mov_b32 {v(S+3)}, {s(sNN)}',
        f'buffer_store_dwordx4 {v(S,4)}, {v(S+4)}, {s(sWS,4)}, {s(sT0)} offen sc1']
    return f
def non_load(): return f's_lshl_b32 {s(sT1)}, {s(sRB)}, 4\nbuffer_load_dword {v(vNon)}, off, {s(sDB,4)}, {s(sT1)} sc1'
def non_spin(lab):
    return f'''{lab}_sp:
    s_mov_b32 s46, 0x100000
    {lab}_s2:
    {non_load()}
    s_waitcnt vmcnt(0)
    v_readfirstlane_b32 {s(sNon)}, {v(vNon)}
    s_cmp_lg_u32 {s(sNon)}, 0
    s_cbranch_scc1 {lab}_bk
    s_sub_u32 s46, s46, 1
    s_cbranch_scc0 {lab}_s2
    s_branch {lab}_bk'''
PV=TMP+9; PL=160
def pay_addr(): return [f'v_lshrrev_b32 {v(PV)}, 5, v0',f'v_mul_u32_u24 {v(PV)}, {7*2048-512}, {v(PV)}',f'v_add_u32 {v(PV)}, {v(vL16)}, {v(PV)}']
def pay_load():
    return [(f's_add_u32 {s(sT1)}, {s(sStR)}, {j*2048}\n' if j%2==0 else '')+f'buffer_load_dwordx4 {v(PL+4*j,4)}, {v(PV)}, {s(sWS,4)}, {s(sT1)} offen offset:{(j&1)*2048} sc1' for j in range(7)]
def bf(r): return f'v_cvt_pk_bf16_f32 {v(r)}, {v(r)}, {v(r)}\nv_lshlrev_b32 {v(r)}, 16, {v(r)}'
def meanstd(e,S,n):
    e(f'''v_mov_b32 {v(S+2)}, {v(S)}
    v_mov_b32 {v(S+3)}, {v(S+1)}
    s_nop 1
    v_permlane32_swap_b32 {v(S)}, {v(S+2)}
    v_permlane32_swap_b32 {v(S+1)}, {v(S+3)}
    s_nop 0
    v_add_f32 {v(S)}, {v(S)}, {v(S+2)}
    v_add_f32 {v(S+1)}, {v(S+1)}, {v(S+3)}
    v_mul_f32 {v(S)}, {fl(1.0/n)}, {v(S)}
    v_mul_f32 {v(S+1)}, {fl(1.0/n)}, {v(S+1)}
    v_fma_f32 {v(S+1)}, -{v(S)}, {v(S)}, {v(S+1)}
    v_max_f32 {v(S+1)}, 0, {v(S+1)}
    {bf(S)}
    {bf(S+1)}
    v_add_f32 {v(S+1)}, {fl(1e-5)}, {v(S+1)}
    {bf(S+1)}
    v_sqrt_f32 {v(S+1)}, {v(S+1)}
    s_nop 0
    {bf(S+1)}''')
W=58
def img_addr():
    return f'''v_and_b32 {v(W)}, 31, v0
    v_mul_u32_u24 {v(W)}, 136, {v(W)}
    v_lshrrev_b32 {v(W+1)}, 5, v0
    v_lshl_add_u32 {v(W)}, {v(W+1)}, 3, {v(W)}
    v_add_u32 {v(W)}, {s(sLW)}, {v(W)}
    v_bfe_u32 {v(W+1)}, {v(vZ0)}, 7, 4
    v_mul_u32_u24 {v(W+1)}, 136, {v(W+1)}
    v_and_b32 {v(W+2)}, 63, {v(vZ0)}
    v_add3_u32 {v(W+1)}, {s(sLW)}, {v(W+1)}, {v(W+2)}'''.split('\n')
def chk(): return [f'v_cmp_eq_u64 s[54:55], {s(sNon,2)}, {v(PL+4*j+2,2)}\ns_and_b64 s[56:57], s[54:55], '+('s[56:57]' if j else 'exec') for j in range(7)]
def retry(lab):
    return [f'{lab}_re:','s_mov_b32 s46, 0x100000',f'{lab}_r2:']+pay_load()+['s_waitcnt vmcnt(0)']+chk()+[f's_andn2_b64 s[56:57], exec, s[56:57]\ns_cbranch_scc0 {lab}_got\ns_sub_u32 s46, s46, 1\ns_cbranch_scc0 {lab}_r2\ns_branch {lab}_got']
def z2stat(lab):
    def w(e):
        i=max(j for j,x in enumerate(e.l) if x.startswith(f'buffer_load_dwordx4 {v(PL+24,4)}')); return f's_waitcnt vmcnt({sum(x.startswith("buffer_") for x in e.l[i+1:])})'
    f=[w]+chk()+[f's_andn2_b64 s[56:57], exec, s[56:57]\ns_cbranch_scc1 {lab}_re\n{lab}_got:']
    for j in range(1,7): f+=[f'v_add_f32 {v(PL)}, {v(PL)}, {v(PL+4*j)}',f'v_add_f32 {v(PL+1)}, {v(PL+1)}, {v(PL+4*j+1)}']
    m=A(); meanstd(m,PL,864)
    return f+m.l+[f'v_rcp_f32 {v(PL+1)}, {v(PL+1)}','s_nop 0',f'v_mul_f32 {v(PL)}, {v(PL)}, {v(PL+1)}']
def z2out():
    f=[]
    for j in range(8):
        for r in range(4): f.append(f'v_fma_f32 {v(T+4*j+r)}, {v(T+4*j+r)}, {v(PL+1)}, -{v(PL)}')
        for r in (0,1): f.append(f'v_cvt_pk_bf16_f32 {v(T+4*j+r)}, {v(T+4*j+2*r)}, {v(T+4*j+2*r+1)}')
        f.append(f'ds_write_b64 {v(W)}, {v(T+4*j,2)} offset:{16*j}')
        if j%4==3:
            f+=[f'ds_read_b64_tr_b16 {v(PL+8+2*j-6+4*i+2*r,2)}, {v(W+1)} offset:{i*16*136+r*4*136+16*(j-3)}' for i in (0,1) for r in (0,1)]
    return f,[f'buffer_store_dwordx4 {v(PL+8+8*t+4*i,4)}, {v(vL16)}, {s(sWS,4)}, {s(sZ2a+t)} offen offset:{i*1024}{SC}' for t in (0,1) for i in (0,1)]
def xphase(e,q,stamp,lead):
    XA=16; S=88
    e(f'''v_and_b32 {v(24)}, 31, v0
    v_lshrrev_b32 {v(25)}, 5, v0
    v_and_b32 {v(26)}, 15, v0
    v_xor_b32 {v(26)}, {v(26)}, {v(25)}
    v_lshlrev_b32 {v(26)}, 4, {v(26)}
    v_lshl_add_u32 {v(26)}, {v(24)}, 8, {v(26)}
    v_add_u32 {v(XA)}, {s(sLW)}, {v(26)}
    v_lshrrev_b32 {v(25)}, 3, {v(24)}
    v_mul_u32_u24 {v(25)}, {40960-2048}, {v(25)}
    v_add_u32 {v(25)}, 8192, {v(25)}
    v_mov_b32 {v(27)}, 0x3f803f80''')
    for j in range(1,8): e(f'v_xor_b32 {v(XA+j)}, {32*j}, {v(XA)}')
    for j in range(8): e(f'v_add_u32 {v(32+j)}, {v(25)}, {v(XA+j)}\nv_add_u32 {v(40+j)}, 81920, {v(XA+j)}')
    e(f'''v_lshrrev_b32 v48, 2, v0
    v_lshrrev_b32 v49, 5, v0
    v_xor_b32 v48, v48, v49
    v_and_b32 v48, 1, v48
    v_lshlrev_b32 v48, 4, v48
    v_bfe_u32 v49, v0, 1, 1
    v_bfe_u32 v50, v0, 3, 2
    v_lshl_add_u32 v49, v50, 1, v49
    v_add_u32 v48, v48, v49
    v_and_b32 v49, 1, v0
    v_lshlrev_b32 v49, 4, v49
    v_mov_b32 v50, 0x3f80
    v_lshlrev_b32 v49, v49, v50''')
    for r in range(8): e(f'v_cmp_eq_u32 {s(60+2*r,2)}, {r}, v48')
    for r in range(4): e(f'v_mov_b32 {v(S+r)}, 0')
    for r in range(8): e(f'v_cndmask_b32 {v(80+r)}, 0, v49, {s(60+2*r,2)}')
    def st(p,every):
        for r in range(32):
            if r%every==0: e(q.pop(-1 if p in (4,0,1) else p-2))
            x=v(X+32*p+r); e(f'v_dot2_f32_bf16 {v(S+2*(r&1))}, {x}, v27, {v(S+2*(r&1))}\nv_dot2_f32_bf16 {v(S+1+2*(r&1))}, {x}, {x}, {v(S+1+2*(r&1))}')
    for j in range(8): e(q.pop())
    if 'j' in PFO: e(pf(sWI,17))
    for p in (4,0,1,2,3):
        e(f's_waitcnt vmcnt({q.vm("x%d"%p)})')
        if p==4: stamp(1)
        if p==3: stamp(2)
        for j in range(8): e(f'ds_read_b128 {v(X+32*p+4*j,4)}, {v((32 if p==4 else XA if p<2 else 40)+j)} offset:{40960*(p&1)}')
        if p==4 and lead: e(lead)
        e('s_waitcnt lgkmcnt(0)')
        st(p,4 if p!=3 else 10)
    e(f's_nop 2\nv_add_f32 {v(S)}, {v(S)}, {v(S+2)}\nv_add_f32 {v(S+1)}, {v(S+1)}, {v(S+3)}')
    meanstd(e,S,640)
    e(f'v_rcp_f32 {v(vRstd)}, {v(S+1)}\nv_mov_b32 {v(vStd)}, {v(S+1)}')
    for r in range(16): e(f'v_sub_f32 {v(64+r)}, 0, {v(S)}')
    e(f'''v_mul_f32 {v(vK1)}, {fl(-2.302208198)}, {v(vRstd)}
    v_mul_f32 {v(vK2)}, {v(vRstd)}, {v(vRstd)}
    v_mul_f32 {v(vK2)}, {fl(0.044715)}, {v(vK2)}
    v_mul_f32 {v(vK2)}, {v(vK1)}, {v(vK2)}''')
    for j in range(22):
        for h in (0,1):
            D=16+16*(j%3)
            if j<20: e(f'v_mfma_f32_32x32x16_bf16 {v(D,16)}, {v(80+4*h,4)}, {v(X+8*j+4*h,4)}, {v(64 if h==0 else D,16)}')
            if j<19 and (2*j+h)%5 in (0,2): e(q.pop(3))
            if 'r' in PFO and (j,h)==(9,1): e(pf(sWQ,19))
            if j==19 and h==1:
                e(f's_waitcnt vmcnt({q.vm(0)})\ns_barrier')
                for m in range(DPF): e(rdT(0,m))
            if j<2: e('s_nop 3')
            if j>=2:
                D=16+16*((j-2)%3)+8*h
                for r in range(4): e(f'v_cvt_pk_bf16_f32 {v(X+8*(j-2)+4*h+r)}, {v(D+2*r)}, {v(D+2*r+1)}')
    e(f's_waitcnt lgkmcnt({2*(DPF-1)})'); stamp(3)
def zadd(t,x): return [f'v_add_u32 {v(vZ0+t)}, {x}, {v(vZ0+t)}']
def qadd(x): return [f'v_add_u32 {v(vQM)}, {x}, {v(vQM)}',f'v_add_u32 {v(vQR)}, {x}, {v(vQR)}']
def pf(srd_,n,stride=128):
    return f'''s_mul_i32 {s(sT0)}, {s(sPf)}, {n*stride}
    s_bfm_b64 exec, {n}, 0
    buffer_load_dword v94, v93, {s(srd_,4)}, {s(sT0)} offen
    s_mov_b64 exec, -1'''
def PF1(): return ([pf(sX,20)] if 'x' in PFO else [])+([pf(sWI,17)] if 'i' in PFO else [])+([pf(sWQ,19)] if 'q' in PFO else [])
def PF2():
    return [f'v_lshrrev_b32 v61, 2, v0\nv_mul_u32_u24 v61, {4096-512}, v61\nv_add_u32 v61, v61, v93',pf(52,12,1024).replace('v93','v61'),
    f'''s_mul_i32 {s(sUn)}, {s(sW)}, 192
    s_add_u32 {s(sUn)}, {s(sUn)}, s2
    s_cmp_ge_u32 {s(sUn)}, 470
    s_cbranch_scc1 k1_nou
    s_cmp_lt_u32 {s(sUn)}, 200
    s_cselect_b64 s[52:53], s[56:57], s[58:59]
    s_cselect_b32 s54, 20, 27
    s_mul_i32 s54, s54, 40960
    v_lshrrev_b32 v60, 5, v0
    s_mul_i32 {s(sT0)}, {s(sUn)}, 6554
    s_lshr_b32 {s(sT0)}, {s(sT0)}, 16
    s_mul_i32 {s(sT1)}, {s(sT0)}, 10
    s_sub_u32 {s(sT1)}, {s(sUn)}, {s(sT1)}
    s_mul_i32 s60, {s(sT0)}, 40
    s_mov_b32 s61, 4
    s_mov_b32 s62, 20
    s_mov_b32 s63, 8
    s_cmp_lt_u32 {s(sT0)}, 16
    s_cbranch_scc1 k1_u
    s_lshl_b32 s60, {s(sT0)}, 5
    s_sub_u32 s60, s60, 640
    s_mov_b32 s62, 16
    s_cmp_ge_u32 {s(sT0)}, 20
    s_cbranch_scc1 k1_u
    s_mul_i32 s60, {s(sT0)}, 160
    s_sub_u32 s60, s60, {2560-16}
    s_mov_b32 s61, 40
    s_mov_b32 s62, 80
    s_mov_b32 s63, 20
    k1_u:
    s_mul_i32 s60, s60, 1280
    s_mul_i32 s61, s61, 1280
    s_mul_i32 s62, s62, 1280
    s_lshl_b32 {s(sT1)}, {s(sT1)}, 7
    s_add_u32 s60, s60, {s(sT1)}
    v_mul_u32_u24 v61, s63, v60
    v_bfe_u32 v62, v0, 3, 2
    v_add_u32 v61, v61, v62
    v_mul_u32_u24 v61, 1280, v61
    v_and_b32 v62, 7, v0
    v_lshl_add_u32 v61, v62, 4, v61
    s_add_u32 m0, {s(sLW)}, 122880
    s_add_u32 s64, s60, s61
    buffer_load_dwordx4 v61, s[52:55], s60 offen lds
    s_add_u32 m0, m0, 1024
    s_add_u32 s60, s60, s62
    buffer_load_dwordx4 v61, s[52:55], s64 offen lds
    s_add_u32 m0, m0, 1024
    s_add_u32 s64, s60, s61
    buffer_load_dwordx4 v61, s[52:55], s60 offen lds
    s_add_u32 m0, m0, 1024
    s_nop 0
    buffer_load_dwordx4 v61, s[52:55], s64 offen lds
    k1_nou:''']
def PF3():
    if 'w' not in PFO: return []
    return [f's_mov_b64 s[52:53], s[98:99]\ns_mov_b32 s54, {2048*4096}\ns_mov_b32 s55, 0x00020000\ns_mul_i32 {s(sT0)}, {s(sPf)}, 12288\nbuffer_load_dword v94, v93, s[52:55], {s(sT0)} offen',f's_add_u32 {s(sT0)}, {s(sT0)}, 8192\ns_mov_b32 exec_hi, 0\nbuffer_load_dword v94, v93, s[52:55], {s(sT0)} offen\ns_mov_b32 exec_hi, -1']
def build(stamp_f):
    e=A(); stamp=lambda i: stamp_f(e,i)
    e(f'''s_cmp_ge_u32 s2, 256
    s_cbranch_scc1 k1_end
    s_load_dwordx2 {s(sX,2)}, s[0:1], 0
    s_load_dwordx2 {s(sWQ,2)}, s[0:1], 8
    s_load_dwordx2 {s(sWI,2)}, s[0:1], 32
    s_load_dwordx2 {s(sDB,2)}, s[0:1], 72
    s_load_dwordx2 {s(sWS,2)}, s[0:1], 80
    s_load_dwordx2 s[52:53], s[0:1], 40
    s_load_dwordx2 s[98:99], s[0:1], 40
    s_load_dwordx2 s[56:57], s[0:1], 16
    s_load_dwordx2 s[58:59], s[0:1], 56''')
    if 'c' in PFO: codepf(e,'k1_kernel',4,94)
    e(f'''v_lshrrev_b32 v1, 6, v0
    v_and_b32 v0, 63, v0
    v_readfirstlane_b32 {s(sW)}, v1''')
    stamp(0)
    srd(e,sX,2048*1280); srd(e,sWQ,640*3840); srd(e,sWI,640*3456); srd(e,sDB,256); srd(e,sWS,WSZ); srd(e,52,2048*4096)
    e(f'''s_bfe_u32 {s(sRB)}, s2, 0x20001
    s_lshl_b32 {s(sRB)}, {s(sRB)}, 2
    s_bfe_u32 {s(sT0)}, s2, 0x20003
    s_add_u32 {s(sRB)}, {s(sRB)}, {s(sT0)}
    s_mul_i32 {s(sLW)}, {s(sW)}, 10240
    s_lshl_b32 {s(sT0)}, {s(sRB)}, 2
    s_add_u32 {s(sIt)}, {s(sT0)}, {s(sW)}
    s_mul_i32 {s(sLine)}, {s(sIt)}, {32*1280}
    v_lshrrev_b32 v16, 4, v0
    v_and_b32 v17, 15, v0
    v_xor_b32 v17, v17, v16
    v_lshlrev_b32 v17, 4, v17
    v_mul_u32_u24 v16, 1280, v16
    v_add_u32 v28, v16, v17
    v_xor_b32 v29, 64, v28
    v_xor_b32 v30, 128, v28
    v_xor_b32 v31, 192, v28
    s_lshl_b32 {s(sPf)}, s2, 2
    s_add_u32 {s(sPf)}, {s(sPf)}, {s(sW)}
    v_lshlrev_b32 v93, 7, v0
    s_waitcnt lgkmcnt(0)''')
    def dmaX(p,i):
        l=(i>>1)*40960+8192+(i&1)*1024 if p==4 else p*40960+i*1024
        return [f's_add_u32 m0, {s(sLW)}, {l}',f's_add_u32 {s(sOff)}, {s(sLine)}, {4*i*1280+p*256}',f'buffer_load_dwordx4 {v(28+(i&3))}, {s(sX,4)}, {s(sOff)} offen lds']
    def newq():
        q=DQ()
        for p in (4,0,1,2,3): q.add(f'x{p}',lambda i:dmaX(p,i),8)
        return q,[q.pop() for i in range(8)]
    e(f'''s_lshl_b32 {s(sStR)}, {s(sRB)}, 6
    s_add_u32 {s(sStR)}, {s(sStR)}, {s(sW)}
    s_lshl_b32 {s(sStR)}, {s(sStR)}, 9
    s_add_u32 {s(sStR)}, {s(sStR)}, {ST}
    s_and_b32 {s(sT0)}, s2, 0xe1
    s_or_b32 {s(sN2)}, {s(sT0)}, {s(sW)}
    s_cbranch_scc1 k1_nl
    buffer_load_dword {v(vNon)}, off, {s(sWS,4)}, {s(sStR)} offset:8 sc1
    k1_nl:''')
    e(PF1())
    e(newq()[1])
    e(f'''v_lshlrev_b32 {v(vL16)}, 4, v0
    v_lshrrev_b32 v16, 5, v0
    v_bfe_u32 v17, v0, 2, 2
    v_lshl_add_u32 v16, v16, 3, v17
    v_bfe_u32 v17, v0, 4, 1
    v_and_b32 v18, 3, v0
    v_lshl_add_u32 v19, v17, 2, v18
    v_lshlrev_b32 {v(vZ0)}, 3, v19
    v_lshl_add_u32 {v(vZ0)}, v16, 7, {v(vZ0)}
    v_and_b32 v20, 8, v0
    v_lshl_add_u32 {v(vZ0)}, v20, 3, {v(vZ0)}
    v_xor_b32 {v(vZ1)}, 64, {v(vZ0)}
    v_mul_u32_u24 v16, 320, v16
    v_add_u32 v16, 81920, v16
    v_mul_u32_u24 v20, 160, v17
    v_lshl_add_u32 v20, v18, 3, v20
    v_add_u32 {v(vQM)}, v16, v20
    v_mul_u32_u24 v19, 40, v19
    v_add3_u32 {v(vQR)}, v16, v19, 32
    v_lshrrev_b32 v16, 3, v0
    v_mul_u32_u24 v16, 3456, v16
    v_and_b32 v18, 7, v0
    v_lshlrev_b32 v17, 2, v17
    v_xor_b32 v18, v18, v17
    v_lshl_add_u32 {v(vDZ)}, v18, 4, v16
    s_lshr_b32 {s(sT0)}, s2, 5
    s_and_b32 {s(sT1)}, s2, 1
    s_mul_i32 {s(sB0)}, {s(sW)}, {80*3456}
    s_mul_i32 {s(sZa)}, {s(sIt)}, {2*TL}
    s_add_u32 {s(sZa)}, {s(sZa)}, {ACT}
    v_bfe_u32 v17, v0, 4, 1
    v_mul_u32_u24 v17, {TL-256}, v17
    v_and_b32 v18, 32, v0
    v_mad_i32_i24 v17, v18, -8, v17
    v_add_u32 {v(vL2)}, v17, {v(vL16)}
    s_lshl_b32 {s(sZ2a)}, {s(sIt)}, 11
    s_add_u32 {s(sZ2a)}, {s(sZ2a)}, {Z2T-27*131072}
    s_cmp_ge_u32 {s(sT0)}, 6
    s_cbranch_scc1 k1_B''')
    for j in range(5):
        e(f'''v_add_u32 v16, {64*j}, v0
        v_mul_u32_u24 v17, 3277, v16
        v_lshrrev_b32 v17, 16, v17
        v_mul_u32_u24 v17, {3840-320}, v17
        v_lshl_add_u32 {v(vD+j)}, v16, 4, v17''')
    e(f'''s_mul_i32 {s(sA)}, {s(sT1)}, 6
    s_add_u32 {s(sA)}, {s(sA)}, {s(sT0)}
    s_mov_b32 {s(sCi)}, {s(sA)}
    s_add_u32 {s(sT0)}, {s(sA)}, 15
    s_lshl_b32 {s(sT1)}, {s(sT0)}, 18
    s_add_u32 {s(sZ2a)}, {s(sZ2a)}, {s(sT1)}
    s_add_u32 {s(sZ2b)}, {s(sZ2a)}, 131072
    s_lshl_b32 {s(sT0)}, {s(sT0)}, 7
    s_add_u32 {s(sB0)}, {s(sB0)}, {s(sT0)}
    s_add_u32 {s(sB1)}, {s(sB0)}, {320*3456}
    s_mul_i32 {s(sQB)}, {s(sW)}, {32*3840}
    s_mul_i32 {s(sT0)}, {s(sA)}, 320
    s_add_u32 {s(sQB)}, {s(sQB)}, {s(sT0)}''')
    q=newq()[0]
    q.add(0,lambda i:dmaZ(0,i,sB0),10); q.add(1,lambda i:dmaZ(1,i,sB1),10)
    for j in range(5): q.add(2+j,lambda i:dmaQ((2+j)&3,i,j),10)
    xphase(e,q,stamp,f'''s_cmp_lg_u32 {s(sN2)}, 0
    s_cbranch_scc1 k1_nl2
    v_add_u32 {v(vNon)}, 1, {v(vNon)}
    v_max_u32 {v(vNon)}, 1, {v(vNon)}
    s_lshl_b32 {s(sT1)}, {s(sRB)}, 4
    s_mov_b64 exec, 1
    buffer_store_dword {v(vNon)}, off, {s(sDB,4)}, {s(sT1)} sc1
    s_mov_b64 exec, -1
    k1_nl2:''')
    dense=lambda g:(lambda n: g(n) if n%5 in (1,3) else None)
    sparse=lambda g:(lambda n: g if n%3==1 and n<35 else None)
    def P0(): phase(e,40,mfT(0),lambda m:rdT(m//40,m),{15:((1,),zadd(0,40960)+[non_load()])},q,dense(lambda n:3),img_addr()+pay_addr(),4)
    P0(); f=gelu(0)
    phase(e,40,mfT(1),lambda m:rdT(1,m) if m<40 else rdQ(m),{15:(63,zadd(1,40960)),35:((2,),[])},q,lambda n:(4 if n>15 else 3) if n%3==1 else None,f)
    stamp(4)
    f+=gelu(1)+stat1(0,True)+stat1(1,False)+publish('k1_na')
    phase(e,40,mfQ(0),rdQ,{35:((3,),qadd(40960))},q,sparse(5),f); stamp(8)
    phase(e,40,mfQ(1),rdQ,{35:((4,),qadd(-122880)+PF2())},q,sparse(6),f); stamp(9)
    assert not q.items
    f+=[f'''s_lshr_b32 {s(sTy)}, {s(sA)}, 2
    s_cmp_eq_u32 {s(sTy)}, 0
    s_cselect_b32 {s(sSc)}, {fl(0.32259641858)}, 1.0
    s_mov_b32 {s(sQB)}, {KV}''',f'''s_and_b32 {s(sT0)}, {s(sA)}, 3
    s_mul_i32 {s(sT0)}, {s(sT0)}, {8*HS}
    s_add_u32 {s(sQB)}, {s(sQB)}, {s(sT0)}''',f'''s_lshr_b32 {s(sT0)}, {s(sIt)}, 1
    s_mul_i32 {s(sT0)}, {s(sT0)}, {SS}
    s_add_u32 {s(sQB)}, {s(sQB)}, {s(sT0)}''',f'''s_and_b32 {s(sB0)}, {s(sW)}, 1
    s_lshl_b32 {s(sB1)}, {s(sUn)}, 12
    s_add_u32 {s(sB1)}, {s(sB1)}, {WF}''',f'v_mul_f32 v63, {s(sSc)}, {v(vRstd)}',
    f'v_add_u32 {v(vQM+2)}, 81920, {v(vQM)}',f'v_add_u32 {v(vQR+2)}, 81920, {v(vQR)}',
    'v_lshrrev_b32 v60, 4, v0','v_bfe_u32 v61, v0, 2, 2','v_lshl_add_u32 v60, v60, 3, v61','v_and_b32 v61, 3, v0','v_lshlrev_b32 v61, 3, v61',
    'v_lshl_add_u32 v60, v60, 7, v61',f's_add_u32 {s(sT0)}, {s(sLW)}, 122880\nv_add_u32 v62, {s(sT0)}, v60','v_and_b32 v60, 31, v0','v_lshrrev_b32 v61, 5, v0']
    TO=(4,0,1,2,3)
    def rdL(m): m=min(m,72+m%8); return rdQ(m,m%8,TO[m//16],2*((m>>3)&1))
    phase(e,40,mfQ(2),lambda m:rdQ(m) if m<40 else rdL(m-40),{35:(0,qadd(40960))},fill=f); stamp(10)
    assert not f
    e(f's_cmp_eq_u32 {s(sTy)}, 2\ns_cbranch_scc1 k1_V')
    E,P,VR,RL=96,112,128,144
    for isV in (0,1):
        L='k1_v' if isV else 'k1_q'
        f=[f's_cmp_ge_u32 {s(sUn)}, 470\ns_cbranch_scc1 {L}a\n'+'\n'.join(f'ds_read_b64_tr_b16 {v(RL+4*j+2*r,2)}, v62 offset:{32*j+512*r}' for j in range(4) for r in (0,1))+f'\n{L}a:']
        if isV:
            e('k1_V:')
            f+=[f's_lshl_b32 {s(sT0)}, {s(sB0)}, 11\ns_add_u32 {s(sQB)}, {s(sT0)}, {s(sQB)}','v_lshlrev_b32 v61, 9, v61','v_bfe_u32 v64, v0, 4, 1',f'v_mul_u32_u24 v64, {4*HS}, v64','v_and_b32 v65, 15, v0',
                'v_lshl_add_u32 v64, v65, 4, v64','v_add_u32 v64, v64, v61','v_lshrrev_b32 v65, 2, v60',f'v_mul_u32_u24 v65, {HS}, v65','v_and_b32 v60, 3, v0','v_lshl_add_u32 v65, v60, 4, v65','v_add_u32 v65, v65, v61',
                'v_lshrrev_b32 v56, 4, v0','v_lshlrev_b32 v56, 8, v56',f'v_add_u32 v56, v56, {v(vL16)}']+[f'v_mov_b32 {v(68+r)}, 0x3f803f80' for r in range(4)]
            f+=[f's_add_u32 {s(sT0)}, {s(sQB)}, {p*HS+2048+256}\ns_mov_b32 exec_lo, 0xfff0fff0\ns_mov_b32 exec_hi, 0xfff0fff0\nbuffer_store_dwordx4 v[68:71], v56, {s(sWS,4)}, {s(sT0)} offen{SC}\ns_mov_b64 exec, -1' for p in range(8)]
        else:
            f+=[f's_lshl_b32 {s(sT0)}, {s(sB0)}, 8\ns_add_u32 {s(sDel)}, {s(sT0)}, {s(sQB)}',f's_lshl_b32 {s(sT0)}, {s(sB0)}, 10\ns_add_u32 {s(sQB)}, {s(sT0)}, {s(sQB)}',f'v_mul_u32_u24 v61, {HS}, v61','v_lshl_add_u32 v61, v60, 3, v61',f'''s_add_u32 {s(sDel)}, {s(sDel)}, 6144
                s_mov_b32 {s(sLine)}, {HS}
                s_mov_b32 {s(sN2)}, {2*HS}
                s_cmp_lg_u32 {s(sTy)}, 0
                s_cbranch_scc1 k1_k
                s_lshl_b32 {s(sT0)}, {s(sA)}, 12
                s_add_u32 {s(sQB)}, {s(sZa)}, {s(sT0)}
                s_lshr_b32 {s(sT0)}, {s(sT0)}, 2
                s_add_u32 {s(sDel)}, {s(sZa)}, {s(sT0)}
                s_add_u32 {s(sDel)}, {s(sDel)}, 16384
                s_mov_b32 {s(sLine)}, 512
                s_mov_b32 {s(sN2)}, 256
                v_lshrrev_b32 v61, 5, v0
                v_mul_u32_u24 v61, 248, v61
                v_sub_u32 v61, {v(vL2)}, v61
                s_branch k1_k2
                k1_k:
                v_mov_b32 {v(vL2)}, {v(vL16)}
                k1_k2:''',('@',5)]
        f+=[f's_cmp_ge_u32 {s(sUn)}, 470\ns_cbranch_scc1 {L}b\n'+'\n'.join(f'buffer_store_dwordx4 {v(RL+4*j,4)}, {v(vL16)}, {s(sWS,4)}, {s(sB1)} offen offset:{1024*j}{SC}' for j in range(4))+f'\n{L}b:']
        f+=[('@',PAYAT)]+pay_load()+PF3()
        zo,zs=z2out(); late=[]
        for k,p in enumerate(TO):
            Pk=P+8*(k&1); Vk=VR+8*(k&1)
            f+=[('@',16*k+19)]+[f'v_accvgpr_read_b32 {v(E+r)}, {a(AQ+16*p+r)}' for r in range(16)]+late; late=[]
            for r in range(8): f+=[f'v_mul_f32 {v(E+2*r)}, {v(E+2*r)}, v63',f'v_mul_f32 {v(E+2*r+1)}, {v(E+2*r+1)}, v63',f'v_cvt_pk_bf16_f32 {v(Pk+r)}, {v(E+2*r)}, {v(E+2*r+1)}']
            if isV:
                o=4352+64*(k&1)
                f+=[f'ds_write_b64 {v(W)}, {v(Pk+2*j,2)} offset:{o+16*j}' for j in range(4)]
                f+=[f'ds_read_b64_tr_b16 {v(Vk+4*i+2*r,2)}, {v(W+1)} offset:{o+i*16*136+r*4*136}' for i in (0,1) for r in (0,1)]
                late=[f's_add_u32 {s(sOff)}, {s(sQB)}, {(p*HS if p<4 else 256)+2048}']+[f'buffer_store_dwordx4 {v(Vk+4*i,4)}, {v(64 if p<4 else 65)}, {s(sWS,4)}, {s(sOff)} offen offset:{1024*i}{SC}' for i in (0,1)]
            elif p<4: f+=[f's_mul_i32 {s(sOff)}, {s(sLine)}, {p+4*h}\ns_add_u32 {s(sOff)}, {s(sQB)}, {s(sOff)}\nbuffer_store_dwordx4 {v(Pk+4*h,4)}, {v(vL2)}, {s(sWS,4)}, {s(sOff)} offen{SC}' for h in (0,1)]
            else: f+=[f's_mul_i32 {s(sOff)}, {s(sN2)}, {j}\ns_add_u32 {s(sOff)}, {s(sDel)}, {s(sOff)}\nbuffer_store_dwordx2 {v(Pk+2*j,2)}, v61, {s(sWS,4)}, {s(sOff)} offen{SC}' for j in range(4)]
            if k==1: f+=z2stat(L)
            if k==2: f+=zo[:32]; late+=zs[:2]
            if k==3: f+=zo[32:]; late=[('+',99)]+late+zs[2:]
        f+=[('+',99)]+late
        phase(e,80,lambda n:f'v_mfma_f32_32x32x16_bf16 {a(AQ+16*TO[n//16],16)}, {a(FR+4*(n%8),4)}, {v(X+96+4*(n%16),4)}, {a(AQ+16*TO[n//16],16)}',rdL,{},fill=f,bud=BL)
        stamp(5); print('# A tail items',len(f)); flush(e,f)
        if not isV: e('s_branch k1_fin')
    e(f'k1_fin:\ns_cmp_ge_u32 {s(sPf)}, 32\ns_cbranch_scc1 k1_f2\ns_lshl_b32 {s(sT0)}, {s(sPf)}, 12\ns_add_u32 {s(sT0)}, {s(sT0)}, 0x1E80000\nv_lshlrev_b32 v2, 6, v0\nv_mov_b32 v3, 0\nbuffer_store_dword v3, v2, {s(sWS,4)}, {s(sT0)} offen\nk1_f2:'); stamp(7); stamp(-1)
    e('k1_end:\ns_endpgm')
    for l in ('k1_q','k1_v','k1_b'): e(retry(l))
    for l in ('k1_na','k1_nb','k1_nc'): e(non_spin(l))
    e(f'''k1_B:
    s_lshl_b32 {s(sA)}, {s(sT1)}, 1
    s_add_u32 {s(sA)}, {s(sA)}, {s(sT0)}
    s_sub_u32 {s(sA)}, {s(sA)}, 6
    s_mul_i32 {s(sLn)}, {s(sA)}, 0x04040404
    s_sub_u32 {s(sLn)}, {s(sLn)}, 0x00010203
    s_cmp_eq_u32 {s(sA)}, 0
    s_cselect_b32 {s(sN2)}, 2, 3
    s_cselect_b32 {s(sLn)}, 0x0d0e, {s(sLn)}
    s_add_u32 {s(sTy)}, {s(sZa)}, 20480
    s_mov_b32 {s(sUn)}, {s(sB0)}
    s_and_b32 {s(sT0)}, {s(sLn)}, 0xff
    s_lshl_b32 {s(sT0)}, {s(sT0)}, 7
    s_add_u32 {s(sB0)}, {s(sUn)}, {s(sT0)}
    s_add_u32 {s(sB1)}, {s(sB0)}, {320*3456}
    s_bfe_u32 {s(sT0)}, {s(sLn)}, 0x80008
    s_lshl_b32 {s(sT0)}, {s(sT0)}, 7
    s_add_u32 {s(sQB)}, {s(sUn)}, {s(sT0)}
    s_add_u32 {s(sSc)}, {s(sQB)}, {320*3456}''')
    q=newq()[0]
    for j,bs in enumerate((sB0,sB1,sQB,sSc)): q.add(j,lambda i:dmaZ(j,i,bs),10)
    xphase(e,q,stamp,None)
    P0(); assert not q.items
    stamp(4)
    e(f'''s_mov_b32 {s(sIt)}, 0
    s_mov_b32 {s(sDel)}, 40960
    s_mov_b32 {s(sLine)}, 0
    s_branch k1_pb
    k1_loop:''')
    q.add(5,lambda i:dmaZ(s(sSc),i,sB1),10); f=gelu(1,sZb); stamp(8)
    phase(e,40,mfT(0),lambda m:rdT(m//40,m),{1:(None,zadd(1,s(sDel))+[f'v_xor_b32 {v(vZ1)}, {s(sCi)}, {v(vZ1)}']),15:(None,zadd(0,40960))},q,lambda n:5 if n<3 or n%4==1 else None,f,BB)
    flush(e,f); assert not q.items
    e(f'''s_sub_u32 {s(sDel)}, -81920, {s(sDel)}
    s_sub_u32 {s(sLine)}, 81920, {s(sLine)}
    s_lshl_b32 {s(sT0)}, {s(sA)}, 2
    s_add_u32 {s(sT0)}, {s(sT0)}, {s(sIt)}
    s_cmp_eq_u32 {s(sT0)}, 1
    s_cbranch_scc1 k1_s1
    k1_pb:
    s_and_b32 {s(sT0)}, {s(sLn)}, 0xff
    s_lshl_b32 {s(sZa)}, {s(sT0)}, 11
    s_add_u32 {s(sZa)}, {s(sZa)}, {s(sTy)}
    s_add_u32 {s(sZb)}, {s(sZa)}, 1024
    s_cmp_eq_u32 {s(sT0)}, 13
    s_cselect_b32 {s(sZb)}, {s(sZa)}, {s(sZb)}
    s_cmp_eq_u32 {s(sT0)}, 14
    s_cselect_b32 {s(sZb)}, {OOR}, {s(sZb)}
    s_cmp_ge_u32 {s(sT0)}, 13
    s_cselect_b32 {s(sZa)}, {OOR}, {s(sZa)}
    s_cselect_b32 {s(sCi)}, 64, 0''')
    q.add(4,lambda i:dmaZ(s(sLine),i,sB0),10); f=gelu(0,sZa); stamp(9)
    mid=f'''s_bfe_u32 {s(sT0)}, {s(sLn)}, 0x80010
    s_lshl_b32 {s(sT0)}, {s(sT0)}, 7
    s_add_u32 {s(sB0)}, {s(sUn)}, {s(sT0)}
    s_add_u32 {s(sB1)}, {s(sB0)}, {320*3456}
    s_add_u32 {s(sSc)}, {s(sLine)}, 40960
    s_add_u32 {s(sT0)}, {s(sIt)}, 2
    s_cmp_le_u32 {s(sT0)}, {s(sN2)}
    s_cselect_b32 {s(sWI+2)}, {640*3456}, 0
    s_lshr_b32 {s(sLn)}, {s(sLn)}, 8'''
    phase(e,40,mfT(1),lambda m:rdT(1-m//40,m),{0:(None,[mid]),1:(None,zadd(0,s(sDel))+[f'v_xor_b32 {v(vZ0)}, {s(sCi)}, {v(vZ0)}']),15:(63,zadd(1,40960)),35:(10,[])},q,lambda n:4 if n>15 and n%2==0 else None,f,BB)
    flush(e,f); assert not q.items; stamp(10)
    e(f'''s_cmp_lg_u32 {s(sCi)}, 0
    s_cbranch_scc1 k1_s0
    k1_next:
    s_add_u32 {s(sIt)}, {s(sIt)}, 1
    s_cmp_le_u32 {s(sIt)}, {s(sN2)}
    s_cbranch_scc1 k1_loop''')
    stamp(5)
    e(f's_cmp_lg_u32 {s(sA)}, 0\ns_cbranch_scc1 k1_nop'); e(pay_load()); e('k1_nop:')
    flush(e,gelu(1,sZb))
    e(f's_cmp_lg_u32 {s(sA)}, 0\ns_cbranch_scc1 k1_fin'); stamp(6)
    flush(e,z2stat('k1_b'))
    e(f's_add_u32 {s(sZ2a)}, {s(sZ2a)}, {28*131072}\ns_add_u32 {s(sZ2b)}, {s(sZ2a)}, 131072')
    zo,zs=z2out()
    for r in range(32): e(f'v_accvgpr_read_b32 {v(T+r)}, {a(ASV+r)}')
    flush(e,zo+[('+',0)]+zs)
    e(f's_sub_u32 {s(sZ2a)}, {s(sZ2a)}, 131072')
    for r in range(16): e(f'v_accvgpr_read_b32 {v(T+r)}, {a(ASV+32+r)}')
    flush(e,zo[:32]+[('+',0)]+zs[:2])
    e('s_branch k1_fin')
    sv=lambda t,o:[f'v_accvgpr_write_b32 {a(ASV+o+r)}, {v(T+16*t+r)}' for r in range(16)]
    e('k1_s1:'); e(stat1(1,False)); e(f's_mov_b32 {s(sCi)}, 12'); e(publish('k1_nb')); e(sv(1,16)); e('s_branch k1_pb')
    e('k1_s0:'); e(stat1(0,True)); e(f's_cmp_eq_u32 {s(sIt)}, 0\ns_cbranch_scc0 k1_s2'); e(sv(0,0)); e('s_branch k1_next')
    e(f'k1_s2:\ns_mov_b32 {s(sCi)}, 13'); e(publish('k1_nc')); e(sv(0,32)); e(f's_mov_b32 {s(sCi)}, 64\ns_branch k1_next')
    return e
```

```python
from lib import *
import os
LEAD=int(os.environ.get('LEAD','3')); NPF=int(os.environ.get('NPF','1'))
sWS,sDM,sSP,sX,sBS,sO=4,8,12,16,20,60
FL=0x1E80000; SC=' sc1'; OOR='0xf0000000'
sW,sH,sQB,sTB,sFB,sT0,sT1,sT2,sKV,sZ,sSo,sMk,sMz,sMw,sIt,sU0,sU1,sUn,sWq,sKh,sSl,sSt,sLim=range(24,47)
vL16,vA,vK,vR,vB0,vB1,vDW0,vDW1,vIdx,vBs,vT=1,2,3,4,5,6,7,8,9,10,11
SA,SB,O0,O1,G0,G1=16,32,48,64,80,96
QM,QR,KM,KR,V0,V1,GA0,GA1,GBa,Z=112,120,124,128,132,136,140,144,148,152
sWf,sFl,sAo,sOo,sNk=47,48,32,36,49
vL4=172; vSt=173; sUa,sPfW=64,65; WS_=[176,196,216,236,152,112,132]; AR,AC,XR=16,72,4
LK,LZ,LW=0,7168,15360
def dma(j,slot):
    o=slot*32768
    if j==0: return [f's_add_u32 m0, {s(sMw)}, {o}', None, f'buffer_load_dwordx4 {v(vDW0)}, {s(sSP,4)}, {s(sSo)} offen lds']
    if j==1: return [f's_add_u32 m0, {s(sMw)}, {o+1024}', None, f'buffer_load_dwordx4 {v(vDW1)}, {s(sSP,4)}, {s(sSo)} offen lds']
    if j==2: return [f's_add_u32 m0, {s(sMz)}, {o}', f's_add_u32 {s(sSo)}, {s(sSo)}, {s(sSt)}', f'buffer_load_dwordx4 {v(vL16)}, {s(sDM,4)}, {s(sZ)} offen lds']
    return [f's_add_u32 m0, {s(sMk)}, {o}', f's_add_u32 {s(sZ)}, {s(sZ)}, 4096', f'buffer_load_dwordx4 {v(vL16)}, {s(sDM,4)}, {s(sKV)} offen lds']
def em(e,d,alt='s_nop 0'): e([d[0],d[1] or alt,d[2]])
def mf(D,Aa,B,C=None): return f'v_mfma_f32_32x32x16_bf16 {v(D,16)}, {v(Aa,4)}, {v(B,4)}, '+(C or v(D,16))
def mf8(D,Aa,B): return f'v_mfma_f32_32x32x8_bf16 {v(D,16)}, {v(Aa,2)}, {v(B,2)}, {v(D,16)}'
def pv(D,Aa,P): return f'v_smfmac_f32_32x32x32_bf16 {v(D,16)}, {v(Aa,4)}, {v(P,8)}, {v(vIdx)}'
def rd(D,ad,off): return f'ds_read_b128 {v(D,4)}, {v(ad)} offset:{off}'
NOG=int(os.environ.get('NOG','0')); WT=int(os.environ.get('WT','7'))
NA,NB,BR,PAD,PA0,RO=[int(os.environ.get(x,'0')) for x in ('NA','NB','BR','PAD','PA0','RO')]
RO=RO or 2; NX=[int(c) for c in os.environ.get('NX','444772')]; NIT=16-len(NX)//2
PRI=os.environ.get('PRI','0')
ABL=os.environ.get('ABL','')
def wld(j,n): return ['s_nop 0'] if 'w' in ABL else ([f's_add_u32 {s(sWf)}, {s(sWf)}, 40960'] if n==0 else [])+[f'buffer_load_dwordx4 {v(WS_[j]+4*n,4)}, {v(vL16 if n<4 else vL4)}, {s(sWS,4)}, {s(sWf)} offen offset:{(n&3)*1024}']
def pp_(e,par,grp,pe=0,xl=None,vm=4,nx=0):
    c=par*32768; n=(1-par)*32768; dp=1-par; last=pe==31
    if WT and not par and not pe: vm=5
    mid,hi,lo='s_setprio 1','s_setprio 2','s_setprio 0'
    def ex(S):
        for r in range(16): e(f'v_exp_f32 {v(S+r)}, {v(S+r)}')
    order=[5,8,10,0,11,9,1,3] if pe<=28 else [2,4,0,5,6,7,8] if last else [2,6,4,7,10,5,8,0,11]
    def X(p):
        if xl and p in order[:nx]: e(xl.pop(0))
    def D(j,p,alt='s_nop 0'): em(e,dma(j,dp),alt) if pe<=28 else X(p)
    def N(x):
        if not last: e(x)
    wr=lambda b,j: f'ds_write_b128 v12, {v(b+4*j,4)} offset:{1024*j}'
    bar=f's_waitcnt vmcnt({vm})\ns_barrier' if not last else ''
    if grp: e(bar)
    ex(SA)
    if par:
        for r in (vK,vR,vB0): N(f'v_xor_b32 {v(r)}, 0x10000, {v(r)}')
    if not grp: e(bar)
    e(mid); e('s_waitcnt lgkmcnt(2)')
    e(mf(SB,KM,QM+4,'0')); e(hi); X(0)
    e(mf8(SB,KR,QR+2)); N(rd(KM,vK,n)); N(f'ds_read_b64 {v(KR,2)}, {v(vR)} offset:{n}'); X(1)
    if WT and par and not pe: e(f's_cmp_ge_u32 {s(sIt)}, {NIT-WT}\ns_cselect_b32 {s(sT0)}, {s(sPfW)}, {OOR}\ns_add_u32 {s(sPfW)}, {s(sPfW)}, 40960\nbuffer_load_dword v15, v14, {s(sWS,4)}, {s(sT0)} offen')
    e(mf(G0,GA0,GBa)); e(rd(GA0,vA,c+LZ+1024)); D(0,2)
    e(mf(G1,GA1,GBa)); e(f's_waitcnt lgkmcnt({1 if last else 3})'); e(rd(GA1,vA,c+LZ+4096+1024)); e(rd(GBa,vB1,c)); X(3)
    e(pv(O0,V0,SA)); D(1,4,f's_add_u32 {s(sKV)}, {s(sKV)}, {SS}')
    e(pv(O0,V1,SA+8)); X(5); last and e('s_nop 1'); e(lo)
    ex(SB)
    if par:
        for r in (vA,vB1): N(f'v_xor_b32 {v(r)}, 0x10000, {v(r)}')
    e(mid); e('s_waitcnt lgkmcnt(0)')
    if last:
        if grp:
            e(pv(O1,V0,SB)); e(hi); e([wr(O0,0),wr(O0,1)]); X(6); e(pv(O1,V1,SB+8)); e([wr(O0,2),wr(O0,3)]); X(7)
            e(mf(G0,GA0,GBa)); X(8); e(mf(G1,GA1,GBa)); e('s_nop 7'); e([wr(O0,j) for j in range(4,8)])
        else:
            e(mf(G0,GA0,GBa)); e(hi); X(6); e(mf(G1,GA1,GBa)); X(7); e(pv(O1,V0,SB)); X(8); e('s_nop 8'); e([wr(G0,0),wr(G0,1)])
            e(pv(O1,V1,SB+8)); e([wr(G0,j) for j in range(2,8)])
        e(lo); return
    e(mf(SA,KM,QM,'0')); e(hi); D(2,6)
    e(mf8(SA,KR,QR)); D(3,7)
    e(mf(G0,GA0,GBa)); e(rd(GA0,vA,n+LZ))
    if dp and pe<28:
        for r in (sMk,sMz,sMw): e(f's_xor_b32 {s(r)}, {s(r)}, 0x10000')
    X(8)
    e(mf(G1,GA1,GBa)); e(rd(GA1,vA,n+LZ+4096)); e(rd(GBa,vB0,n))
    if dp and not pe: e(f's_cmp_lt_u32 {s(sIt)}, {s(sLim)}\ns_cselect_b32 {s(sSP+2)}, {s(sSP+2)}, 0')
    X(9)
    e(pv(O1,V0,SB)); e(rd(V0,vA,n+2048)); X(10)
    if par and not pe: e(f's_add_u32 {s(sIt)}, {s(sIt)}, 1\n'+(f's_cmp_eq_u32 {s(sIt)}, 33\ns_cbranch_scc1 k2_end\n' if RO&(2<<grp) else '')+f's_cmp_lt_u32 {s(sIt)}, {NIT}')
    e(pv(O1,V1,SB+8)); e(rd(V1,vA,n+3072)); X(11); e(lo)
PN=os.environ.get('PN','000000000000')
def pp(e,par,grp,*a,nog=0):
    m=A(); pp_(m,par,grp,*a); k=0
    if nog: m.l=[x.replace('lgkmcnt(3)','lgkmcnt(2)') for x in m.l if not any(v(r,4) in x for r in (GA0,GA1,GBa))]
    for x in m.l:
        if 'mfma' in x:
            d=int(PN[(k-1)%12+(12*par if len(PN)>12 else 0)],16) if k%6 else 0
            if d==15: (k==11 and par and not a) or e(f's_cmp_eq_u32 {s(sIt)}, 33\ns_cbranch_scc1 k2_end')
            elif d: e(f's_nop {d-1}')
            k+=1
        e(x)
def misc(grp):
    f=[f'''s_lshl_b32 {s(sT0)}, {s(sW)}, 13
    v_add_u32 v12, {s(sT0)}, {v(vL16)}
    v_xor_b32 v13, 0x8000, v12
    v_add_u32 {v(vL4)}, 4096, {v(vL16)}''']
    if not grp:
        return f+[f'''s_mov_b32 s50, {fl(2.0**-64)}
        s_mov_b32 s51, {fl(2.0**64)}
        s_lshl_b32 {s(sFl)}, {s(sQB)}, 6
        s_add_u32 {s(sFl)}, {s(sFl)}, {s(sH)}
        s_lshl_b32 {s(sFl)}, {s(sFl)}, 6
        s_add_u32 {s(sFl)}, {s(sFl)}, {FL}''']
    f+=[f'''s_lshl_b32 {s(sTB)}, {s(sTB)}, 2
    s_add_u32 {s(sTB)}, {s(sTB)}, {s(sWq)}
    s_lshr_b32 {s(sFl)}, {s(sTB)}, 1
    s_lshl_b32 {s(sFl)}, {s(sFl)}, 5
    s_add_u32 {s(sFl)}, {s(sFl)}, {s(sFB)}
    s_lshl_b32 {s(sFl)}, {s(sFl)}, 1
    s_and_b32 {s(sT0)}, {s(sTB)}, 1
    s_add_u32 {s(sFl)}, {s(sFl)}, {s(sT0)}
    s_lshl_b32 {s(sFl)}, {s(sFl)}, 6
    s_add_u32 {s(sFl)}, {s(sFl)}, {FL+2048}''',f'''s_mul_i32 {s(sU0)}, {s(sTB)}, {2*TL}
    s_lshl_b32 {s(sT0)}, {s(sFB)}, 11
    s_add_u32 {s(sU0)}, {s(sU0)}, {s(sT0)}
    s_add_u32 {s(sU0)}, {s(sU0)}, {ACT+20480}
    s_cmp_eq_u32 {s(sSl)}, 7
    s_cselect_b32 {s(sU0)}, {OOR}, {s(sU0)}
    s_cselect_b32 {s(sFl)}, {OOR}, {s(sFl)}
    s_cmp_eq_u32 {s(sFB)}, 13
    s_cselect_b32 {s(sU1)}, {OOR}, {s(sU0)}
    s_lshl_b32 {s(sT1)}, {s(sTB)}, 6
    v_and_b32 v14, 31, v0
    v_lshlrev_b32 v14, 1, v14
    buffer_load_ushort {v(vBs)}, v14, {s(sBS,4)}, {s(sT1)} offen''']
    return f+[f'buffer_load_dwordx4 {v(Z+4*j,4)}, {v(vSt)}, {s(sWS,4)}, {s(sU0+(j>>1))} offen offset:{512*j}' for j in range(4)]
def peel(e,grp,stamp):
    stamp(5)
    f=misc(grp); f=f[:1]+[wld(j,n) for j in range(5-grp) for n in range(5)]+f[1:]
    if grp: f=f[:9]+f[21:]+f[9:21]
    ends=[0,5 if WT else 4]
    for k,nx in enumerate(NX):
        n0=len(e.l); pe=32-len(NX)+k
        pp(e,k&1,grp,pe,f,ends[-2]+ends[-1] if k==0 else tot-mark[-2],nx)
        if k==0: tot=0; mark=[0]
        ops=[x for x in e.l[n0:] if x.startswith('buffer_')]
        mark.append(tot+max([i+1 for i,x in enumerate(ops) if x.endswith(' lds')]+[0])); tot+=len(ops)
        if pe==29: stamp(6)
    assert not f,len(f)
LB=(65536,0); RS=336; ASC=os.environ.get('ASC',' sc1'); ROT=int(os.environ.get('ROT','1')); BJ=int(os.environ.get('BJ','1')); PUT=int(os.environ.get('PUT','3')); FJ=int(os.environ.get('FJ','4'))
def tail(e,nk,own,stamp):
    for j in range(5,nk):
        for n in range(5): e(wld(j,n))
    if own:
        for i in range(4): e(f'buffer_load_dwordx2 {v(XR+2*i,2)}, v3, {s(sX,4)}, {s(sOo+i)} offen')
    L=f'k2_p{nk}{own}'
    e(f'''s_mov_b64 exec, s[52:53]
    {L}:
    buffer_load_dword v14, v13, {s(sWS,4)}, {s(sT1)} offen{SC}
    s_sub_u32 {s(sSt)}, {s(sSt)}, 1
    s_cbranch_scc1 {L}x
    s_waitcnt vmcnt(0)
    v_cmp_eq_u32 vcc, 0, v14
    s_cbranch_vccnz {L}
    {L}x:
    s_mov_b64 exec, -1'''); stamp(10)
    q=[]
    def ald(i,j): q.append((i,j)); e(f'buffer_load_dwordx4 {v(AR+28*(i&1)+4*j,4)}, {v(vL16 if j<4 else vL4)}, {s(sWS,4)}, {s(sAo+i)} offen offset:{(j&3)*1024}{ASC}')
    for i in (0,1):
        for j in range(nk): ald(i,j)
    Y=132; S=(40,68,12)
    def rds(): e([f'ds_read_b128 {v(Y+4*k if k<5 else S[k-5],4)}, v2 offset:{(k+3)%8*16*RS}' for k in range(8)]+['v_xor_b32 v2, 0x10000, v2'])
    def fin(i):
        E=Y+4; w=lambda k:[f's_waitcnt lgkmcnt({k})'] if i==3 else []
        p2=lambda op,d,x,y,z=None: [f'v_pk_{op}_f32 {v(d+2*h,2)}, {v(x+2*h,2)}, '+(y if isinstance(y,str) else v(y+2*h,2))+(f', {v(z+2*h,2)}' if z else '') for h in (0,1)]
        if i<3: p2=lambda op,d,x,y,z=None: [f'v_{op}_f32 {v(d+h)}, '+(y[:4].replace('[','') if isinstance(y,str) else v(y+h))+f', {v(x+h)}'+(f', {v(z+h)}' if z else '') for h in range(4)]
        pk=lambda d,x: p2('add',d,d,x)
        f=(w(6) or ['s_waitcnt lgkmcnt(0)'])+pk(Y,Y+4)+w(4)+pk(Y+8,Y+12)+w(3)+pk(Y,Y+16)+pk(Y,Y+8)+p2('mul',E,Y,'s[54:55]')+[f'v_exp_f32 {v(E+r)}, {v(E+r)}' for r in range(4)]
        f+=[f'v_lshlrev_b32 {v(Y+16+2*r)}, 16, {v(XR+2*i+r)}' for r in (0,1)]+p2('add',E,E,'s[56:57]')+[f'v_rcp_f32 {v(E+r)}, {v(E+r)}' for r in range(4)]
        f+=[f'v_and_b32 {v(Y+17+2*r)}, 0xffff0000, {v(XR+2*i+r)}' for r in (0,1)]+w(0)+pk(S[0],S[1])+p2('mul',Y,Y,E)+pk(S[0],S[2])+p2('fma',Y,Y,S[0],Y+16)
        f+=[f'v_cvt_pk_bf16_f32 {v(Y+r)}, {v(Y+2*r)}, {v(Y+2*r+1)}' for r in (0,1)]+[f'buffer_store_dwordx2 {v(Y,2)}, v3, {s(sO,4)}, {s(sOo+i)} offen']
        return f
    f=[]
    def put(k):
        for _ in range(k):
            if f: x=f.pop(0); e(x); x.startswith('buffer') and q.append('st')
    def sync(i):
        put(99); e('s_waitcnt lgkmcnt(0)\ns_barrier'); own and rds()
        if i in (0,3): stamp(11+i//3)
    for i in range(4):
        C=AC+20*(i&1)
        for j in range(nk):
            e(f's_waitcnt vmcnt({len(q)-1-q.index((i,j))})')
            if own and i and j==FJ: f=fin(i-1)
            for n in range(5):
                e(f'v_mfma_f32_16x16x32_bf16 {v(C+4*n,4)}, {v(WS_[j]+4*n,4)}, {v(AR+28*(i&1)+4*j,4)}, '+(v(C+4*n,4) if j else '0')); put(PUT+(nk==5))
            if i<2: ald(i+2,j)
            if i and j==BJ: sync(i-1)
        if len(f)>=4: put(4)
        else: e('s_nop 3')
        for n in range(5): e(f'ds_write_b128 v0, {v(C+4*n,4)} offset:{64*n}')
        e('v_xor_b32 v0, 0x10000, v0')
    sync(3)
    if own: f=fin(3); put(99)
def build(stamp_f):
    e=A(); stamp=lambda i: stamp_f(e,i)
    e(f'''k2_top:
    s_cmp_ge_u32 s2, 256
    s_cbranch_scc1 k2_end
    s_load_dwordx2 {s(sWS,2)}, s[0:1], 80
    s_load_dwordx2 {s(sDM,2)}, s[0:1], 80
    s_load_dwordx2 {s(sSP,2)}, s[0:1], 40
    s_load_dwordx2 {s(sBS,2)}, s[0:1], 48
    s_load_dwordx2 {s(sX,2)}, s[0:1], 0
    s_load_dwordx2 {s(sO,2)}, s[0:1], 64''')
    if int(os.environ.get('CP2','1')): codepf(e,'k2_top',5,15)
    e(f'''v_lshrrev_b32 v1, 6, v0
    v_and_b32 v0, 63, v0
    v_readfirstlane_b32 {s(sW)}, v1''')
    stamp(0)
    srd(e,sWS,WSZ); srd(e,sDM,WSZ); srd(e,sSP,2048*4096); srd(e,sBS,4096); srd(e,sX,2048*1280); srd(e,sO,2048*1280)
    e(f'''s_and_b32 {s(sWq)}, {s(sW)}, 3
    s_lshr_b32 {s(sKh)}, {s(sW)}, 2
    s_and_b32 {s(sH)}, s2, 7
    s_lshl_b32 {s(sH)}, {s(sH)}, 2
    s_lshr_b32 {s(sT0)}, s2, 6
    s_add_u32 {s(sH)}, {s(sH)}, {s(sT0)}
    s_bfe_u32 {s(sQB)}, s2, 0x30003
    s_lshl_b32 {s(sQB)}, {s(sQB)}, 2
    s_add_u32 {s(sQB)}, {s(sQB)}, {s(sWq)}
    s_bfe_u32 {s(sTB)}, s2, 0x20001
    s_lshl_b32 {s(sTB)}, {s(sTB)}, 2
    s_bfe_u32 {s(sT0)}, s2, 0x20003
    s_add_u32 {s(sTB)}, {s(sTB)}, {s(sT0)}
    s_lshr_b32 {s(sSl)}, s2, 5
    s_min_u32 {s(sFB)}, {s(sSl)}, 6
    s_and_b32 {s(sT0)}, s2, 1
    s_mul_i32 {s(sT0)}, {s(sT0)}, 7
    s_add_u32 {s(sFB)}, {s(sFB)}, {s(sT0)}
    s_mul_i32 {s(sT2)}, {s(sH)}, {HS}
    s_min_u32 {s(sMk)}, {s(sW)}, 6
    s_lshl_b32 {s(sMk)}, {s(sMk)}, 10
    s_add_u32 {s(sKV)}, {s(sT2)}, {s(sMk)}
    s_lshl_b32 {s(sZ)}, {s(sFB)}, 1
    s_add_u32 {s(sZ)}, {s(sZ)}, {s(sKh)}
    s_min_u32 {s(sZ)}, {s(sZ)}, 26
    s_lshl_b32 {s(sZ)}, {s(sZ)}, 7
    s_add_u32 {s(sZ)}, {s(sZ)}, {s(sWq)}
    s_lshl_b32 {s(sZ)}, {s(sZ)}, 10
    s_add_u32 {s(sZ)}, {s(sZ)}, {Z2T}
    s_lshl_b32 {s(sMz)}, {s(sW)}, 10
    s_lshl_b32 {s(sMw)}, {s(sMz)}, 1
    s_add_u32 {s(sMz)}, {s(sMz)}, {LZ}
    s_add_u32 {s(sMw)}, {s(sMw)}, {LW}
    s_lshl_b32 {s(sSo)}, {s(sTB)}, 3
    s_add_u32 {s(sSo)}, {s(sSo)}, {s(sW)}
    s_lshl_b32 {s(sSo)}, {s(sSo)}, 16
    s_mul_i32 {s(sT0)}, {s(sQB)}, {4*TL}
    s_add_u32 {s(sT0)}, {s(sT0)}, {ACT}
    s_lshl_b32 {s(sU0)}, {s(sH)}, 9
    s_add_u32 {s(sU0)}, {s(sU0)}, {s(sT0)}
    s_lshr_b32 {s(sT1)}, {s(sH)}, 1
    s_lshl_b32 {s(sT1)}, {s(sT1)}, 8
    s_add_u32 {s(sT0)}, {s(sT0)}, {s(sT1)}
    s_and_b32 {s(sT1)}, {s(sH)}, 1
    s_lshl_b32 {s(sT1)}, {s(sT1)}, 3
    s_add_u32 {s(sT0)}, {s(sT0)}, {s(sT1)}
    s_add_u32 {s(sU1)}, {s(sT0)}, 16384
    s_add_u32 {s(sT0)}, {s(sU0)}, {2*TL}
    s_add_u32 {s(sT1)}, {s(sU1)}, {2*TL}
    v_lshlrev_b32 {v(vL16)}, 4, v0
    v_lshrrev_b32 v12, 3, v0
    v_lshrrev_b32 v13, 4, v0
    v_and_b32 v14, 7, v0
    v_xor_b32 v13, v13, v14
    v_lshlrev_b32 v13, 4, v13
    v_lshl_add_u32 {v(vDW0)}, v12, 12, v13
    v_xor_b32 {v(vDW1)}, 0x8040, {v(vDW0)}
    s_mov_b32 {s(sSt)}, 128
    s_mov_b32 {s(sLim)}, {17-LEAD}
    s_cmp_lt_u32 s2, {224 if NPF else 999}
    s_cbranch_scc1 k2_np
    s_sub_u32 {s(sSo)}, s2, 224
    s_lshl_b32 {s(sSo)}, {s(sSo)}, 3
    s_add_u32 {s(sSo)}, {s(sSo)}, {s(sW)}
    s_lshl_b32 {s(sSo)}, {s(sSo)}, 15
    s_add_u32 {s(sSo)}, {s(sSo)}, 512
    s_mov_b32 {s(sSt)}, 256
    s_mov_b32 {s(sLim)}, {5 if LEAD==3 else 4}
    s_mov_b32 {s(sZ)}, 0xf0000000
    v_add_u32 {v(vDW1)}, 128, {v(vDW0)}
    k2_np:
    v_and_b32 v12, 31, v0
    v_lshrrev_b32 v13, 5, v0
    v_lshlrev_b32 {v(vR)}, 3, v12
    v_bfe_u32 v14, v0, 4, 1
    v_mul_u32_u24 v14, {TL-256}, v14
    v_lshl_add_u32 v14, v12, 4, v14
    v_lshl_add_u32 {v(vSt)}, v13, 8, v14
    v_lshl_add_u32 {v(vT)}, v13, 30, v14
    s_waitcnt lgkmcnt(0)''')
    stamp(4)
    for j in range(4): em(e,dma(j,0))
    for i in (0,1):
        e(f'buffer_load_dwordx4 {v(QM+4*i,4)}, {v(vSt)}, {s(sWS,4)}, {s((sU0,sT0)[i])} offen')
        e(f'buffer_load_dwordx2 {v(QR+2*i,2)}, {v(vT)}, {s(sWS,4)}, {s((sU1,sT1)[i])} offen')
    def pst(st):
        for j in range(4): em(e,dma(j,st),f's_add_u32 {s(sKV)}, {s(sKV)}, {SS}' if j==1 else 's_nop 0')
    pst(1)
    e(f'''s_lshl_b32 {s(sT0)}, {s(sKh)}, 10
    v_add_u32 {v(vK)}, {s(sT0)}, {v(vL16)}
    v_add_u32 {v(vA)}, {s(sT0)}, {v(vK)}
    s_lshl_b32 {s(sT0)}, {s(sKh)}, 8
    s_add_u32 {s(sT0)}, {s(sT0)}, 6144
    v_add_u32 {v(vR)}, {s(sT0)}, {v(vR)}
    s_lshl_b32 {s(sT0)}, {s(sKh)}, 2
    v_add_u32 v13, {s(sT0)}, v13
    v_bfe_u32 v14, v0, 1, 3
    v_xor_b32 v13, v13, v14
    v_lshlrev_b32 v13, 4, v13
    v_lshl_add_u32 v13, v12, 7, v13
    s_lshl_b32 {s(sT0)}, {s(sWq)}, 12
    s_add_u32 {s(sT0)}, {s(sT0)}, {LW}
    v_add_u32 {v(vB0)}, {s(sT0)}, v13
    v_xor_b32 {v(vB1)}, 32, {v(vB0)}
    v_mov_b32 {v(vIdx)}, 0xdddddddd
    s_lshl_b32 {s(sT0)}, {s(sW)}, 3
    s_mov_b32 s54, 0x140e0700
    s_mov_b32 s55, 0x29231e19
    s_lshr_b64 s[54:55], s[54:55], {s(sT0)}
    s_and_b32 {s(sNk)}, s54, 0xff
    s_mul_i32 {s(sWf)}, {s(sNk)}, 40960
    s_mul_i32 {s(sT0)}, {s(sSl)}, 5120
    s_add_u32 {s(sWf)}, {s(sWf)}, {s(sT0)}
    s_add_u32 {s(sWf)}, {s(sWf)}, {WF-40960}
    s_bfe_u32 {s(sT0)}, s2, 0x20003
    s_mul_i32 {s(sT0)}, {s(sT0)}, 1280
    s_add_u32 {s(sPfW)}, {s(sWf)}, {s(sT0)}
    s_sub_u32 {s(sPfW)}, {s(sPfW)}, {(NIT-1-WT)*40960}
    v_add_u32 v14, 54, v0
    v_lshrrev_b32 v14, 6, v14
    v_lshlrev_b32 v14, 30, v14
    v_lshl_add_u32 v14, v0, 7, v14
    s_mov_b32 {s(sIt)}, 0''')
    for r in range(O0,G1+16): e(f'v_mov_b32 {v(r)}, 0')
    e('s_waitcnt vmcnt(4)'); e('s_barrier'); stamp(1)
    e([rd(KM,vK,0),f'ds_read_b64 {v(KR,2)}, {v(vR)}',rd(GBa,vB0,0),rd(GA1,vA,LZ+4096),rd(GA0,vA,LZ),rd(V0,vA,2048),rd(V1,vA,3072)])
    e('s_waitcnt lgkmcnt(2)'); e(mf(SA,KM,QM,'0')); e(mf8(SA,KR,QR))
    TP=int(os.environ.get('TP','0'))
    if TP: e(f's_lshl_b32 {s(sT0)}, {s(sW)}, 7\ns_add_u32 {s(sT0)}, {s(sT0)}, {ACT+47*1024}\nv_mul_u32_u24 v13, {TL*128//TP}, v0\ns_bfm_b64 exec, {TP}, 0\nbuffer_load_dword v15, v13, {s(sWS,4)}, {s(sT0)} offen\ns_mov_b64 exec, -1')
    elif WT: e(f's_mov_b32 {s(sT0)}, {OOR}\nbuffer_load_dword v15, v14, {s(sWS,4)}, {s(sT0)} offen')
    for st in range(2,LEAD): pst(st)
    if LEAD==3:
        for r in (sMk,sMz,sMw): e(f's_xor_b32 {s(r)}, {s(r)}, 0x10000')
    stamp(7)
    if NOG: e('s_cmp_ge_u32 s2, 224\ns_cbranch_scc1 k2_n')
    e(f's_cmp_eq_u32 {s(sKh)}, 0\ns_cbranch_scc0 k2b_loop\n.p2align '+os.environ.get('AL','6')); e(['s_nop 0']*PA0); e('k2a_loop:')
    pp(e,0,0); pp(e,1,0); e('s_cbranch_scc1 k2a_loop\ns_branch k2a_peel\n.p2align 6'); e(['s_nop 0']*PAD); e('k2b_loop:'); pp(e,0,1); pp(e,1,1); e('s_cbranch_scc1 k2b_loop\ns_branch k2b_peel')
    if NOG: e(f'k2_n:\ns_cmp_eq_u32 {s(sKh)}, 0\ns_cbranch_scc0 k2d_loop')
    for g in (0,1)[:2*NOG]: e(f'.p2align 6\nk2{"cd"[g]}_loop:'); pp(e,0,g,nog=1); pp(e,1,g,nog=1); e(f's_cbranch_scc1 k2{"cd"[g]}_loop\ns_branch k2{"ab"[g]}_peel')
    e('.p2align 6\nk2a_peel:'); peel(e,0,stamp); stamp(2)
    e('s_waitcnt lgkmcnt(0)\ns_barrier')
    for j in range(8): e(rd(G0+4*j,13,1024*j))
    for i in (0,1):
        e(f's_waitcnt lgkmcnt({4-4*i})')
        for r in range(0,14,2): e(f'v_pk_add_f32 {v(O0+16*i+r,2)}, {v(O0+16*i+r,2)}, {v(G0+16*i+r,2)}')
    e(f'''v_cmp_le_f32 s[52:53], s50, {v(O0+12)}
    v_cmp_ge_f32 s[54:55], s51, {v(O0+12)}
    v_cmp_le_f32 s[56:57], s50, {v(O1+12)}
    v_cmp_ge_f32 s[58:59], s51, {v(O1+12)}
    s_and_b64 s[52:53], s[52:53], s[54:55]
    s_and_b64 s[56:57], s[56:57], s[58:59]
    s_and_b64 s[52:53], s[52:53], s[56:57]
    s_andn2_b64 s[52:53], exec, s[52:53]
    s_cbranch_scc1 k2_slow
    k2_ofin:
    v_rcp_f32 v14, {v(O0+12)}
    v_rcp_f32 v15, {v(O1+12)}
    s_add_u32 {s(sT0)}, {s(sU0)}, {2*TL}
    s_add_u32 {s(sT1)}, {s(sU1)}, {2*TL}''')
    for i in (0,1):
        O=O0+16*i
        for r in range(12): e(f'v_mul_f32 {v(O+r)}, {v(O+r)}, {v(14+i)}')
        for r in range(6): e(f'v_cvt_pk_bf16_f32 {v(O+r)}, {v(O+2*r)}, {v(O+2*r+1)}')
        e(f'buffer_store_dwordx4 {v(O,4)}, {v(vSt)}, {s(sWS,4)}, {s((sU0,sT0)[i])} offen{SC}')
        e(f'buffer_store_dwordx2 {v(O+4,2)}, {v(vT)}, {s(sWS,4)}, {s((sU1,sT1)[i])} offen{SC}')
    e('s_branch k2_p3\n.p2align 6\nk2b_peel:'); peel(e,1,stamp); stamp(2)
    e(f's_waitcnt vmcnt(12) lgkmcnt(0)\ns_barrier')
    for j in range(8): e(rd(O0+4*j,13,1024*j))
    e(f'v_lshlrev_b32 v14, 16, {v(vBs)}\nv_lshlrev_b32 v15, 16, {v(vBs)}')
    for r in range(16): e(f'v_lshlrev_b32 {v(SA+2*r)}, 16, {v(Z+r)}\nv_and_b32 {v(SA+2*r+1)}, 0xffff0000, {v(Z+r)}\nv_pk_add_f32 {v(G0+2*r,2)}, {v(G0+2*r,2)}, v[14:15]')
    for j in range(4):
        e(f's_waitcnt lgkmcnt({6-2*j})')
        for r in range(8*j,8*j+8,2): e(f'v_pk_add_f32 {v(G0+r,2)}, {v(G0+r,2)}, {v(O0+r,2)}')
        for r in range(8*j,8*j+8,2): e(f'v_pk_mul_f32 {v(G0+r,2)}, {v(G0+r,2)}, {v(SA+r,2)}')
        for r in range(4): e(f'v_cvt_pk_bf16_f32 {v(G0+8*j+r)}, {v(G0+8*j+2*r)}, {v(G0+8*j+2*r+1)}')
        e(f'buffer_store_dwordx4 {v(G0+8*j,4)}, {v(vSt)}, {s(sWS,4)}, {s(sU0+(j>>1))} offen offset:{512*j}{SC}')
    e('k2_p3:'); stamp(8)
    e(f'''s_and_b32 {s(sT1)}, s2, 7
    s_lshl_b32 {s(sT1)}, {s(sT1)}, 2
    s_bfe_u32 {s(sT0)}, s2, 0x20003
    s_add_u32 {s(sT1)}, {s(sT1)}, {s(sT0)}
    s_mul_i32 s54, {s(sT1)}, {4*48}
    s_add_u32 s54, s54, {s(sNk)}
    s_lshl_b32 s54, s54, 10
    s_add_u32 s54, s54, {ACT}
    s_mul_i32 s55, {s(sT1)}, {64*1280}
    s_mul_i32 {s(sT0)}, {s(sSl)}, 160
    s_add_u32 s55, s55, {s(sT0)}
    s_lshl_b32 {s(sT0)}, {s(sW)}, 6
    s_sub_u32 {s(sT0)}, {s(sT0)}, 192
    v_add_u32 v9, {s(sT0)}, v0
    v_mul_u32_u24 v8, 3277, v9
    v_lshrrev_b32 v8, 16, v8
    v_mul_u32_u24 v3, {1280-160}, v8
    v_lshl_add_u32 v3, v9, 3, v3
    v_add_u32 v8, v8, v9
    v_lshlrev_b32 v8, 4, v8
    v_add_u32 v2, {LB[0]}, v8
    v_lshlrev_b32 v13, 6, v0
    v_mov_b32 v15, 1
    s_mul_i32 {s(sT0)}, {s(sW)}, {16*RS}
    s_add_u32 {s(sT0)}, {s(sT0)}, {LB[0]}
    v_and_b32 v4, 15, v0
    v_mul_u32_u24 v4, {RS}, v4
    v_and_b32 v0, 0x30, v0
    v_add3_u32 v0, {s(sT0)}, v4, v0''')
    for i in range(4):
        e(f'''s_add_u32 {s(sT0)}, {s(sSl) if ROT else 0}, {i}
        s_and_b32 {s(sT0)}, {s(sT0)}, 3
        s_mul_i32 {s(sOo+i)}, {s(sT0)}, {16*1280}
        s_add_u32 {s(sOo+i)}, {s(sOo+i)}, s55
        s_mul_i32 {s(sT0)}, {s(sT0)}, {TL}
        s_add_u32 {s(sAo+i)}, {s(sT0)}, s54''')
    e(f'''s_lshl_b32 {s(sT1)}, {s(sT1)}, 12
    s_add_u32 {s(sT1)}, {s(sT1)}, {FL}
    s_lshl_b32 {s(sT0)}, {s(sW)}, 3
    s_mov_b32 s54, 0x20000e00
    s_mov_b32 s55, 0x342e2a24
    s_mov_b32 s56, 0x06200e0e
    s_mov_b32 s57, 0x08080606
    s_lshr_b64 s[54:55], s[54:55], {s(sT0)}
    s_lshr_b64 s[56:57], s[56:57], {s(sT0)}
    s_bfm_b64 s[52:53], s56, s54
    s_mov_b32 {s(sSt)}, 0x100000
    s_mov_b32 s54, {fl(-1.4426950408889634)}
    s_mov_b32 s55, s54
    s_mov_b32 s56, 1.0
    s_mov_b32 s57, 1.0
    s_mov_b64 exec, 1
    s_waitcnt vmcnt(0)
    buffer_store_dword v15, off, {s(sWS,4)}, {s(sFl)}{SC}
    s_mov_b64 exec, -1'''); stamp(9)
    e(f'''s_cmp_lt_u32 {s(sW)}, 2
    s_cbranch_scc1 k2_t70
    s_cmp_lt_u32 {s(sW)}, 3
    s_cbranch_scc1 k2_t60
    s_cmp_lt_u32 {s(sW)}, 4
    s_cbranch_scc1 k2_t51''')
    for n in range(5): e(wld(4,n))
    e(f's_cmp_lt_u32 {s(sW)}, 6\ns_cbranch_scc1 k2_t51')
    for nk,own in ((6,1),(5,1),(6,0),(7,0)):
        e(f'k2_t{nk}{own}:'); tail(e,nk,own,stamp)
        if nk!=7: e('s_branch k2_fin')
    e('k2_fin:'); stamp(3); stamp(-1)
    e('k2_end:\ns_endpgm')
    e(f'''k2_slow:
    v_and_b32 v12, 31, v0
    v_lshlrev_b32 v12, 3, v12
    v_mov_b32 v14, 0xff800000
    v_mov_b32 v15, 0xff800000''')
    for ps in (0,1):
        e(f'''s_mov_b32 {s(sIt)}, 0
        k2_sl{ps}:
        s_lshr_b32 {s(sT0)}, {s(sIt)}, 1
        s_mul_i32 {s(sT0)}, {s(sT0)}, {SS}
        s_add_u32 {s(sT0)}, {s(sT0)}, {s(sT2)}
        s_and_b32 {s(sT1)}, {s(sIt)}, 1
        s_lshl_b32 s50, {s(sT1)}, 8
        s_add_u32 s50, s50, {s(sT0)}
        s_add_u32 s50, s50, 6144
        s_lshl_b32 {s(sT1)}, {s(sT1)}, 10
        s_add_u32 {s(sT0)}, {s(sT0)}, {s(sT1)}
        s_add_u32 {s(sT1)}, {s(sT0)}, {s(sT1)}
        buffer_load_dwordx4 {v(KM,4)}, {v(vL16)}, {s(sWS,4)}, {s(sT0)} offen
        buffer_load_dwordx2 {v(KR,2)}, v12, {s(sWS,4)}, s50 offen
        buffer_load_dwordx4 {v(V0,4)}, {v(vL16)}, {s(sWS,4)}, {s(sT1)} offen offset:2048
        buffer_load_dwordx4 {v(V1,4)}, {v(vL16)}, {s(sWS,4)}, {s(sT1)} offen offset:3072
        s_waitcnt vmcnt(0)''')
        for i in (0,1): e(mf(SA+16*i,KM,QM+4*i,v(G0+16*i,16) if ps else '0')); e(mf8(SA+16*i,KR,QR+2*i))
        e('s_nop 11')
        for r in range(32): e(f'v_exp_f32 {v(SA+r)}, {v(SA+r)}' if ps else f'v_max_f32 {v(14+r//16)}, {v(14+r//16)}, {v(SA+r)}')
        if ps:
            e('s_nop 1')
            for i in (0,1): e(pv(O0+16*i,V0,SA+16*i)); e(pv(O0+16*i,V1,SA+16*i+8))
        e(f's_add_u32 {s(sIt)}, {s(sIt)}, 1\ns_cmp_lt_u32 {s(sIt)}, 64\ns_cbranch_scc1 k2_sl{ps}')
        if ps==0:
            for i in (0,1): e(f'v_mov_b32 v13, {v(14+i)}\ns_nop 1\nv_permlane32_swap_b32 v13, {v(14+i)}\ns_nop 0\nv_max_f32 {v(14+i)}, v13, {v(14+i)}')
            for r in range(32): e(f'v_sub_f32 {v(G0+r)}, 0, {v(14+r//16)}\nv_mov_b32 {v(O0+r)}, 0')
    e('code_end:\ns_nop 11\ns_branch k2_ofin')
    return e
```

```python
import re
class A:
    def __init__(s): s.l=[]
    def __call__(s, t):
        if isinstance(t,(list,tuple)):
            for x in t: s(x)
            return
        for x in t.split('\n'):
            x=x.strip()
            if x: s.l.append(x)
    def text(s): return '\n'.join((x if x.endswith(':') or x.startswith('.') else '    '+x) for x in s.l)+'\n'
def v(i,n=1): return f'v{i}' if n==1 else f'v[{i}:{i+n-1}]'
def a(i,n=1): return f'a{i}' if n==1 else f'a[{i}:{i+n-1}]'
def s(i,n=1): return f's{i}' if n==1 else f's[{i}:{i+n-1}]'
def cost(x):
    op=(x.split() or [''])[0]
    if re.match(r'v_(exp|rcp|rsq|sqrt|log)',op): return 8
    if op.startswith('ds_') or op.startswith('buffer_'): return 8
    if op.endswith(':'): return 0
    return 4
def take(fill,budget):
    out=[]
    while fill and budget>=cost(fill[0]):
        budget-=cost(fill[0]); out.append(fill.pop(0))
    return out
def srd(e,base,nrec):
    e(f's_mov_b32 {s(base+2)}, {nrec}\ns_mov_b32 {s(base+3)}, 0x00020000')
def regs(tok):
    m=re.fullmatch(r'([vas])(\d+)',tok)
    if m: return {(m[1],int(m[2]))}
    m=re.fullmatch(r'([vas])\[(\d+):(\d+)\]',tok)
    if m: return {(m[1],i) for i in range(int(m[2]),int(m[3])+1)}
    if tok in('vcc','exec','m0'): return {(tok,0)}
    return set()
def parse(x):
    x=x.split(';')[0].strip()
    p=x.split(None,1); op=p[0]
    toks=[t.strip().lstrip('-').strip('|') for t in (p[1] if len(p)>1 else '').split(',')]
    if toks: toks=toks[:-1]+toks[-1].split()
    R=[regs(t) for t in toks]
    d=dict(op=op,w=set(),r=set(),c=set(),k='o')
    if op.startswith('v_mfma') or op.startswith('v_smfmac'):
        d['k']='m'; d['w']=R[0]; d['r']=R[1]|R[2]
        if op.startswith('v_smfmac'): d['c']=R[0]; d['r']|=R[3]
        else: d['c']=R[3]
        d['p']=8 if '32x32' in op else 4
    elif op.startswith('v_'):
        d['k']='v'; d['w']=R[0]; d['r']=set().union(*R[1:]) if len(R)>1 else set()
        if 'swap' in op: d['w']=R[0]|R[1]; d['r']=R[0]|R[1]
        if re.match(r'v_(fmac|mac|dot2c)',op): d['r']|=R[0]
        if op.startswith('v_cndmask') and len(toks)==3: d['r'].add(('vcc',0))
    elif op.startswith('ds_') or op.startswith('buffer_') or op.startswith('global_'):
        d['k']='x'
        ld=('read' in op or 'load' in op) and 'lds' not in toks
        if ld: d['w']=R[0]; d['r']=set().union(*R[1:])
        else: d['r']=set().union(*R)
        if 'lds' in toks: d['r'].add(('m0',0))
        d['st']=R[0] if ('store_dwordx4' in op or 'store_dwordx3' in op) else set()
    elif op.startswith('s_'):
        d['k']='s'
        if not re.match(r's_(cmp|cbranch|branch|waitcnt|barrier|nop|endpgm|setprio|bitcmp)',op): d['w']=R[0]
        d['r']=set().union(*R[1:]) if len(R)>1 else set()
    d['n']=int(toks[0],0)+1 if op=='s_nop' else 1
    return d
def check(lines):
    I=[(x,parse(x)) for x in lines if not x.endswith(':') and not x.startswith('.') and not x.startswith(';')]
    bad=0
    for i,(x,c) in enumerate(I):
        dist=0
        for j in range(i-1,max(-1,i-22),-1):
            y,p=I[j]
            if p['op'] in('s_branch','s_endpgm'): break
            need=0
            V=lambda S:{r for r in S if r[0] in 'va' and len(r[0])==1}
            SG=lambda S:{r for r in S if r[0] in('s','vcc')}
            if p['k']=='m':
                big=12 if p['p']==8 else 8
                if c['k'] in 'vx' and p['w']&(c['r']|c['w']): need=big
                if c['k']=='m':
                    if p['w']&c['r']: need=big
                    elif p['w']&c['c'] and not(p['w']==c['c'] and p['p']==c['p']): need=big-2
                if c['k']=='v' and p['c']&c['w']: need=max(need,p['p']-1)
            if p['k']=='v':
                if c['k']=='m' and V(p['w'])&(c['r']|c['c']): need=2
                if c['k']=='v' and cost(y)==8 and p['w']&c['r']: need=1
                if c['k']=='v' and 'dot2' in p['op'] and p['w']&(c['r']|c['w']) and c['op']!=p['op']: need=3
                if c['k']=='v' and SG(p['w'])&c['r']: need=2
                if c['k']=='x' and SG(p['w'])&c['r']: need=5
                if c['k']=='v' and ('permlane' in c['op'] or 'dpp' in x or 'row_' in x) and p['w']&c['r']: need=2
                if c['k']=='v' and re.match(r'v_read(first)?lane',c['op']) and V(p['w'])&c['r']: need=max(need,1)
            if p['k']=='s' and ('m0',0) in p['w'] and c['k']=='x' and ('m0',0) in c['r']: need=1
            if p['k']=='x' and c['k']=='v' and p['st']&c['w']: need=2
            if dist<need:
                bad<4 and print(f'HAZARD need {need} have {dist}: [{y}] -> [{x}]'); bad+=1
            dist+=p['n']
    return bad
def kernel(name,body,nv,acc):
    code=f'.globl {name}\n.p2align 8\n.type {name},@function\n{name}:\n'+body.text()
    kd=f'''.p2align 6
.amdhsa_kernel {name}
  .amdhsa_next_free_vgpr {nv}
  .amdhsa_next_free_sgpr 102
  .amdhsa_accum_offset {acc}
  .amdhsa_group_segment_fixed_size 0
  .amdhsa_kernarg_size 88
  .amdhsa_user_sgpr_count 2
  .amdhsa_user_sgpr_kernarg_segment_ptr 1
  .amdhsa_system_sgpr_workgroup_id_x 1
.end_amdhsa_kernel
'''
    return code,kd
import os
FS=int(os.environ.get('FS','6'))
TL=48*1024; SS=6656; HS=32*SS
KV=0; QS=0x700000; Z1=0xE00000; Z2T=0x1200000; ACT=0x1600000; WF=0x1C00000; ST=0x1E00000; WSZ=0x2000000

import struct
def fl(x): return hex(struct.unpack('<I',struct.pack('<f',x))[0])
TS=0x1F00000
def mkstamp(on,k,sWS,sW):
    def f(e,i):
        if not on: return
        if i>=0:
            e(f's_memtime {s(76+2*i if i<8 else 66+2*(i-8),2)}')
            if i==0: e('s_memrealtime s[92:93]')
            return
        e(f'''s_waitcnt vmcnt(0)
        s_memrealtime s[94:95]
        s_memtime s[96:97]
        s_lshl_b32 s3, s2, 3
        s_add_u32 s3, s3, {s(sW)}
        s_lshl_b32 s3, s3, 6
        s_add_u32 s3, s3, {TS+k*0x40000}
        s_waitcnt lgkmcnt(0)''')
        for j in range(16): e(f'v_mov_b32 v2, {s(76+2*j if j<11 else 66+2*(j-11))}\nbuffer_store_dword v2, off, {s(sWS,4)}, s3 offset:{4*j}')
    return f

def codepf(e,lab,sh,dst,t=2):
    e(f'''s_getpc_b64 s[64:65]
    s_lshr_b32 s3, s2, 3
    v_lshrrev_b32 {v(t)}, {sh}, v0
    v_lshl_add_u32 {v(t)}, s3, 4, {v(t)}
    v_min_u32 {v(t)}, (code_end-{lab})/128-1, {v(t)}
    v_lshlrev_b32 {v(t)}, 7, {v(t)}
    v_mov_b32 {v(t+1)}, s65
    v_add_co_u32 {v(t)}, vcc, s64, {v(t)}
    s_nop 1
    v_addc_co_u32 {v(t+1)}, vcc, 0, {v(t+1)}, vcc
    global_load_dword {v(dst)}, {v(t,2)}, off''')
```

```python
from lib import *
import os
PFO=os.environ.get('PFO','xisc')
sX,sWQ,sWI,sWS,sDB=4,8,12,16,20
sW,sRB,sA,sLW,sT0,sT1,sOff,sDel,sIt,sN2,sLine,sZa,sZb,sCi,sB0,sB1,sQB,sTy,sZ2a,sZ2b,sSc=range(24,45)
sStR,sNon,sNN,sUn,sPf,sLn=47,48,49,50,51,45
vL16,vZ0,vZ1,vQM,vQR,vD,vDZ,vStd,vRstd,vK1,vK2=1,2,3,4,5,6,11,12,13,14,15
T=16; TMP=48; PK=64; X=96
FR=0; AQ=64; ASV=144
SC=os.environ.get('SC',' sc1')
OOR='0xf0000000'
DPF=5; DB=8; BB=int(os.environ.get('BB','18')); BL=int(os.environ.get('BL','18')); PAYAT=int(os.environ.get('PAYAT','14'))
vNon=92; NP2=int(os.environ.get('NP2','0')); VW=int(os.environ.get('VW','0'))
def dmaZ(slot,i,base):
    return [f's_add_u32 m0, {s(sLW)}, {slot}' if isinstance(slot,str) and i==0 else (f's_add_u32 m0, m0, 1024' if i else f's_add_u32 m0, {s(sLW)}, {slot*40960}'),
            f's_add_u32 {s(sOff)}, {s(base)}, {i*8*3456}',
            f'buffer_load_dwordx4 {v(vDZ)}, {s(sWI,4)}, {s(sOff)} offen lds']
def dmaQ(slot,i,q):
    return [f's_add_u32 m0, m0, 1024' if i else f's_add_u32 m0, {s(sLW)}, {slot*40960}',
            f's_add_u32 {s(sOff)}, {s(sQB)}, {(128*q+16*(i//5))*3840}',
            f'buffer_load_dwordx4 {v(vD+i%5)}, {s(sWQ,4)}, {s(sOff)} offen lds']
def rdT(t,m):
    return [f'ds_read_b64_tr_b16 {a(FR+4*(m%8)+2*r,2)}, {v(vZ0+t)} offset:{(m%20)*2048+r*512}' for r in (0,1)]
def rdQ(m,kk=None,p=None,b=0):
    if kk is None: kk,p=divmod(m%40,5)
    return [f'ds_read_b64_tr_b16 {a(FR+4*(m%8)+2*r,2)}, {v((vQM if p<4 else vQR)+b)} offset:{kk*5120+r*1280+(40*p if p<4 else 0)}' for r in (0,1)]
class DQ:
    def __init__(q): q.items=[]; q.n=0; q.last={}
    def add(q,tag,f,n):
        for i in range(n): q.items.append((tag,f(i)))
    def pop(q,maxtag=99):
        if not q.items or (isinstance(q.items[0][0],int) and q.items[0][0]>maxtag): return []
        t,i=q.items.pop(0); q.last[t]=q.n; q.n+=1; return i
    def vm(q,tag):
        assert all(t!=tag for t,_ in q.items), tag
        return min(63,q.n-1-q.last[tag])
def flush(e,f):
    for x in f:
        if isinstance(x,tuple): e('s_waitcnt lgkmcnt(0)' if x[0]=='+' else 's_nop 7')
        else: e(x(e) if callable(x) else x)
    del f[:]
def phase(e,N,mf,rdf,ev,q=None,gate=None,fill=None,bud=16):
    carry=0; hold=0
    for n in range(N):
        e(mf(n)); vm,ex=ev.get(n,(None,[]))
        if isinstance(vm,tuple): vm=q.vm(vm[0])
        e(f's_waitcnt lgkmcnt({2*(DPF-2)})' if vm is None else f's_waitcnt vmcnt({vm}) lgkmcnt({2*(DPF-2)})\ns_barrier')
        e(ex)
        g=gate(n) if gate else None
        d=q.pop(g) if g is not None else []
        e(d[:2]); e(rdf(n+DPF)); e(d[2:])
        carry=min(carry,8)+bud-(DB if d else 0)
        while fill and n>=hold:
            x=fill[0]
            if isinstance(x,tuple): hold=x[1] if x[0]=='@' else n+x[1]; (fill.pop(0) if hold<N else None); continue
            c=4 if callable(x) else sum(cost(y) for y in x.split('\n'))
            if c>carry and carry<bud: break
            fill.pop(0); carry-=c; e(x(e) if callable(x) else x)
def mfT(t): return lambda n: f'v_mfma_f32_32x32x16_bf16 {v(T+16*t,16)}, {a(FR+4*(n%8),4)}, {v(X+4*n,4)}, '+('0' if n==0 else v(T+16*t,16))
def mfQ(q):
    return lambda n: f'v_mfma_f32_32x32x16_bf16 {a(AQ+16*(n%5),16)}, {a(FR+4*(n%8),4)}, {v(X+4*(8*q+n//5),4)}, '+('0' if q==0 and n<5 else a(AQ+16*(n%5),16))
def gelu(tl,z=None):
    f=[('@',3)]
    for p in range(8*tl,8*tl+8):
        r=(T+2*p,T+2*p+1); t=(TMP,TMP+1)
        for op in ('v_mul_f32 {t}, {r}, {r}','v_fma_f32 {t}, {t}, {k2}, {k1}','v_mul_f32 {t}, {t}, {r}','v_exp_f32 {t}, {t}',
                   'v_fma_f32 {t}, {t}, {sd}, {sd}','v_rcp_f32 {t}, {t}','v_mul_f32 {r}, {r}, {t}'):
            for j in (0,1): f.append(op.format(t=v(t[j]),r=v(r[j]),k1=v(vK1),k2=v(vK2),sd=v(vStd)))
        if z:
            f.append(f'v_cvt_pk_bf16_f32 {v(PK+p)}, {v(r[0])}, {v(r[1])}')
            if p%4==3: f.append(f'buffer_store_dwordx4 {v(PK+p-3,4)}, {v(vL2)}, {s(sWS,4)}, {s(z)} offen offset:{0 if p%8==3 else 512}{SC}')
    return f
S2=TMP+2; vL2=95
def stat1(t,init):
    f=[]
    for r in range(16):
        x=v(T+16*t+r)
        f+=[f'v_mov_b32 {v(S2)}, {x}',f'v_mul_f32 {v(S2+1)}, {x}, {x}'] if init and r==0 else [f'v_add_f32 {v(S2)}, {v(S2)}, {x}',f'v_fma_f32 {v(S2+1)}, {x}, {x}, {v(S2+1)}']
    return f
def publish(lab):
    S=S2
    f=[f'v_mov_b32 {v(S+2)}, {v(S)}', f'v_mov_b32 {v(S+3)}, {v(S+1)}',
        f'v_and_b32 {v(S+4)}, 0x1ff, {v(vL16)}',
        f'''v_readfirstlane_b32 {s(sNon)}, {v(vNon)}
        s_cmp_lg_u32 {s(sNon)}, 0
        s_cbranch_scc0 {lab}_sp
        {lab}_bk:''',
        f'v_permlane32_swap_b32 {v(S)}, {v(S+2)}', f'v_permlane32_swap_b32 {v(S+1)}, {v(S+3)}',
        f's_lshl_b32 {s(sT0)}, {s(sCi)}, 11\ns_add_u32 {s(sT0)}, {s(sT0)}, {s(sStR)}\ns_not_b32 {s(sNN)}, {s(sNon)}',
        f'v_add_f32 {v(S)}, {v(S)}, {v(S+2)}', f'v_add_f32 {v(S+1)}, {v(S+1)}, {v(S+3)}',
        f'v_mov_b32 {v(S+2)}, {s(sNon)}', f'v_mov_b32 {v(S+3)}, {s(sNN)}',
        f'buffer_store_dwordx4 {v(S,4)}, {v(S+4)}, {s(sWS,4)}, {s(sT0)} offen sc1']
    return f
def non_load(): return f's_lshl_b32 {s(sT1)}, {s(sRB)}, 4\nbuffer_load_dword {v(vNon)}, off, {s(sDB,4)}, {s(sT1)} sc1'
def non_spin(lab):
    return f'''{lab}_sp:
    s_mov_b32 s46, 0x100000
    {lab}_s2:
    {non_load()}
    s_waitcnt vmcnt(0)
    v_readfirstlane_b32 {s(sNon)}, {v(vNon)}
    s_cmp_lg_u32 {s(sNon)}, 0
    s_cbranch_scc1 {lab}_bk
    s_sub_u32 s46, s46, 1
    s_cbranch_scc0 {lab}_s2
    s_branch {lab}_bk'''
PV=TMP+9; PL=160
def pay_addr(): return [f'v_lshrrev_b32 {v(PV)}, 5, v0',f'v_mul_u32_u24 {v(PV)}, {7*2048-512}, {v(PV)}',f'v_add_u32 {v(PV)}, {v(vL16)}, {v(PV)}']
def pay_load():
    return [(f's_add_u32 {s(sT1)}, {s(sStR)}, {j*2048}\n' if j%2==0 else '')+f'buffer_load_dwordx4 {v(PL+4*j,4)}, {v(PV)}, {s(sWS,4)}, {s(sT1)} offen offset:{(j&1)*2048} sc1' for j in range(7)]
def bf(r): return f'v_cvt_pk_bf16_f32 {v(r)}, {v(r)}, {v(r)}\nv_lshlrev_b32 {v(r)}, 16, {v(r)}'
def meanstd(e,S,n):
    e(f'''v_mov_b32 {v(S+2)}, {v(S)}
    v_mov_b32 {v(S+3)}, {v(S+1)}
    s_nop 1
    v_permlane32_swap_b32 {v(S)}, {v(S+2)}
    v_permlane32_swap_b32 {v(S+1)}, {v(S+3)}
    s_nop 0
    v_add_f32 {v(S)}, {v(S)}, {v(S+2)}
    v_add_f32 {v(S+1)}, {v(S+1)}, {v(S+3)}
    v_mul_f32 {v(S)}, {fl(1.0/n)}, {v(S)}
    v_mul_f32 {v(S+1)}, {fl(1.0/n)}, {v(S+1)}
    v_fma_f32 {v(S+1)}, -{v(S)}, {v(S)}, {v(S+1)}
    v_max_f32 {v(S+1)}, 0, {v(S+1)}
    {bf(S)}
    {bf(S+1)}
    v_add_f32 {v(S+1)}, {fl(1e-5)}, {v(S+1)}
    {bf(S+1)}
    v_sqrt_f32 {v(S+1)}, {v(S+1)}
    s_nop 0
    {bf(S+1)}''')
W=58
def img_addr():
    return f'''v_and_b32 {v(W)}, 31, v0
    v_mul_u32_u24 {v(W)}, 136, {v(W)}
    v_lshrrev_b32 {v(W+1)}, 5, v0
    v_lshl_add_u32 {v(W)}, {v(W+1)}, 3, {v(W)}
    v_add_u32 {v(W)}, {s(sLW)}, {v(W)}
    v_bfe_u32 {v(W+1)}, {v(vZ0)}, 7, 4
    v_mul_u32_u24 {v(W+1)}, 136, {v(W+1)}
    v_and_b32 {v(W+2)}, 63, {v(vZ0)}
    v_add3_u32 {v(W+1)}, {s(sLW)}, {v(W+1)}, {v(W+2)}'''.split('\n')
def chk(): return [f'v_cmp_eq_u64 s[54:55], {s(sNon,2)}, {v(PL+4*j+2,2)}\ns_and_b64 s[56:57], s[54:55], '+('s[56:57]' if j else 'exec') for j in range(7)]
def retry(lab):
    return [f'{lab}_re:','s_mov_b32 s46, 0x100000',f'{lab}_r2:']+pay_load()+['s_waitcnt vmcnt(0)']+chk()+[f's_andn2_b64 s[56:57], exec, s[56:57]\ns_cbranch_scc0 {lab}_got\ns_sub_u32 s46, s46, 1\ns_cbranch_scc0 {lab}_r2\ns_branch {lab}_got']
def z2stat(lab):
    def w(e):
        i=max(j for j,x in enumerate(e.l) if x.startswith(f'buffer_load_dwordx4 {v(PL+24,4)}')); return f's_waitcnt vmcnt({sum(x.startswith("buffer_") for x in e.l[i+1:])})'
    f=[w]+chk()+[f's_andn2_b64 s[56:57], exec, s[56:57]\ns_cbranch_scc1 {lab}_re\n{lab}_got:']
    for j in range(1,7): f+=[f'v_add_f32 {v(PL)}, {v(PL)}, {v(PL+4*j)}',f'v_add_f32 {v(PL+1)}, {v(PL+1)}, {v(PL+4*j+1)}']
    m=A(); meanstd(m,PL,864)
    return f+m.l+[f'v_rcp_f32 {v(PL+1)}, {v(PL+1)}','s_nop 0',f'v_mul_f32 {v(PL)}, {v(PL)}, {v(PL+1)}']
def z2out():
    f=[]
    for j in range(8):
        for r in range(4): f.append(f'v_fma_f32 {v(T+4*j+r)}, {v(T+4*j+r)}, {v(PL+1)}, -{v(PL)}')
        for r in (0,1): f.append(f'v_cvt_pk_bf16_f32 {v(T+4*j+r)}, {v(T+4*j+2*r)}, {v(T+4*j+2*r+1)}')
        f.append(f'ds_write_b64 {v(W)}, {v(T+4*j,2)} offset:{16*j}')
        if j%4==3:
            f+=[f'ds_read_b64_tr_b16 {v(PL+8+2*j-6+4*i+2*r,2)}, {v(W+1)} offset:{i*16*136+r*4*136+16*(j-3)}' for i in (0,1) for r in (0,1)]
    return f,[f'buffer_store_dwordx4 {v(PL+8+8*t+4*i,4)}, {v(vL16)}, {s(sWS,4)}, {s(sZ2a+t)} offen offset:{i*1024}{SC}' for t in (0,1) for i in (0,1)]
def xphase(e,q,stamp,lead):
    XA=16; S=88
    e(f'''v_and_b32 {v(24)}, 31, v0
    v_lshrrev_b32 {v(25)}, 5, v0
    v_and_b32 {v(26)}, 15, v0
    v_xor_b32 {v(26)}, {v(26)}, {v(25)}
    v_lshlrev_b32 {v(26)}, 4, {v(26)}
    v_lshl_add_u32 {v(26)}, {v(24)}, 8, {v(26)}
    v_add_u32 {v(XA)}, {s(sLW)}, {v(26)}
    v_lshrrev_b32 {v(25)}, 3, {v(24)}
    v_mul_u32_u24 {v(25)}, {40960-2048}, {v(25)}
    v_add_u32 {v(25)}, 8192, {v(25)}
    v_mov_b32 {v(27)}, 0x3f803f80''')
    for j in range(1,8): e(f'v_xor_b32 {v(XA+j)}, {32*j}, {v(XA)}')
    for j in range(8): e(f'v_add_u32 {v(32+j)}, {v(25)}, {v(XA+j)}\nv_add_u32 {v(40+j)}, 81920, {v(XA+j)}')
    e(f'''v_lshrrev_b32 v48, 2, v0
    v_lshrrev_b32 v49, 5, v0
    v_xor_b32 v48, v48, v49
    v_and_b32 v48, 1, v48
    v_lshlrev_b32 v48, 4, v48
    v_bfe_u32 v49, v0, 1, 1
    v_bfe_u32 v50, v0, 3, 2
    v_lshl_add_u32 v49, v50, 1, v49
    v_add_u32 v48, v48, v49
    v_and_b32 v49, 1, v0
    v_lshlrev_b32 v49, 4, v49
    v_mov_b32 v50, 0x3f80
    v_lshlrev_b32 v49, v49, v50''')
    for r in range(8): e(f'v_cmp_eq_u32 {s(60+2*r,2)}, {r}, v48')
    for r in range(4): e(f'v_mov_b32 {v(S+r)}, 0')
    for r in range(8): e(f'v_cndmask_b32 {v(80+r)}, 0, v49, {s(60+2*r,2)}')
    def st(p,every):
        for r in range(32):
            if r%every==0: e(q.pop(-1 if p in (4,0,1) else p-2))
            x=v(X+32*p+r); e(f'v_dot2_f32_bf16 {v(S+2*(r&1))}, {x}, v27, {v(S+2*(r&1))}\nv_dot2_f32_bf16 {v(S+1+2*(r&1))}, {x}, {x}, {v(S+1+2*(r&1))}')
    for j in range(8): e(q.pop())
    if 'j' in PFO: e(pf(sWI,17))
    for p in (4,0,1,2,3):
        e(f's_waitcnt vmcnt({q.vm("x%d"%p)})')
        if p==4: stamp(1)
        if p==3: stamp(2)
        for j in range(8): e(f'ds_read_b128 {v(X+32*p+4*j,4)}, {v((32 if p==4 else XA if p<2 else 40)+j)} offset:{40960*(p&1)}')
        if p==4 and lead: e(lead)
        e('s_waitcnt lgkmcnt(0)')
        st(p,4 if p!=3 else 10)
    e(f's_nop 2\nv_add_f32 {v(S)}, {v(S)}, {v(S+2)}\nv_add_f32 {v(S+1)}, {v(S+1)}, {v(S+3)}')
    meanstd(e,S,640)
    e(f'v_rcp_f32 {v(vRstd)}, {v(S+1)}\nv_mov_b32 {v(vStd)}, {v(S+1)}')
    for r in range(16): e(f'v_sub_f32 {v(64+r)}, 0, {v(S)}')
    e(f'''v_mul_f32 {v(vK1)}, {fl(-2.302208198)}, {v(vRstd)}
    v_mul_f32 {v(vK2)}, {v(vRstd)}, {v(vRstd)}
    v_mul_f32 {v(vK2)}, {fl(0.044715)}, {v(vK2)}
    v_mul_f32 {v(vK2)}, {v(vK1)}, {v(vK2)}''')
    for j in range(22):
        for h in (0,1):
            D=16+16*(j%3)
            if j<20: e(f'v_mfma_f32_32x32x16_bf16 {v(D,16)}, {v(80+4*h,4)}, {v(X+8*j+4*h,4)}, {v(64 if h==0 else D,16)}')
            if j<19 and (2*j+h)%5 in (0,2): e(q.pop(3))
            if 'r' in PFO and (j,h)==(9,1): e(pf(sWQ,19))
            if j==19 and h==1:
                e(f's_waitcnt vmcnt({q.vm(0)})\ns_barrier')
                for m in range(DPF): e(rdT(0,m))
            if j<2: e('s_nop 3')
            if j>=2:
                D=16+16*((j-2)%3)+8*h
                for r in range(4): e(f'v_cvt_pk_bf16_f32 {v(X+8*(j-2)+4*h+r)}, {v(D+2*r)}, {v(D+2*r+1)}')
    e(f's_waitcnt lgkmcnt({2*(DPF-1)})'); stamp(3)
def zadd(t,x): return [f'v_add_u32 {v(vZ0+t)}, {x}, {v(vZ0+t)}']
def qadd(x): return [f'v_add_u32 {v(vQM)}, {x}, {v(vQM)}',f'v_add_u32 {v(vQR)}, {x}, {v(vQR)}']
def pf(srd_,n,stride=128):
    return f'''s_mul_i32 {s(sT0)}, {s(sPf)}, {n*stride}
    s_bfm_b64 exec, {n}, 0
    buffer_load_dword v94, v93, {s(srd_,4)}, {s(sT0)} offen
    s_mov_b64 exec, -1'''
def PF1(): return ([pf(sX,20)] if 'x' in PFO else [])+([pf(sWI,17)] if 'i' in PFO else [])+([pf(sWQ,19)] if 'q' in PFO else [])
def PF2():
    return [f'v_lshrrev_b32 v61, {2+NP2}, v0\nv_mul_u32_u24 v61, {4096-(512<<NP2)}, v61\nv_add_u32 v61, v61, v93',pf(52,12<<NP2,1024>>NP2).replace('v93','v61'),
    f'''s_mul_i32 {s(sUn)}, {s(sW)}, 192
    s_add_u32 {s(sUn)}, {s(sUn)}, s2
    s_cmp_ge_u32 {s(sUn)}, 470
    s_cbranch_scc1 k1_nou{'2' if VW else ''}
    s_cmp_lt_u32 {s(sUn)}, 200
    s_cselect_b64 s[52:53], s[56:57], s[58:59]
    s_cselect_b32 s54, 20, 27
    s_mul_i32 s54, s54, 40960
    v_lshrrev_b32 v60, 5, v0
    s_mul_i32 {s(sT0)}, {s(sUn)}, 6554
    s_lshr_b32 {s(sT0)}, {s(sT0)}, 16
    s_mul_i32 {s(sT1)}, {s(sT0)}, 10
    s_sub_u32 {s(sT1)}, {s(sUn)}, {s(sT1)}
    s_mul_i32 s60, {s(sT0)}, 40
    s_mov_b32 s61, 4
    s_mov_b32 s62, 20
    s_mov_b32 s63, 8
    s_cmp_lt_u32 {s(sT0)}, 16
    s_cbranch_scc1 k1_u
    s_lshl_b32 s60, {s(sT0)}, 5
    s_sub_u32 s60, s60, 640
    s_mov_b32 s62, 16
    s_cmp_ge_u32 {s(sT0)}, 20
    s_cbranch_scc1 k1_u
    s_mul_i32 s60, {s(sT0)}, 160
    s_sub_u32 s60, s60, {2560-16}
    s_mov_b32 s61, 40
    s_mov_b32 s62, 80
    s_mov_b32 s63, 20
    k1_u:
    s_mul_i32 s60, s60, 1280
    s_mul_i32 s61, s61, 1280
    s_mul_i32 s62, s62, 1280
    s_lshl_b32 {s(sT1)}, {s(sT1)}, 7
    s_add_u32 s60, s60, {s(sT1)}
    v_mul_u32_u24 v61, s63, v60
    v_bfe_u32 v62, v0, 3, 2
    v_add_u32 v61, v61, v62
    v_mul_u32_u24 v61, 1280, v61
    v_and_b32 v62, 7, v0
    v_lshl_add_u32 v61, v62, 4, v61
    s_add_u32 m0, {s(sLW)}, 122880
    s_add_u32 s64, s60, s61
    buffer_load_dwordx4 v61, s[52:55], s60 offen lds
    s_add_u32 m0, m0, 1024
    s_add_u32 s60, s60, s62
    buffer_load_dwordx4 v61, s[52:55], s64 offen lds
    s_add_u32 m0, m0, 1024
    s_add_u32 s64, s60, s61
    buffer_load_dwordx4 v61, s[52:55], s60 offen lds
    s_add_u32 m0, m0, 1024
    s_nop 0
    buffer_load_dwordx4 v61, s[52:55], s64 offen lds
    k1_nou:''']
def PF3():
    if 'w' not in PFO: return []
    return [f's_mov_b64 s[52:53], s[98:99]\ns_mov_b32 s54, {2048*4096}\ns_mov_b32 s55, 0x00020000\ns_mul_i32 {s(sT0)}, {s(sPf)}, 12288\nbuffer_load_dword v94, v93, s[52:55], {s(sT0)} offen',f's_add_u32 {s(sT0)}, {s(sT0)}, 8192\ns_mov_b32 exec_hi, 0\nbuffer_load_dword v94, v93, s[52:55], {s(sT0)} offen\ns_mov_b32 exec_hi, -1']
def build(stamp_f):
    e=A(); stamp=lambda i: stamp_f(e,i)
    e(f'''s_cmp_ge_u32 s2, 256
    s_cbranch_scc1 k1_end
    s_load_dwordx2 {s(sX,2)}, s[0:1], 0
    s_load_dwordx2 {s(sWQ,2)}, s[0:1], 8
    s_load_dwordx2 {s(sWI,2)}, s[0:1], 32
    s_load_dwordx2 {s(sDB,2)}, s[0:1], 72
    s_load_dwordx2 {s(sWS,2)}, s[0:1], 80
    s_load_dwordx2 s[52:53], s[0:1], 40
    s_load_dwordx2 s[98:99], s[0:1], 40
    s_load_dwordx2 s[56:57], s[0:1], 16
    s_load_dwordx2 s[58:59], s[0:1], 56''')
    if 'c' in PFO: codepf(e,'k1_kernel',4,94)
    e(f'''v_lshrrev_b32 v1, 6, v0
    v_and_b32 v0, 63, v0
    v_readfirstlane_b32 {s(sW)}, v1''')
    stamp(0)
    srd(e,sX,2048*1280); srd(e,sWQ,640*3840); srd(e,sWI,640*3456); srd(e,sDB,256); srd(e,sWS,WSZ); srd(e,52,2048*4096)
    e(f'''s_bfe_u32 {s(sRB)}, s2, 0x20001
    s_lshl_b32 {s(sRB)}, {s(sRB)}, 2
    s_bfe_u32 {s(sT0)}, s2, 0x20003
    s_add_u32 {s(sRB)}, {s(sRB)}, {s(sT0)}
    s_mul_i32 {s(sLW)}, {s(sW)}, 10240
    s_lshl_b32 {s(sT0)}, {s(sRB)}, 2
    s_add_u32 {s(sIt)}, {s(sT0)}, {s(sW)}
    s_mul_i32 {s(sLine)}, {s(sIt)}, {32*1280}
    v_lshrrev_b32 v16, 4, v0
    v_and_b32 v17, 15, v0
    v_xor_b32 v17, v17, v16
    v_lshlrev_b32 v17, 4, v17
    v_mul_u32_u24 v16, 1280, v16
    v_add_u32 v28, v16, v17
    v_xor_b32 v29, 64, v28
    v_xor_b32 v30, 128, v28
    v_xor_b32 v31, 192, v28
    s_lshl_b32 {s(sPf)}, s2, 2
    s_add_u32 {s(sPf)}, {s(sPf)}, {s(sW)}
    v_lshlrev_b32 v93, 7, v0
    s_waitcnt lgkmcnt(0)''')
    def dmaX(p,i):
        l=(i>>1)*40960+8192+(i&1)*1024 if p==4 else p*40960+i*1024
        return [f's_add_u32 m0, {s(sLW)}, {l}',f's_add_u32 {s(sOff)}, {s(sLine)}, {4*i*1280+p*256}',f'buffer_load_dwordx4 {v(28+(i&3))}, {s(sX,4)}, {s(sOff)} offen lds']
    def newq():
        q=DQ()
        for p in (4,0,1,2,3): q.add(f'x{p}',lambda i:dmaX(p,i),8)
        return q,[q.pop() for i in range(8)]
    e(f'''s_lshl_b32 {s(sStR)}, {s(sRB)}, 6
    s_add_u32 {s(sStR)}, {s(sStR)}, {s(sW)}
    s_lshl_b32 {s(sStR)}, {s(sStR)}, 9
    s_add_u32 {s(sStR)}, {s(sStR)}, {ST}
    s_and_b32 {s(sT0)}, s2, 0xe1
    s_or_b32 {s(sN2)}, {s(sT0)}, {s(sW)}
    s_cbranch_scc1 k1_nl
    buffer_load_dword {v(vNon)}, off, {s(sWS,4)}, {s(sStR)} offset:8 sc1
    k1_nl:''')
    e(PF1())
    e(newq()[1])
    e(f'''v_lshlrev_b32 {v(vL16)}, 4, v0
    v_lshrrev_b32 v16, 5, v0
    v_bfe_u32 v17, v0, 2, 2
    v_lshl_add_u32 v16, v16, 3, v17
    v_bfe_u32 v17, v0, 4, 1
    v_and_b32 v18, 3, v0
    v_lshl_add_u32 v19, v17, 2, v18
    v_lshlrev_b32 {v(vZ0)}, 3, v19
    v_lshl_add_u32 {v(vZ0)}, v16, 7, {v(vZ0)}
    v_and_b32 v20, 8, v0
    v_lshl_add_u32 {v(vZ0)}, v20, 3, {v(vZ0)}
    v_xor_b32 {v(vZ1)}, 64, {v(vZ0)}
    v_mul_u32_u24 v16, 320, v16
    v_add_u32 v16, 81920, v16
    v_mul_u32_u24 v20, 160, v17
    v_lshl_add_u32 v20, v18, 3, v20
    v_add_u32 {v(vQM)}, v16, v20
    v_mul_u32_u24 v19, 40, v19
    v_add3_u32 {v(vQR)}, v16, v19, 32
    v_lshrrev_b32 v16, 3, v0
    v_mul_u32_u24 v16, 3456, v16
    v_and_b32 v18, 7, v0
    v_lshlrev_b32 v17, 2, v17
    v_xor_b32 v18, v18, v17
    v_lshl_add_u32 {v(vDZ)}, v18, 4, v16
    s_lshr_b32 {s(sT0)}, s2, 5
    s_and_b32 {s(sT1)}, s2, 1
    s_mul_i32 {s(sB0)}, {s(sW)}, {80*3456}
    s_mul_i32 {s(sZa)}, {s(sIt)}, {2*TL}
    s_add_u32 {s(sZa)}, {s(sZa)}, {ACT}
    v_bfe_u32 v17, v0, 4, 1
    v_mul_u32_u24 v17, {TL-256}, v17
    v_and_b32 v18, 32, v0
    v_mad_i32_i24 v17, v18, -8, v17
    v_add_u32 {v(vL2)}, v17, {v(vL16)}
    s_lshl_b32 {s(sZ2a)}, {s(sIt)}, 11
    s_add_u32 {s(sZ2a)}, {s(sZ2a)}, {Z2T-27*131072}
    s_cmp_ge_u32 {s(sT0)}, 6
    s_cbranch_scc1 k1_B''')
    for j in range(5):
        e(f'''v_add_u32 v16, {64*j}, v0
        v_mul_u32_u24 v17, 3277, v16
        v_lshrrev_b32 v17, 16, v17
        v_mul_u32_u24 v17, {3840-320}, v17
        v_lshl_add_u32 {v(vD+j)}, v16, 4, v17''')
    e(f'''s_mul_i32 {s(sA)}, {s(sT1)}, 6
    s_add_u32 {s(sA)}, {s(sA)}, {s(sT0)}
    s_mov_b32 {s(sCi)}, {s(sA)}
    s_add_u32 {s(sT0)}, {s(sA)}, 15
    s_lshl_b32 {s(sT1)}, {s(sT0)}, 18
    s_add_u32 {s(sZ2a)}, {s(sZ2a)}, {s(sT1)}
    s_add_u32 {s(sZ2b)}, {s(sZ2a)}, 131072
    s_lshl_b32 {s(sT0)}, {s(sT0)}, 7
    s_add_u32 {s(sB0)}, {s(sB0)}, {s(sT0)}
    s_add_u32 {s(sB1)}, {s(sB0)}, {320*3456}
    s_mul_i32 {s(sQB)}, {s(sW)}, {32*3840}
    s_mul_i32 {s(sT0)}, {s(sA)}, 320
    s_add_u32 {s(sQB)}, {s(sQB)}, {s(sT0)}''')
    q=newq()[0]
    q.add(0,lambda i:dmaZ(0,i,sB0),10); q.add(1,lambda i:dmaZ(1,i,sB1),10)
    for j in range(5): q.add(2+j,lambda i:dmaQ((2+j)&3,i,j),10)
    xphase(e,q,stamp,f'''s_cmp_lg_u32 {s(sN2)}, 0
    s_cbranch_scc1 k1_nl2
    v_add_u32 {v(vNon)}, 1, {v(vNon)}
    v_max_u32 {v(vNon)}, 1, {v(vNon)}
    s_lshl_b32 {s(sT1)}, {s(sRB)}, 4
    s_mov_b64 exec, 1
    buffer_store_dword {v(vNon)}, off, {s(sDB,4)}, {s(sT1)} sc1
    s_mov_b64 exec, -1
    k1_nl2:''')
    dense=lambda g:(lambda n: g(n) if n%5 in (1,3) else None)
    sparse=lambda g:(lambda n: g if n%3==1 and n<35 else None)
    def P0(): phase(e,40,mfT(0),lambda m:rdT(m//40,m),{15:((1,),zadd(0,40960)+[non_load()])},q,dense(lambda n:3),img_addr()+pay_addr(),4)
    P0(); f=gelu(0)
    phase(e,40,mfT(1),lambda m:rdT(1,m) if m<40 else rdQ(m),{15:(63,zadd(1,40960)),35:((2,),[])},q,lambda n:(4 if n>15 else 3) if n%3==1 else None,f)
    stamp(4)
    f+=gelu(1)+stat1(0,True)+stat1(1,False)+publish('k1_na')
    phase(e,40,mfQ(0),rdQ,{35:((3,),qadd(40960))},q,sparse(5),f); stamp(8)
    phase(e,40,mfQ(1),rdQ,{35:((4,),qadd(-122880)+PF2())},q,sparse(6),f); stamp(9)
    assert not q.items
    f+=[f'''s_lshr_b32 {s(sTy)}, {s(sA)}, 2
    s_cmp_eq_u32 {s(sTy)}, 0
    s_cselect_b32 {s(sSc)}, {fl(0.32259641858)}, 1.0
    s_mov_b32 {s(sQB)}, {KV}''',f'''s_and_b32 {s(sT0)}, {s(sA)}, 3
    s_mul_i32 {s(sT0)}, {s(sT0)}, {8*HS}
    s_add_u32 {s(sQB)}, {s(sQB)}, {s(sT0)}''',f'''s_lshr_b32 {s(sT0)}, {s(sIt)}, 1
    s_mul_i32 {s(sT0)}, {s(sT0)}, {SS}
    s_add_u32 {s(sQB)}, {s(sQB)}, {s(sT0)}''',f'''s_and_b32 {s(sB0)}, {s(sW)}, 1
    s_lshl_b32 {s(sB1)}, {s(sUn)}, 12
    s_add_u32 {s(sB1)}, {s(sB1)}, {WF}''',f'v_mul_f32 v63, {s(sSc)}, {v(vRstd)}',
    f'v_add_u32 {v(vQM+2)}, 81920, {v(vQM)}',f'v_add_u32 {v(vQR+2)}, 81920, {v(vQR)}',
    'v_lshrrev_b32 v60, 4, v0','v_bfe_u32 v61, v0, 2, 2','v_lshl_add_u32 v60, v60, 3, v61','v_and_b32 v61, 3, v0','v_lshlrev_b32 v61, 3, v61',
    'v_lshl_add_u32 v60, v60, 7, v61',f's_add_u32 {s(sT0)}, {s(sLW)}, 122880\nv_add_u32 v62, {s(sT0)}, v60','v_and_b32 v60, 31, v0','v_lshrrev_b32 v61, 5, v0']
    TO=(4,0,1,2,3)
    def rdL(m): m=min(m,72+m%8); return rdQ(m,m%8,TO[m//16],2*((m>>3)&1))
    phase(e,40,mfQ(2),lambda m:rdQ(m) if m<40 else rdL(m-40),{35:(5 if VW else 0,qadd(40960))},fill=f); stamp(10)
    assert not f
    e(f's_cmp_eq_u32 {s(sTy)}, 2\ns_cbranch_scc1 k1_V')
    E,P,VR,RL=96,112,128,144
    for isV in (0,1):
        L='k1_v' if isV else 'k1_q'
        f=[f's_cmp_ge_u32 {s(sUn)}, 470\ns_cbranch_scc1 {L}a\n'+'\n'.join(f'ds_read_b64_tr_b16 {v(RL+4*j+2*r,2)}, v62 offset:{32*j+512*r}' for j in range(4) for r in (0,1))+f'\n{L}a:']
        if isV:
            e('k1_V:')
            f+=[f's_lshl_b32 {s(sT0)}, {s(sB0)}, 11\ns_add_u32 {s(sQB)}, {s(sT0)}, {s(sQB)}','v_lshlrev_b32 v61, 9, v61','v_bfe_u32 v64, v0, 4, 1',f'v_mul_u32_u24 v64, {4*HS}, v64','v_and_b32 v65, 15, v0',
                'v_lshl_add_u32 v64, v65, 4, v64','v_add_u32 v64, v64, v61','v_lshrrev_b32 v65, 2, v60',f'v_mul_u32_u24 v65, {HS}, v65','v_and_b32 v60, 3, v0','v_lshl_add_u32 v65, v60, 4, v65','v_add_u32 v65, v65, v61',
                'v_lshrrev_b32 v56, 4, v0','v_lshlrev_b32 v56, 8, v56',f'v_add_u32 v56, v56, {v(vL16)}']+([f'v_mov_b32 {v(68+r)}, 0x3f803f80' for r in range(4)] if os.environ.get('ONES') else ['v_and_b32 v68, 11, v0','v_cmp_eq_u32 vcc, 8, v68\nv_mov_b32 v69, 0x3f803f80\ns_nop 0\nv_cndmask_b32 v68, 0, v69, vcc']+[f'v_mov_b32 {v(69+r)}, v68' for r in range(3)])
            f+=[f's_add_u32 {s(sT0)}, {s(sQB)}, {p*HS+2048+256}\ns_mov_b32 exec_lo, 0xfff0fff0\ns_mov_b32 exec_hi, 0xfff0fff0\nbuffer_store_dwordx4 v[68:71], v56, {s(sWS,4)}, {s(sT0)} offen{SC}\ns_mov_b64 exec, -1' for p in range(8)]
        else:
            f+=[f's_lshl_b32 {s(sT0)}, {s(sB0)}, 8\ns_add_u32 {s(sDel)}, {s(sT0)}, {s(sQB)}',f's_lshl_b32 {s(sT0)}, {s(sB0)}, 10\ns_add_u32 {s(sQB)}, {s(sT0)}, {s(sQB)}',f'v_mul_u32_u24 v61, {HS}, v61','v_lshl_add_u32 v61, v60, 3, v61',f'''s_add_u32 {s(sDel)}, {s(sDel)}, 6144
                s_mov_b32 {s(sLine)}, {HS}
                s_mov_b32 {s(sN2)}, {2*HS}
                s_cmp_lg_u32 {s(sTy)}, 0
                s_cbranch_scc1 k1_k
                s_lshl_b32 {s(sT0)}, {s(sA)}, 12
                s_add_u32 {s(sQB)}, {s(sZa)}, {s(sT0)}
                s_lshr_b32 {s(sT0)}, {s(sT0)}, 2
                s_add_u32 {s(sDel)}, {s(sZa)}, {s(sT0)}
                s_add_u32 {s(sDel)}, {s(sDel)}, 16384
                s_mov_b32 {s(sLine)}, 512
                s_mov_b32 {s(sN2)}, 256
                v_lshrrev_b32 v61, 5, v0
                v_mul_u32_u24 v61, 248, v61
                v_sub_u32 v61, {v(vL2)}, v61
                s_branch k1_k2
                k1_k:
                v_mov_b32 {v(vL2)}, {v(vL16)}
                k1_k2:''',('@',5)]
        f+=[f's_cmp_ge_u32 {s(sUn)}, 470\ns_cbranch_scc1 {L}b\n'+'\n'.join(f'buffer_store_dwordx4 {v(RL+4*j,4)}, {v(vL16)}, {s(sWS,4)}, {s(sB1)} offen offset:{1024*j}{SC}' for j in range(4))+f'\n{L}b:']
        if VW: rl=[f.pop(0),f.pop()]
        f+=[('@',PAYAT)]+pay_load()+PF3()
        zo,zs=z2out(); late=[]
        for k,p in enumerate(TO):
            Pk=P+8*(k&1); Vk=VR+8*(k&1)
            f+=[('@',16*k+19)]+[f'v_accvgpr_read_b32 {v(E+r)}, {a(AQ+16*p+r)}' for r in range(16)]+late; late=[]
            for r in range(8): f+=[f'v_mul_f32 {v(E+2*r)}, {v(E+2*r)}, v63',f'v_mul_f32 {v(E+2*r+1)}, {v(E+2*r+1)}, v63',f'v_cvt_pk_bf16_f32 {v(Pk+r)}, {v(E+2*r)}, {v(E+2*r+1)}']
            if isV:
                o=4352+64*(k&1)
                f+=[f'ds_write_b64 {v(W)}, {v(Pk+2*j,2)} offset:{o+16*j}' for j in range(4)]
                f+=[f'ds_read_b64_tr_b16 {v(Vk+4*i+2*r,2)}, {v(W+1)} offset:{o+i*16*136+r*4*136}' for i in (0,1) for r in (0,1)]
                late=[f's_add_u32 {s(sOff)}, {s(sQB)}, {(p*HS if p<4 else 256)+2048}']+[f'buffer_store_dwordx4 {v(Vk+4*i,4)}, {v(64 if p<4 else 65)}, {s(sWS,4)}, {s(sOff)} offen offset:{1024*i}{SC}' for i in (0,1)]
            elif p<4: f+=[f's_mul_i32 {s(sOff)}, {s(sLine)}, {p+4*h}\ns_add_u32 {s(sOff)}, {s(sQB)}, {s(sOff)}\nbuffer_store_dwordx4 {v(Pk+4*h,4)}, {v(vL2)}, {s(sWS,4)}, {s(sOff)} offen{SC}' for h in (0,1)]
            else: f+=[f's_mul_i32 {s(sOff)}, {s(sN2)}, {j}\ns_add_u32 {s(sOff)}, {s(sDel)}, {s(sOff)}\nbuffer_store_dwordx2 {v(Pk+2*j,2)}, v61, {s(sWS,4)}, {s(sOff)} offen{SC}' for j in range(4)]
            if k==1: f+=z2stat(L)
            if k==1 and VW: f+=rl[:1]; late+=rl[1:]
            if k==2: f+=zo[:32]; late+=zs[:2]
            if k==3: f+=zo[32:]; late=[('+',99)]+late+zs[2:]
        f+=[('+',99)]+late
        phase(e,80,lambda n:f'v_mfma_f32_32x32x16_bf16 {a(AQ+16*TO[n//16],16)}, {a(FR+4*(n%8),4)}, {v(X+96+4*(n%16),4)}, {a(AQ+16*TO[n//16],16)}',rdL,{},fill=f,bud=BL)
        stamp(5); print('# A tail items',len(f)); flush(e,f)
        if not isV: e('s_branch k1_fin')
    e(f'k1_fin:\ns_cmp_ge_u32 {s(sPf)}, 32\ns_cbranch_scc1 k1_f2\ns_lshl_b32 {s(sT0)}, {s(sPf)}, {6+FS}\ns_add_u32 {s(sT0)}, {s(sT0)}, 0x1E80000\nv_lshlrev_b32 v2, {FS}, v0\nv_mov_b32 v3, 0\nbuffer_store_dword v3, v2, {s(sWS,4)}, {s(sT0)} offen\nk1_f2:'); stamp(7); stamp(-1)
    e('k1_end:\ns_endpgm')
    if VW: e('k1_nou2:\ns_mov_b32 s54, 0\n'+4*'buffer_load_dword v94, v93, s[52:55], 0 offen\n'+'s_branch k1_nou')
    for l in ('k1_q','k1_v','k1_b'): e(retry(l))
    for l in ('k1_na','k1_nb','k1_nc'): e(non_spin(l))
    e(f'''k1_B:
    s_lshl_b32 {s(sA)}, {s(sT1)}, 1
    s_add_u32 {s(sA)}, {s(sA)}, {s(sT0)}
    s_sub_u32 {s(sA)}, {s(sA)}, 6
    s_mul_i32 {s(sLn)}, {s(sA)}, 0x04040404
    s_sub_u32 {s(sLn)}, {s(sLn)}, 0x00010203
    s_cmp_eq_u32 {s(sA)}, 0
    s_cselect_b32 {s(sN2)}, 2, 3
    s_cselect_b32 {s(sLn)}, 0x0d0e, {s(sLn)}
    s_add_u32 {s(sTy)}, {s(sZa)}, 20480
    s_mov_b32 {s(sUn)}, {s(sB0)}
    s_and_b32 {s(sT0)}, {s(sLn)}, 0xff
    s_lshl_b32 {s(sT0)}, {s(sT0)}, 7
    s_add_u32 {s(sB0)}, {s(sUn)}, {s(sT0)}
    s_add_u32 {s(sB1)}, {s(sB0)}, {320*3456}
    s_bfe_u32 {s(sT0)}, {s(sLn)}, 0x80008
    s_lshl_b32 {s(sT0)}, {s(sT0)}, 7
    s_add_u32 {s(sQB)}, {s(sUn)}, {s(sT0)}
    s_add_u32 {s(sSc)}, {s(sQB)}, {320*3456}''')
    q=newq()[0]
    for j,bs in enumerate((sB0,sB1,sQB,sSc)): q.add(j,lambda i:dmaZ(j,i,bs),10)
    xphase(e,q,stamp,None)
    P0(); assert not q.items
    stamp(4)
    e(f'''s_mov_b32 {s(sIt)}, 0
    s_mov_b32 {s(sDel)}, 40960
    s_mov_b32 {s(sLine)}, 0
    s_branch k1_pb
    k1_loop:''')
    q.add(5,lambda i:dmaZ(s(sSc),i,sB1),10); f=gelu(1,sZb); stamp(8)
    phase(e,40,mfT(0),lambda m:rdT(m//40,m),{1:(None,zadd(1,s(sDel))+[f'v_xor_b32 {v(vZ1)}, {s(sCi)}, {v(vZ1)}']),15:(None,zadd(0,40960))},q,lambda n:5 if n<3 or n%4==1 else None,f,BB)
    flush(e,f); assert not q.items
    e(f'''s_sub_u32 {s(sDel)}, -81920, {s(sDel)}
    s_sub_u32 {s(sLine)}, 81920, {s(sLine)}
    s_lshl_b32 {s(sT0)}, {s(sA)}, 2
    s_add_u32 {s(sT0)}, {s(sT0)}, {s(sIt)}
    s_cmp_eq_u32 {s(sT0)}, 1
    s_cbranch_scc1 k1_s1
    k1_pb:
    s_and_b32 {s(sT0)}, {s(sLn)}, 0xff
    s_lshl_b32 {s(sZa)}, {s(sT0)}, 11
    s_add_u32 {s(sZa)}, {s(sZa)}, {s(sTy)}
    s_add_u32 {s(sZb)}, {s(sZa)}, 1024
    s_cmp_eq_u32 {s(sT0)}, 13
    s_cselect_b32 {s(sZb)}, {s(sZa)}, {s(sZb)}
    s_cmp_eq_u32 {s(sT0)}, 14
    s_cselect_b32 {s(sZb)}, {OOR}, {s(sZb)}
    s_cmp_ge_u32 {s(sT0)}, 13
    s_cselect_b32 {s(sZa)}, {OOR}, {s(sZa)}
    s_cselect_b32 {s(sCi)}, 64, 0''')
    q.add(4,lambda i:dmaZ(s(sLine),i,sB0),10); f=gelu(0,sZa); stamp(9)
    mid=f'''s_bfe_u32 {s(sT0)}, {s(sLn)}, 0x80010
    s_lshl_b32 {s(sT0)}, {s(sT0)}, 7
    s_add_u32 {s(sB0)}, {s(sUn)}, {s(sT0)}
    s_add_u32 {s(sB1)}, {s(sB0)}, {320*3456}
    s_add_u32 {s(sSc)}, {s(sLine)}, 40960
    s_add_u32 {s(sT0)}, {s(sIt)}, 2
    s_cmp_le_u32 {s(sT0)}, {s(sN2)}
    s_cselect_b32 {s(sWI+2)}, {640*3456}, 0
    s_lshr_b32 {s(sLn)}, {s(sLn)}, 8'''
    phase(e,40,mfT(1),lambda m:rdT(1-m//40,m),{0:(None,[mid]),1:(None,zadd(0,s(sDel))+[f'v_xor_b32 {v(vZ0)}, {s(sCi)}, {v(vZ0)}']),15:(63,zadd(1,40960)),35:(10,[])},q,lambda n:4 if n>15 and n%2==0 else None,f,BB)
    flush(e,f); assert not q.items; stamp(10)
    e(f'''s_cmp_lg_u32 {s(sCi)}, 0
    s_cbranch_scc1 k1_s0
    k1_next:
    s_add_u32 {s(sIt)}, {s(sIt)}, 1
    s_cmp_le_u32 {s(sIt)}, {s(sN2)}
    s_cbranch_scc1 k1_loop''')
    stamp(5)
    e(f's_cmp_lg_u32 {s(sA)}, 0\ns_cbranch_scc1 k1_nop'); e(pay_load()); e('k1_nop:')
    flush(e,gelu(1,sZb))
    e(f's_cmp_lg_u32 {s(sA)}, 0\ns_cbranch_scc1 k1_fin'); stamp(6)
    flush(e,z2stat('k1_b'))
    e(f's_add_u32 {s(sZ2a)}, {s(sZ2a)}, {28*131072}\ns_add_u32 {s(sZ2b)}, {s(sZ2a)}, 131072')
    zo,zs=z2out()
    for r in range(32): e(f'v_accvgpr_read_b32 {v(T+r)}, {a(ASV+r)}')
    flush(e,zo+[('+',0)]+zs)
    e(f's_sub_u32 {s(sZ2a)}, {s(sZ2a)}, 131072')
    for r in range(16): e(f'v_accvgpr_read_b32 {v(T+r)}, {a(ASV+32+r)}')
    flush(e,zo[:32]+[('+',0)]+zs[:2])
    e('s_branch k1_fin')
    sv=lambda t,o:[f'v_accvgpr_write_b32 {a(ASV+o+r)}, {v(T+16*t+r)}' for r in range(16)]
    e('k1_s1:'); e(stat1(1,False)); e(f's_mov_b32 {s(sCi)}, 12'); e(publish('k1_nb')); e(sv(1,16)); e('s_branch k1_pb')
    e('k1_s0:'); e(stat1(0,True)); e(f's_cmp_eq_u32 {s(sIt)}, 0\ns_cbranch_scc0 k1_s2'); e(sv(0,0)); e('s_branch k1_next')
    e(f'k1_s2:\ns_mov_b32 {s(sCi)}, 13'); e(publish('k1_nc')); e(sv(0,32)); e(f's_mov_b32 {s(sCi)}, 64\ns_branch k1_next')
    return e
```

```python
from lib import *
import os
LEAD=int(os.environ.get('LEAD','3')); NPF=int(os.environ.get('NPF','1'))
sWS,sDM,sSP,sX,sBS,sO=4,8,12,16,20,60
FL=0x1E80000; SC=' sc1'; OOR='0xf0000000'
sW,sH,sQB,sTB,sFB,sT0,sT1,sT2,sKV,sZ,sSo,sMk,sMz,sMw,sIt,sU0,sU1,sUn,sWq,sKh,sSl,sSt,sLim=range(24,47)
vL16,vA,vK,vR,vB0,vB1,vDW0,vDW1,vIdx,vBs,vT=1,2,3,4,5,6,7,8,9,10,11
SA,SB,O0,O1,G0,G1=16,32,48,64,80,96
QM,QR,KM,KR,V0,V1,GA0,GA1,GBa,Z=112,120,124,128,132,136,140,144,148,152
sWf,sFl,sAo,sOo,sNk=47,48,32,36,49
vL4=172; vSt=173; sUa,sPfW=64,65; WS_=[176,196,216,236,152,112,132]; AR,AC,XR=16,72,4
LK,LZ,LW=0,7168,15360
def dma(j,slot):
    o=slot*32768
    if j==0: return [f's_add_u32 m0, {s(sMw)}, {o}', None, f'buffer_load_dwordx4 {v(vDW0)}, {s(sSP,4)}, {s(sSo)} offen lds']
    if j==1: return [f's_add_u32 m0, {s(sMw)}, {o+1024}', None, f'buffer_load_dwordx4 {v(vDW1)}, {s(sSP,4)}, {s(sSo)} offen lds']
    if j==2: return [f's_add_u32 m0, {s(sMz)}, {o}', f's_add_u32 {s(sSo)}, {s(sSo)}, {s(sSt)}', f'buffer_load_dwordx4 {v(vL16)}, {s(sDM,4)}, {s(sZ)} offen lds']
    return [f's_add_u32 m0, {s(sMk)}, {o}', f's_add_u32 {s(sZ)}, {s(sZ)}, 4096', f'buffer_load_dwordx4 {v(vL16)}, {s(sDM,4)}, {s(sKV)} offen lds']
def em(e,d,alt='s_nop 0'): e([d[0],d[1] or alt,d[2]])
def mf(D,Aa,B,C=None): return f'v_mfma_f32_32x32x16_bf16 {v(D,16)}, {v(Aa,4)}, {v(B,4)}, '+(C or v(D,16))
def mf8(D,Aa,B): return f'v_mfma_f32_32x32x8_bf16 {v(D,16)}, {v(Aa,2)}, {v(B,2)}, {v(D,16)}'
def pv(D,Aa,P): return f'v_smfmac_f32_32x32x32_bf16 {v(D,16)}, {v(Aa,4)}, {v(P,8)}, {v(vIdx)}'
def rd(D,ad,off): return f'ds_read_b128 {v(D,4)}, {v(ad)} offset:{off}'
NAR=int(os.environ.get('NAR','1')); DP=int(os.environ.get('DP','0')); NP2=int(os.environ.get('NP2','0')); NOG=int(os.environ.get('NOG','0')); WT=int(os.environ.get('WT','7'))
NA,NB,BR,PAD,PA0,RO=[int(os.environ.get(x,'0')) for x in ('NA','NB','BR','PAD','PA0','RO')]
RO=RO or 2; NX=[int(c) for c in os.environ.get('NX','33344771')]; NIT=16-len(NX)//2
PRI=os.environ.get('PRI','0')
ABL=os.environ.get('ABL','')
def wld(j,n): return ['s_nop 0'] if 'w' in ABL else ([f's_add_u32 {s(sWf)}, {s(sWf)}, 40960'] if n==0 else [])+[f'buffer_load_dwordx4 {v(WS_[j]+4*n,4)}, {v(vL16 if n<4 else vL4)}, {s(sWS,4)}, {s(sWf)} offen offset:{(n&3)*1024}']
EX=int(os.environ.get('EX','1'))
def pp_(e,par,grp,pe=0,xl=None,vm=4,nx=0):
    c=par*32768; n=(1-par)*32768; dp=1-par; last=pe==31
    if WT and not par and not pe: vm=5
    mid,hi,lo='s_setprio 1','s_setprio 2','s_setprio 0'
    def ex(S):
        for r in range(16): e(f'v_exp_f32 {v(S+r)}, {v(S+r)}')
    order=[5,8,10,0,11,9,1,3] if pe<=28 else [2,4,0,5,6,7,8] if last else [2,6,4,7,10,5,8,0,11]
    def X(p):
        if xl and p in order[:nx]: e(xl.pop(0))
    def D(j,p,alt='s_nop 0'): em(e,dma(j,dp),alt) if pe<=28 else X(p)
    def N(x):
        if not last: e(x)
    wr=lambda b,j: f'ds_write_b128 v12, {v(b+4*j,4)} offset:{1024*j}'
    bar=f's_waitcnt vmcnt({vm})\ns_barrier' if not last else ''
    if grp: e(bar)
    ex(SA)
    if par:
        for r in (vK,vR,vB0): N(f'v_xor_b32 {v(r)}, 0x10000, {v(r)}')
    if not grp: e(bar)
    e(mid); e('s_waitcnt lgkmcnt(2)')
    e(mf(SB,KM,QM+4,'0')); e(hi); X(0)
    e(mf8(SB,KR,QR+2)); N(rd(KM,vK,n)); N(f'ds_read_b64 {v(KR,2)}, {v(vR)} offset:{n}'); X(1)
    if WT and par and not pe: e(f's_cmp_ge_u32 {s(sIt)}, {NIT-WT}\ns_cselect_b32 {s(sT0)}, {s(sPfW)}, {OOR}\ns_add_u32 {s(sPfW)}, {s(sPfW)}, 40960\nbuffer_load_dword v15, v14, {s(sWS,4)}, {s(sT0)} offen')
    e(mf(G0,GA0,GBa)); e(rd(GA0,vA,c+LZ+1024)); D(0,2)
    e(mf(G1,GA1,GBa)); e(f's_waitcnt lgkmcnt({1 if last else 3})'); e(rd(GA1,vA,c+LZ+4096+1024)); e(rd(GBa,vB1,c)); X(3)
    e(pv(O0,V0,SA)); D(1,4,f's_add_u32 {s(sKV)}, {s(sKV)}, {SS}')
    e(pv(O0,V1,SA+8)); X(5)
    if last and EX:
        assert nx<=4
        e('s_waitcnt lgkmcnt(0)'); e(mf(G0,GA0,GBa)); e(mf(G1,GA1,GBa)); e(lo)
        at={8:[0],10:[1],12:[2],14:[3]} if grp else {10:[0,1],11:[2,3],12:[4],13:[5],14:[6],15:[7]}
        for r in range(16):
            e(f'v_exp_f32 {v(SB+r)}, {v(SB+r)}')
            for j in at.get(r,[]): e(wr(O0 if grp else G0,j))
        e(mid); grp and e('s_nop 0'); e(pv(O1,V0,SB)); e(hi); e(pv(O1,V1,SB+8))
        if grp:
            up=lambda r: f'v_lshlrev_b32 {v(SA+2*r)}, 16, {v(Z+r)}\nv_and_b32 {v(SA+2*r+1)}, 0xffff0000, {v(Z+r)}'
            e(f's_waitcnt vmcnt({12+5*LP})'); e(f'v_lshlrev_b32 v14, 16, {v(vBs)}\nv_lshlrev_b32 v15, 16, {v(vBs)}')
            for r in range(5): e(up(r))
            e([wr(O0,j) for j in range(4,8)]); e(lo)
            for r in range(5,16): e(up(r))
            for r in range(16): e(f'v_pk_add_f32 {v(G0+2*r,2)}, {v(G0+2*r,2)}, v[14:15]')
        else: e(lo)
        return
    last and e('s_nop 1'); e(lo)
    ex(SB)
    if par:
        for r in (vA,vB1): N(f'v_xor_b32 {v(r)}, 0x10000, {v(r)}')
    e(mid); e('s_waitcnt lgkmcnt(0)')
    if last:
        if grp:
            e(pv(O1,V0,SB)); e(hi); e([wr(O0,0),wr(O0,1)]); X(6); e(pv(O1,V1,SB+8)); e([wr(O0,2),wr(O0,3)]); X(7)
            e(mf(G0,GA0,GBa)); X(8); e(mf(G1,GA1,GBa)); e('s_nop 7'); e([wr(O0,j) for j in range(4,8)])
        else:
            e(mf(G0,GA0,GBa)); e(hi); X(6); e(mf(G1,GA1,GBa)); X(7); e(pv(O1,V0,SB)); X(8); e('s_nop 8'); e([wr(G0,0),wr(G0,1)])
            e(pv(O1,V1,SB+8)); e([wr(G0,j) for j in range(2,8)])
        e(lo); return
    e(mf(SA,KM,QM,'0')); e(hi); D(2,6)
    e(mf8(SA,KR,QR)); D(3,7)
    e(mf(G0,GA0,GBa)); e(rd(GA0,vA,n+LZ))
    if dp and pe<28:
        for r in (sMk,sMz,sMw): e(f's_xor_b32 {s(r)}, {s(r)}, 0x10000')
    X(8)
    e(mf(G1,GA1,GBa)); e(rd(GA1,vA,n+LZ+4096)); e(rd(GBa,vB0,n))
    if dp and not pe: e(f's_cmp_lt_u32 {s(sIt)}, {s(sLim)}\ns_cselect_b32 {s(sSP+2)}, {s(sSP+2)}, 0')
    X(9)
    e(pv(O1,V0,SB)); e(rd(V0,vA,n+2048)); X(10)
    if par and not pe: e(f's_add_u32 {s(sIt)}, {s(sIt)}, 1\n'+(f's_cmp_eq_u32 {s(sIt)}, {s(sUn)}\ns_cbranch_scc1 k2_n{grp}\n' if NOG else f's_cmp_eq_u32 {s(sIt)}, 33\ns_cbranch_scc1 k2_end\n' if RO&(2<<grp) else '')+f's_cmp_lt_u32 {s(sIt)}, {NIT}')
    e(pv(O1,V1,SB+8)); e(rd(V1,vA,n+3072)); X(11); e(lo)
PT=os.environ.get('PT','001001')
def pp(e,par,grp,*a,nog=0):
    m=A(); pp_(m,par,grp,*a); k=0
    if DP and (not a or a[0]<=28):
        idx=[i for i,x in enumerate(m.l) if x.endswith(' lds')]; tr=[m.l[i-2:i+1] for i in idx]
        rest=[x for i,x in enumerate(m.l) if not any(j-2<=i<=j for j in idx)]
        key='v_exp' if grp and DP&1 else 'mfma'; pos=(1,5,9,13) if key=='v_exp' else (0,2,4,5) if DP&4 else (0,1,2,3)
        m.l=[]; c=0
        for x in rest:
            m.l.append(x)
            if key in x:
                if c in pos and tr: m.l+=tr.pop(0)
                c+=1
    if nog:
        dr=lambda x: any(v(r,4) in x for r in (GA0,GA1,GBa)) or (x.endswith(' lds') and s(sKV)+' ' not in x) or x=='s_nop 0' or x.startswith((f's_add_u32 m0, {s(sMw)}',f's_add_u32 m0, {s(sMz)}',f's_add_u32 {s(sSo)}','s_cmp_eq',f's_cselect_b32 {s(sSP+2)}',f's_cmp_lt_u32 {s(sIt)}, {s(sLim)}'))
        m.l=[x.replace('lgkmcnt(3)','lgkmcnt(2)').replace('vmcnt(4)','vmcnt(1)').replace(f's_cbranch_scc1 k2_n{grp}',f'k2_n{grp}:').replace('s_setprio 0',f's_setprio 0\ns_nop {NOG}') for x in m.l if not dr(x)]
    if nog:
        L=sum([y.split('\n') for y in m.l],[]); m.l=[]
        for x in L:
            if x.endswith(' lds') or x.startswith(('s_setprio','s_waitcnt vmcnt','s_add_u32 m0',f's_add_u32 {s(sZ)}',f's_add_u32 {s(sKV)}','s_xor_b32')): continue
            if x=='s_barrier':
                if not par:
                    m.l+=['s_waitcnt vmcnt(0) lgkmcnt(0)',x]
                    for h in (1,0): m.l+=[f's_add_u32 m0, {s(sMk)}, {32768*h}',f's_add_u32 {s(sKV)}, {s(sKV)}, {SS}',dma(3,0)[2]]+[f's_xor_b32 {s(r)}, {s(r)}, 0x10000' for r in (sMk,sMz,sMw)][:3*h]
                continue
            m.l.append(x)
    T,T8,WD=[int(c) for c in (PT[3:] if nog else PT[:3])]; gap=None
    for x in sum([y.split('\n') for y in m.l],[]):
        if 'mfma' in x:
            if gap is not None and gap>0: e(f's_nop {gap-1}')
            gap=T8 if 'x8_' in x else T
        elif x.startswith('v_exp'): gap=None
        elif gap is not None and not x.endswith(':'): gap-=int(x.split()[1])+1 if x.startswith('s_nop') else WD if x.startswith(('ds_','buffer_')) else 1
        e(x)
def misc(grp):
    f=[f'''s_lshl_b32 {s(sT0)}, {s(sW)}, 13
    v_add_u32 v12, {s(sT0)}, {v(vL16)}
    v_xor_b32 v13, 0x8000, v12
    v_add_u32 {v(vL4)}, 4096, {v(vL16)}''']
    if not grp:
        return f+[f'''s_mov_b32 s50, {fl(2.0**-64)}
        s_mov_b32 s51, {fl(2.0**64)}
        s_lshl_b32 {s(sFl)}, {s(sQB)}, 6
        s_add_u32 {s(sFl)}, {s(sFl)}, {s(sH)}
        s_lshl_b32 {s(sFl)}, {s(sFl)}, {FS}
        s_add_u32 {s(sFl)}, {s(sFl)}, {FL}''']
    f+=[f'''s_lshl_b32 {s(sTB)}, {s(sTB)}, 2
    s_add_u32 {s(sTB)}, {s(sTB)}, {s(sWq)}
    s_lshr_b32 {s(sFl)}, {s(sTB)}, 1
    s_lshl_b32 {s(sFl)}, {s(sFl)}, 5
    s_add_u32 {s(sFl)}, {s(sFl)}, {s(sFB)}
    s_lshl_b32 {s(sFl)}, {s(sFl)}, 1
    s_and_b32 {s(sT0)}, {s(sTB)}, 1
    s_add_u32 {s(sFl)}, {s(sFl)}, {s(sT0)}
    s_lshl_b32 {s(sFl)}, {s(sFl)}, {FS}
    s_add_u32 {s(sFl)}, {s(sFl)}, {FL+(32<<FS)}''',f'''s_mul_i32 {s(sU0)}, {s(sTB)}, {2*TL}
    s_lshl_b32 {s(sT0)}, {s(sFB)}, 11
    s_add_u32 {s(sU0)}, {s(sU0)}, {s(sT0)}
    s_add_u32 {s(sU0)}, {s(sU0)}, {ACT+20480}
    s_cmp_eq_u32 {s(sSl)}, 7
    s_cselect_b32 {s(sU0)}, {OOR}, {s(sU0)}
    s_cselect_b32 {s(sFl)}, {OOR}, {s(sFl)}
    s_cmp_eq_u32 {s(sFB)}, 13
    s_cselect_b32 {s(sU1)}, {OOR}, {s(sU0)}
    s_lshl_b32 {s(sT1)}, {s(sTB)}, 6
    v_and_b32 v14, 31, v0
    v_lshlrev_b32 v14, 1, v14
    buffer_load_ushort {v(vBs)}, v14, {s(sBS,4)}, {s(sT1)} offen''']
    return f+[f'buffer_load_dwordx4 {v(Z+4*j,4)}, {v(vSt)}, {s(sWS,4)}, {s(sU0+(j>>1))} offen offset:{512*j}' for j in range(4)]
LP=int(os.environ.get('LP','1')); sLp,sLs=64,98
def lpb(d): return f's_mul_i32 {s(d)}, {s(sW)}, 5120\ns_lshl_b32 {s(sT0)}, {s(sW)}, 12\ns_sub_u32 {s(sT0)}, {s(sT0)}, 1024\ns_cmp_lt_u32 {s(sW)}, 4\ns_cselect_b32 {s(d)}, {s(d)}, {s(sT0)}\ns_add_u32 {s(d)}, {s(d)}, 131072'
def wdma(grp,n):
    if grp and n==4: return wld(4,4)
    return ([lpb(sLp),f's_add_u32 {s(sWf)}, {s(sWf)}, 40960\ns_cmp_eq_u32 {s(sW)}, 3\ns_cselect_b32 {s(sLp)}, {163840-1024}, {s(sLp)}\ns_cselect_b32 {s(sLs)}, -1024, 0\ns_cselect_b32 {s(sWf)}, {OOR}, {s(sWf)}'] if n==0 else [])+[
      f's_mov_b32 m0, {s(sLp)}' if n<4 else f's_add_u32 m0, {s(sLp)}, 4096',f's_add_u32 {s(sLp)}, {s(sLp)}, {s(sLs)}',f'buffer_load_dwordx4 {v(vL16 if n<4 else vL4)}, {s(sWS,4)}, {s(sWf)} offen offset:{(n&3)*1024} lds']
def peel(e,grp,stamp):
    stamp(5)
    f=misc(grp); f=f[:1]+[wld(j,n) for j in range(5-grp) for n in range(5)]+f[1:]
    if grp: f=f[:9]+f[21:]+f[9:21]
    if LP: f+=[wdma(grp,n) for n in range(5)]
    ends=[0,5 if WT else 4]
    for k,nx in enumerate(NX):
        n0=len(e.l); pe=32-len(NX)+k
        pp(e,k&1,grp,pe,f,ends[-2]+ends[-1] if k==0 else tot-mark[-2],nx)
        if k==0: tot=0; mark=[0]
        ops=[x for x in e.l[n0:] if x.startswith('buffer_')]
        mark.append(tot+max([i+1 for i,x in enumerate(ops) if x.endswith(' lds') and s(sWf)+' ' not in x]+[0])); tot+=len(ops)
        if pe==29: stamp(6)
    assert not f,len(f)
LB=(65536,0); RS=336; ASC=os.environ.get('ASC',' sc1'); ROT=int(os.environ.get('ROT','1')); BJ=int(os.environ.get('BJ','1')); TPR=int(os.environ.get('TPR','0')); W1,WS2,WST,BK=[int(c) for c in os.environ.get('WP','2030')]; PUT=int(os.environ.get('PUT','3')); FJ=int(os.environ.get('FJ','4'))
def tail(e,nk,own,stamp):
    for j in range(5,nk):
        for n in range(5): e(wld(j,n) if own or j>5 or not LP else rd(WS_[5]+4*n,12,1024*n))
    if own:
        for i in range(4): e(f'buffer_load_dwordx2 {v(XR+2*i,2)}, v3, {s(sX,4)}, {s(sOo+i)} offen')
    L=f'k2_p{nk}{own}'
    e(f'''s_mov_b64 exec, s[52:53]
    {L}:
    buffer_load_dword v14, v13, {s(sWS,4)}, {s(sT1)} offen{SC}
    s_sub_u32 {s(sSt)}, {s(sSt)}, 1
    s_cbranch_scc1 {L}x
    s_waitcnt vmcnt(0)
    v_cmp_eq_u32 vcc, 0, v14
    {'s_and_b64 exec, exec, vcc' if NAR else ''}
    s_cbranch_vccnz {L}
    {L}x:
    s_mov_b64 exec, -1
    s_waitcnt lgkmcnt(0)'''); stamp(10)
    q=[]
    def ald(i,j): q.append((i,j)); e(f'buffer_load_dwordx4 {v(AR+28*(i&1)+4*j,4)}, {v(vL16 if j<4 else vL4)}, {s(sWS,4)}, {s(sAo+i)} offen offset:{(j&3)*1024}{ASC}')
    for i in (0,1):
        for j in range(nk): ald(i,j)
    Y=132; S=(40,68,12)
    if own and TPR: e(f's_setprio {1+(TPR==2 and nk==6)}')
    def rds(): e([f'ds_read_b128 {v(Y+4*k if k<5 else S[k-5],4)}, v2 offset:{(k+3)%8*16*RS}' for k in range(8)]+['v_xor_b32 v2, 0x10000, v2'])
    def fin(i):
        E=Y+4; w=lambda k:[f's_waitcnt lgkmcnt({k})'] if i==3 else []
        p2=lambda op,d,x,y,z=None: [f'v_pk_{op}_f32 {v(d+2*h,2)}, {v(x+2*h,2)}, '+(y if isinstance(y,str) else v(y+2*h,2))+(f', {v(z+2*h,2)}' if z else '') for h in (0,1)]
        if i<3: p2=lambda op,d,x,y,z=None: [f'v_{op}_f32 {v(d+h)}, '+(y[:4].replace('[','') if isinstance(y,str) else v(y+h))+f', {v(x+h)}'+(f', {v(z+h)}' if z else '') for h in range(4)]
        pk=lambda d,x: p2('add',d,d,x)
        f=(w(6) or ['s_waitcnt lgkmcnt(0)'])+pk(Y,Y+4)+w(4)+pk(Y+8,Y+12)+w(3)+pk(Y,Y+16)+pk(Y,Y+8)+p2('mul',E,Y,'s[54:55]')+[f'v_exp_f32 {v(E+r)}, {v(E+r)}' for r in range(4)]
        f+=[f'v_lshlrev_b32 {v(Y+16+2*r)}, 16, {v(XR+2*i+r)}' for r in (0,1)]+p2('add',E,E,'s[56:57]')+[f'v_rcp_f32 {v(E+r)}, {v(E+r)}' for r in range(4)]
        f+=[f'v_and_b32 {v(Y+17+2*r)}, 0xffff0000, {v(XR+2*i+r)}' for r in (0,1)]+w(0)+pk(S[0],S[1])+p2('mul',Y,Y,E)+pk(S[0],S[2])+p2('fma',Y,Y,S[0],Y+16)
        f+=[f'v_cvt_pk_bf16_f32 {v(Y+r)}, {v(Y+2*r)}, {v(Y+2*r+1)}' for r in (0,1)]+[f'buffer_store_dwordx2 {v(Y,2)}, v3, {s(sO,4)}, {s(sOo+i)} offen']
        return f
    f=[]
    def put(k):
        for _ in range(k):
            if f: x=f.pop(0); e(x); x.startswith('buffer') and q.append('st')
    def sync(i):
        put(99); e('s_waitcnt lgkmcnt(0)\ns_barrier'); own and rds()
        if i in (0,3): stamp(11+i//3)
    for i in range(4):
        C=AC+20*(i&1)
        for j in range(nk):
            e(f's_waitcnt vmcnt({len(q)-1-q.index((i,j))})')
            if own and i and j==FJ: f=fin(i-1)
            for n in range(5):
                e(f'v_mfma_f32_16x16x32_bf16 {v(C+4*n,4)}, {v(WS_[j]+4*n,4)}, {v(AR+28*(i&1)+4*j,4)}, '+(v(C+4*n,4) if j else '0')); put(PUT+(nk==5))
            if i<2: ald(i+2,j)
            if i and j==BJ: sync(i-1)
        if len(f)>=4: put(4)
        else: e('s_nop 3')
        for n in range(5): e(f'ds_write_b128 v0, {v(C+4*n,4)} offset:{64*n}')
        e('v_xor_b32 v0, 0x10000, v0')
    sync(3)
    if own: f=fin(3); put(99)
def build(stamp_f):
    e=A(); stamp=lambda i: stamp_f(e,i)
    e(f'''k2_top:
    s_cmp_ge_u32 s2, 256
    s_cbranch_scc1 k2_end
    s_load_dwordx2 {s(sWS,2)}, s[0:1], 80
    s_load_dwordx2 {s(sDM,2)}, s[0:1], 80
    s_load_dwordx2 {s(sSP,2)}, s[0:1], 40
    s_load_dwordx2 {s(sBS,2)}, s[0:1], 48
    s_load_dwordx2 {s(sX,2)}, s[0:1], 0
    s_load_dwordx2 {s(sO,2)}, s[0:1], 64''')
    if int(os.environ.get('CP2','1')): codepf(e,'k2_top',5,15)
    e(f'''v_lshrrev_b32 v1, 6, v0
    v_and_b32 v0, 63, v0
    v_readfirstlane_b32 {s(sW)}, v1''')
    stamp(0)
    srd(e,sWS,WSZ); srd(e,sDM,WSZ); srd(e,sSP,2048*4096); srd(e,sBS,4096); srd(e,sX,2048*1280); srd(e,sO,2048*1280)
    e(f'''s_and_b32 {s(sWq)}, {s(sW)}, 3
    s_lshr_b32 {s(sKh)}, {s(sW)}, 2
    s_and_b32 {s(sH)}, s2, 7
    s_lshl_b32 {s(sH)}, {s(sH)}, 2
    s_lshr_b32 {s(sT0)}, s2, 6
    s_add_u32 {s(sH)}, {s(sH)}, {s(sT0)}
    s_bfe_u32 {s(sQB)}, s2, 0x30003
    s_lshl_b32 {s(sQB)}, {s(sQB)}, 2
    s_add_u32 {s(sQB)}, {s(sQB)}, {s(sWq)}
    s_bfe_u32 {s(sTB)}, s2, 0x20001
    s_lshl_b32 {s(sTB)}, {s(sTB)}, 2
    s_bfe_u32 {s(sT0)}, s2, 0x20003
    s_add_u32 {s(sTB)}, {s(sTB)}, {s(sT0)}
    s_lshr_b32 {s(sSl)}, s2, 5
    s_min_u32 {s(sFB)}, {s(sSl)}, 6
    s_and_b32 {s(sT0)}, s2, 1
    s_mul_i32 {s(sT0)}, {s(sT0)}, 7
    s_add_u32 {s(sFB)}, {s(sFB)}, {s(sT0)}
    s_mul_i32 {s(sT2)}, {s(sH)}, {HS}
    s_min_u32 {s(sMk)}, {s(sW)}, 6
    s_lshl_b32 {s(sMk)}, {s(sMk)}, 10
    s_add_u32 {s(sKV)}, {s(sT2)}, {s(sMk)}
    s_lshl_b32 {s(sZ)}, {s(sFB)}, 1
    s_add_u32 {s(sZ)}, {s(sZ)}, {s(sKh)}
    s_min_u32 {s(sZ)}, {s(sZ)}, 26
    s_lshl_b32 {s(sZ)}, {s(sZ)}, 7
    s_add_u32 {s(sZ)}, {s(sZ)}, {s(sWq)}
    s_lshl_b32 {s(sZ)}, {s(sZ)}, 10
    s_add_u32 {s(sZ)}, {s(sZ)}, {Z2T}
    s_lshl_b32 {s(sMz)}, {s(sW)}, 10
    s_lshl_b32 {s(sMw)}, {s(sMz)}, 1
    s_add_u32 {s(sMz)}, {s(sMz)}, {LZ}
    s_add_u32 {s(sMw)}, {s(sMw)}, {LW}
    s_lshl_b32 {s(sSo)}, {s(sTB)}, 3
    s_add_u32 {s(sSo)}, {s(sSo)}, {s(sW)}
    s_lshl_b32 {s(sSo)}, {s(sSo)}, 16
    s_mul_i32 {s(sT0)}, {s(sQB)}, {4*TL}
    s_add_u32 {s(sT0)}, {s(sT0)}, {ACT}
    s_lshl_b32 {s(sU0)}, {s(sH)}, 9
    s_add_u32 {s(sU0)}, {s(sU0)}, {s(sT0)}
    s_lshr_b32 {s(sT1)}, {s(sH)}, 1
    s_lshl_b32 {s(sT1)}, {s(sT1)}, 8
    s_add_u32 {s(sT0)}, {s(sT0)}, {s(sT1)}
    s_and_b32 {s(sT1)}, {s(sH)}, 1
    s_lshl_b32 {s(sT1)}, {s(sT1)}, 3
    s_add_u32 {s(sT0)}, {s(sT0)}, {s(sT1)}
    s_add_u32 {s(sU1)}, {s(sT0)}, 16384
    s_add_u32 {s(sT0)}, {s(sU0)}, {2*TL}
    s_add_u32 {s(sT1)}, {s(sU1)}, {2*TL}
    v_lshlrev_b32 {v(vL16)}, 4, v0
    v_lshrrev_b32 v12, 3, v0
    v_lshrrev_b32 v13, 4, v0
    v_and_b32 v14, 7, v0
    v_xor_b32 v13, v13, v14
    v_lshlrev_b32 v13, 4, v13
    v_lshl_add_u32 {v(vDW0)}, v12, 12, v13
    v_xor_b32 {v(vDW1)}, 0x8040, {v(vDW0)}
    s_mov_b32 {s(sSt)}, 128
    s_mov_b32 {s(sUn)}, 33
    s_mov_b32 {s(sLim)}, {17-LEAD}
    s_cmp_lt_u32 s2, {224 if NPF else 999}
    s_cbranch_scc1 k2_np
    s_sub_u32 {s(sSo)}, s2, 224
    s_lshl_b32 {s(sSo)}, {s(sSo)}, 3
    s_add_u32 {s(sSo)}, {s(sSo)}, {s(sW)}
    s_lshl_b32 {s(sSo)}, {s(sSo)}, 15
    s_add_u32 {s(sSo)}, {s(sSo)}, 512
    {f's_mov_b32 {s(sSP+2)}, 0' if NP2 else ''}
    s_mov_b32 {s(sSt)}, 256
    s_mov_b32 {s(sUn)}, 6
    s_mov_b32 {s(sLim)}, {5 if LEAD==3 else 4}
    s_mov_b32 {s(sZ)}, 0xf0000000
    v_add_u32 {v(vDW1)}, 128, {v(vDW0)}
    k2_np:
    v_and_b32 v12, 31, v0
    v_lshrrev_b32 v13, 5, v0
    v_lshlrev_b32 {v(vR)}, 3, v12
    v_bfe_u32 v14, v0, 4, 1
    v_mul_u32_u24 v14, {TL-256}, v14
    v_lshl_add_u32 v14, v12, 4, v14
    v_lshl_add_u32 {v(vSt)}, v13, 8, v14
    v_lshl_add_u32 {v(vT)}, v13, 30, v14
    s_waitcnt lgkmcnt(0)''')
    stamp(4)
    for j in range(4): em(e,dma(j,0))
    for i in (0,1):
        e(f'buffer_load_dwordx4 {v(QM+4*i,4)}, {v(vSt)}, {s(sWS,4)}, {s((sU0,sT0)[i])} offen')
        e(f'buffer_load_dwordx2 {v(QR+2*i,2)}, {v(vT)}, {s(sWS,4)}, {s((sU1,sT1)[i])} offen')
    def pst(st):
        for j in range(4): em(e,dma(j,st),f's_add_u32 {s(sKV)}, {s(sKV)}, {SS}' if j==1 else 's_nop 0')
    pst(1)
    e(f'''s_lshl_b32 {s(sT0)}, {s(sKh)}, 10
    v_add_u32 {v(vK)}, {s(sT0)}, {v(vL16)}
    v_add_u32 {v(vA)}, {s(sT0)}, {v(vK)}
    s_lshl_b32 {s(sT0)}, {s(sKh)}, 8
    s_add_u32 {s(sT0)}, {s(sT0)}, 6144
    v_add_u32 {v(vR)}, {s(sT0)}, {v(vR)}
    s_lshl_b32 {s(sT0)}, {s(sKh)}, 2
    v_add_u32 v13, {s(sT0)}, v13
    v_bfe_u32 v14, v0, 1, 3
    v_xor_b32 v13, v13, v14
    v_lshlrev_b32 v13, 4, v13
    v_lshl_add_u32 v13, v12, 7, v13
    s_lshl_b32 {s(sT0)}, {s(sWq)}, 12
    s_add_u32 {s(sT0)}, {s(sT0)}, {LW}
    v_add_u32 {v(vB0)}, {s(sT0)}, v13
    v_xor_b32 {v(vB1)}, 32, {v(vB0)}
    v_mov_b32 {v(vIdx)}, 0xdddddddd
    s_lshl_b32 {s(sT0)}, {s(sW)}, 3
    s_mov_b32 s54, 0x140e0700
    s_mov_b32 s55, 0x29231e19
    s_lshr_b64 s[54:55], s[54:55], {s(sT0)}
    s_and_b32 {s(sNk)}, s54, 0xff
    s_mul_i32 {s(sWf)}, {s(sNk)}, 40960
    s_mul_i32 {s(sT0)}, {s(sSl)}, 5120
    s_add_u32 {s(sWf)}, {s(sWf)}, {s(sT0)}
    s_add_u32 {s(sWf)}, {s(sWf)}, {WF-40960}
    s_bfe_u32 {s(sT0)}, s2, 0x20003
    s_mul_i32 {s(sT0)}, {s(sT0)}, 1280
    s_add_u32 {s(sPfW)}, {s(sWf)}, {s(sT0)}
    s_sub_u32 {s(sPfW)}, {s(sPfW)}, {(NIT-1-WT)*40960}
    v_add_u32 v14, 54, v0
    v_lshrrev_b32 v14, 6, v14
    v_lshlrev_b32 v14, 30, v14
    v_lshl_add_u32 v14, v0, 7, v14
    s_mov_b32 {s(sIt)}, 0''')
    for r in range(O0,G1+16): e(f'v_mov_b32 {v(r)}, 0')
    e('s_waitcnt vmcnt(4)'); e('s_barrier'); stamp(1)
    e([rd(KM,vK,0),f'ds_read_b64 {v(KR,2)}, {v(vR)}',rd(GBa,vB0,0),rd(GA1,vA,LZ+4096),rd(GA0,vA,LZ),rd(V0,vA,2048),rd(V1,vA,3072)])
    e('s_waitcnt lgkmcnt(2)'); e(mf(SA,KM,QM,'0')); e(mf8(SA,KR,QR))
    TP=int(os.environ.get('TP','0'))
    if TP: e(f's_lshl_b32 {s(sT0)}, {s(sW)}, 7\ns_add_u32 {s(sT0)}, {s(sT0)}, {ACT+47*1024}\nv_mul_u32_u24 v13, {TL*128//TP}, v0\ns_bfm_b64 exec, {TP}, 0\nbuffer_load_dword v15, v13, {s(sWS,4)}, {s(sT0)} offen\ns_mov_b64 exec, -1')
    elif WT: e(f's_mov_b32 {s(sT0)}, {OOR}\nbuffer_load_dword v15, v14, {s(sWS,4)}, {s(sT0)} offen')
    if NP2: e(f's_mov_b32 {s(sSP+2)}, {2048*4096}')
    for st in range(2,LEAD): pst(st)
    if LEAD==3:
        for r in (sMk,sMz,sMw): e(f's_xor_b32 {s(r)}, {s(r)}, 0x10000')
    stamp(7)
    e(f's_cmp_eq_u32 {s(sKh)}, 0\ns_cbranch_scc0 k2b_loop\n.p2align '+os.environ.get('AL','6')); e(['s_nop 0']*PA0); e('k2a_loop:')
    pp(e,0,0); pp(e,1,0); e('s_cbranch_scc1 k2a_loop\ns_branch k2a_peel\n.p2align 6'); e(['s_nop 0']*PAD); e('k2b_loop:'); pp(e,0,1); pp(e,1,1); e('s_cbranch_scc1 k2b_loop\ns_branch k2b_peel')
    for g in (0,1)[:2*(NOG>0)]: e(f'.p2align 6\nk2{"cd"[g]}_loop:'); pp(e,0,g,nog=1); pp(e,1,g,nog=1); e(f's_cbranch_scc1 k2{"cd"[g]}_loop\ns_waitcnt vmcnt(1)\ns_branch k2{"ab"[g]}_peel')
    e('.p2align 6\nk2a_peel:'); peel(e,0,stamp); stamp(2)
    e('s_waitcnt lgkmcnt(0)\ns_barrier')
    for j in range(8): e(rd(G0+4*j,13,1024*j))
    for i in (0,1):
        e(f's_waitcnt lgkmcnt({4-4*i})')
        for r in range(0,14,2): e(f'v_pk_add_f32 {v(O0+16*i+r,2)}, {v(O0+16*i+r,2)}, {v(G0+16*i+r,2)}')
    e(f'''v_cmp_le_f32 s[52:53], s50, {v(O0+12)}
    v_cmp_ge_f32 s[54:55], s51, {v(O0+12)}
    v_cmp_le_f32 s[56:57], s50, {v(O1+12)}
    v_cmp_ge_f32 s[58:59], s51, {v(O1+12)}
    s_and_b64 s[52:53], s[52:53], s[54:55]
    s_and_b64 s[56:57], s[56:57], s[58:59]
    s_and_b64 s[52:53], s[52:53], s[56:57]
    s_andn2_b64 s[52:53], exec, s[52:53]
    s_cbranch_scc1 k2_slow
    k2_ofin:
    v_rcp_f32 v14, {v(O0+12)}
    v_rcp_f32 v15, {v(O1+12)}
    s_add_u32 {s(sT0)}, {s(sU0)}, {2*TL}
    s_add_u32 {s(sT1)}, {s(sU1)}, {2*TL}''')
    for i in (0,1):
        O=O0+16*i
        for r in range(12): e(f'v_mul_f32 {v(O+r)}, {v(O+r)}, {v(14+i)}')
        for r in range(6): e(f'v_cvt_pk_bf16_f32 {v(O+r)}, {v(O+2*r)}, {v(O+2*r+1)}')
        e(f'buffer_store_dwordx4 {v(O,4)}, {v(vSt)}, {s(sWS,4)}, {s((sU0,sT0)[i])} offen{SC}')
        e(f'buffer_store_dwordx2 {v(O+4,2)}, {v(vT)}, {s(sWS,4)}, {s((sU1,sT1)[i])} offen{SC}')
    e('s_branch k2_p3\n.p2align 6\nk2b_peel:'); peel(e,1,stamp); stamp(2)
    e(f's_waitcnt vmcnt({12+5*LP}) lgkmcnt(0)\ns_barrier')
    for j in range(8): e(rd(O0+4*j,13,1024*j))
    if not EX: e(f'v_lshlrev_b32 v14, 16, {v(vBs)}\nv_lshlrev_b32 v15, 16, {v(vBs)}')
    for r in range(16*(not EX)): e(f'v_lshlrev_b32 {v(SA+2*r)}, 16, {v(Z+r)}\nv_and_b32 {v(SA+2*r+1)}, 0xffff0000, {v(Z+r)}\nv_pk_add_f32 {v(G0+2*r,2)}, {v(G0+2*r,2)}, v[14:15]')
    for j in range(4):
        e(f's_waitcnt lgkmcnt({6-2*j})')
        for r in range(8*j,8*j+8,2): e(f'v_pk_add_f32 {v(G0+r,2)}, {v(G0+r,2)}, {v(O0+r,2)}')
        for r in range(8*j,8*j+8,2): e(f'v_pk_mul_f32 {v(G0+r,2)}, {v(G0+r,2)}, {v(SA+r,2)}')
        for r in range(4): e(f'v_cvt_pk_bf16_f32 {v(G0+8*j+r)}, {v(G0+8*j+2*r)}, {v(G0+8*j+2*r+1)}')
        e(f'buffer_store_dwordx4 {v(G0+8*j,4)}, {v(vSt)}, {s(sWS,4)}, {s(sU0+(j>>1))} offen offset:{512*j}{SC}')
    e('k2_p3:'); stamp(8)
    e(f'''s_and_b32 {s(sT1)}, s2, 7
    s_lshl_b32 {s(sT1)}, {s(sT1)}, 2
    s_bfe_u32 {s(sT0)}, s2, 0x20003
    s_add_u32 {s(sT1)}, {s(sT1)}, {s(sT0)}
    s_mul_i32 s54, {s(sT1)}, {4*48}
    s_add_u32 s54, s54, {s(sNk)}
    s_lshl_b32 s54, s54, 10
    s_add_u32 s54, s54, {ACT}
    s_mul_i32 s55, {s(sT1)}, {64*1280}
    s_mul_i32 {s(sT0)}, {s(sSl)}, 160
    s_add_u32 s55, s55, {s(sT0)}
    s_lshl_b32 {s(sT0)}, {s(sW)}, 6
    s_sub_u32 {s(sT0)}, {s(sT0)}, 192
    v_add_u32 v9, {s(sT0)}, v0
    v_mul_u32_u24 v8, 3277, v9
    v_lshrrev_b32 v8, 16, v8
    v_mul_u32_u24 v3, {1280-160}, v8
    v_lshl_add_u32 v3, v9, 3, v3
    v_add_u32 v8, v8, v9
    v_lshlrev_b32 v8, 4, v8
    v_add_u32 v2, {LB[0]}, v8
    v_lshlrev_b32 v13, {FS}, v0
    v_mov_b32 v15, 1
    {lpb(sLp)}
    v_add_u32 v12, {s(sLp)}, {v(vL16)}
    s_mul_i32 {s(sT0)}, {s(sW)}, {16*RS}
    s_add_u32 {s(sT0)}, {s(sT0)}, {LB[0]}
    v_and_b32 v4, 15, v0
    v_mul_u32_u24 v4, {RS}, v4
    v_and_b32 v0, 0x30, v0
    v_add3_u32 v0, {s(sT0)}, v4, v0''')
    for i in range(4):
        e(f'''s_add_u32 {s(sT0)}, {s(sSl) if ROT else 0}, {i}
        s_and_b32 {s(sT0)}, {s(sT0)}, 3
        s_mul_i32 {s(sOo+i)}, {s(sT0)}, {16*1280}
        s_add_u32 {s(sOo+i)}, {s(sOo+i)}, s55
        s_mul_i32 {s(sT0)}, {s(sT0)}, {TL}
        s_add_u32 {s(sAo+i)}, {s(sT0)}, s54''')
    e(f'''s_lshl_b32 {s(sT1)}, {s(sT1)}, {6+FS}
    s_add_u32 {s(sT1)}, {s(sT1)}, {FL}
    s_lshl_b32 {s(sT0)}, {s(sW)}, 3
    s_mov_b32 s54, 0x20000e00
    s_mov_b32 s55, 0x342e2a24
    s_mov_b32 s56, 0x06200e0e
    s_mov_b32 s57, 0x08080606
    s_lshr_b64 s[54:55], s[54:55], {s(sT0)}
    s_lshr_b64 s[56:57], s[56:57], {s(sT0)}
    s_bfm_b64 s[52:53], s56, s54
    s_mov_b32 {s(sSt)}, 0x100000
    s_mov_b32 s54, {fl(-1.4426950408889634)}
    s_mov_b32 s55, s54
    s_mov_b32 s56, 1.0
    s_mov_b32 s57, 1.0
    s_mov_b64 exec, 1
    s_waitcnt vmcnt(0)
    buffer_store_dword v15, off, {s(sWS,4)}, {s(sFl)}{SC}
    s_mov_b64 exec, -1'''); stamp(9)
    e(f'''s_cmp_lt_u32 {s(sW)}, 2
    s_cbranch_scc1 k2_t70
    s_cmp_lt_u32 {s(sW)}, 3
    s_cbranch_scc1 k2_t60
    s_cmp_lt_u32 {s(sW)}, 4
    s_cbranch_scc1 k2_t51''')
    for n in range(5-LP): e(rd(WS_[4]+4*n,12,1024*n) if LP else wld(4,n))
    e(f's_cmp_lt_u32 {s(sW)}, 6\ns_cbranch_scc1 k2_t51')
    for nk,own in ((6,1),(5,1),(6,0),(7,0)):
        e(f'k2_t{nk}{own}:'); n0=len(e.l); tail(e,nk,own,stamp)
        import re
        e.l[n0:]=[x for x in e.l[n0:] if not(('f' in ABL and re.match('v_(add|mul|fma|exp|rcp|cvt|pk|lshl|and)',x)) or ('W' in ABL and 'ds_write' in x) or ('R' in ABL and 'ds_read' in x) or ('m' in ABL and 'mfma' in x) or ('s' in ABL and 'store_dwordx2' in x))]
        if nk!=7: e('s_branch k2_fin')
    e('k2_fin:'); stamp(3); stamp(-1)
    e('k2_end:\ns_endpgm')
    e(f'''k2_slow:
    v_and_b32 v12, 31, v0
    v_lshlrev_b32 v12, 3, v12
    v_mov_b32 v14, 0xff800000
    v_mov_b32 v15, 0xff800000''')
    for ps in (0,1):
        e(f'''s_mov_b32 {s(sIt)}, 0
        k2_sl{ps}:
        s_lshr_b32 {s(sT0)}, {s(sIt)}, 1
        s_mul_i32 {s(sT0)}, {s(sT0)}, {SS}
        s_add_u32 {s(sT0)}, {s(sT0)}, {s(sT2)}
        s_and_b32 {s(sT1)}, {s(sIt)}, 1
        s_lshl_b32 s50, {s(sT1)}, 8
        s_add_u32 s50, s50, {s(sT0)}
        s_add_u32 s50, s50, 6144
        s_lshl_b32 {s(sT1)}, {s(sT1)}, 10
        s_add_u32 {s(sT0)}, {s(sT0)}, {s(sT1)}
        s_add_u32 {s(sT1)}, {s(sT0)}, {s(sT1)}
        buffer_load_dwordx4 {v(KM,4)}, {v(vL16)}, {s(sWS,4)}, {s(sT0)} offen
        buffer_load_dwordx2 {v(KR,2)}, v12, {s(sWS,4)}, s50 offen
        buffer_load_dwordx4 {v(V0,4)}, {v(vL16)}, {s(sWS,4)}, {s(sT1)} offen offset:2048
        buffer_load_dwordx4 {v(V1,4)}, {v(vL16)}, {s(sWS,4)}, {s(sT1)} offen offset:3072
        s_waitcnt vmcnt(0)''')
        for i in (0,1): e(mf(SA+16*i,KM,QM+4*i,v(G0+16*i,16) if ps else '0')); e(mf8(SA+16*i,KR,QR+2*i))
        e('s_nop 11')
        for r in range(32): e(f'v_exp_f32 {v(SA+r)}, {v(SA+r)}' if ps else f'v_max_f32 {v(14+r//16)}, {v(14+r//16)}, {v(SA+r)}')
        if ps:
            e('s_nop 1')
            for i in (0,1): e(pv(O0+16*i,V0,SA+16*i)); e(pv(O0+16*i,V1,SA+16*i+8))
        e(f's_add_u32 {s(sIt)}, {s(sIt)}, 1\ns_cmp_lt_u32 {s(sIt)}, 64\ns_cbranch_scc1 k2_sl{ps}')
        if ps==0:
            for i in (0,1): e(f'v_mov_b32 v13, {v(14+i)}\ns_nop 1\nv_permlane32_swap_b32 v13, {v(14+i)}\ns_nop 0\nv_max_f32 {v(14+i)}, v13, {v(14+i)}')
            for r in range(32): e(f'v_sub_f32 {v(G0+r)}, 0, {v(14+r//16)}\nv_mov_b32 {v(O0+r)}, 0')
    e('code_end:\ns_nop 11\ns_branch k2_ofin')
    return e
```

```python
from lib import *
import os
LEAD=int(os.environ.get('LEAD','3')); NPF=int(os.environ.get('NPF','1'))
sWS,sDM,sSP,sX,sBS,sO=4,8,12,16,20,60
FL=0x1E80000; SC=' sc1'; OOR='0xf0000000'
sW,sH,sQB,sTB,sFB,sT0,sT1,sT2,sKV,sZ,sSo,sMk,sMz,sMw,sIt,sU0,sU1,sUn,sWq,sKh,sSl,sSt,sLim=range(24,47)
vL16,vA,vK,vR,vB0,vB1,vDW0,vDW1,vIdx,vBs,vT=1,2,3,4,5,6,7,8,9,10,11
SA,SB,O0,O1,G0,G1=16,32,48,64,80,96
QM,QR,KM,KR,V0,V1,GA0,GA1,GBa,Z=112,120,124,128,132,136,140,144,148,152
sWf,sFl,sAo,sOo,sNk=47,48,32,36,49
vL4=172; vSt=173; sUa,sPfW=64,65; WS_=[176,196,216,236,152,112,132]; AR,AC,XR=16,72,4
LK,LZ,LW=0,7168,15360
def dma(j,slot):
    o=slot*32768
    if j==0: return [f's_add_u32 m0, {s(sMw)}, {o}', None, f'buffer_load_dwordx4 {v(vDW0)}, {s(sSP,4)}, {s(sSo)} offen lds']
    if j==1: return [f's_add_u32 m0, {s(sMw)}, {o+1024}', None, f'buffer_load_dwordx4 {v(vDW1)}, {s(sSP,4)}, {s(sSo)} offen lds']
    if j==2: return [f's_add_u32 m0, {s(sMz)}, {o}', f's_add_u32 {s(sSo)}, {s(sSo)}, {s(sSt)}', f'buffer_load_dwordx4 {v(vL16)}, {s(sDM,4)}, {s(sZ)} offen lds']
    return [f's_add_u32 m0, {s(sMk)}, {o}', f's_add_u32 {s(sZ)}, {s(sZ)}, 4096', f'buffer_load_dwordx4 {v(vL16)}, {s(sDM,4)}, {s(sKV)} offen lds']
def em(e,d,alt='s_nop 0'): e([d[0],d[1] or alt,d[2]])
def mf(D,Aa,B,C=None): return f'v_mfma_f32_32x32x16_bf16 {v(D,16)}, {v(Aa,4)}, {v(B,4)}, '+(C or v(D,16))
def mf8(D,Aa,B): return f'v_mfma_f32_32x32x8_bf16 {v(D,16)}, {v(Aa,2)}, {v(B,2)}, {v(D,16)}'
def pv(D,Aa,P): return f'v_smfmac_f32_32x32x32_bf16 {v(D,16)}, {v(Aa,4)}, {v(P,8)}, {v(vIdx)}'
def rd(D,ad,off): return f'ds_read_b128 {v(D,4)}, {v(ad)} offset:{off}'
NAR=int(os.environ.get('NAR','1')); DP=int(os.environ.get('DP','0')); NP2=int(os.environ.get('NP2','0')); NOG=int(os.environ.get('NOG','0')); WT=int(os.environ.get('WT','7'))
NA,NB,BR,PAD,PA0,RO=[int(os.environ.get(x,'0')) for x in ('NA','NB','BR','PAD','PA0','RO')]
RO=RO or 2; NX=[int(c) for c in os.environ.get('NX','33344771')]; NIT=16-len(NX)//2
PRI=os.environ.get('PRI','0')
ABL=os.environ.get('ABL','')
def wld(j,n): return ['s_nop 0'] if 'w' in ABL else ([f's_add_u32 {s(sWf)}, {s(sWf)}, 40960'] if n==0 else [])+[f'buffer_load_dwordx4 {v(WS_[j]+4*n,4)}, {v(vL16 if n<4 else vL4)}, {s(sWS,4)}, {s(sWf)} offen offset:{(n&3)*1024}']
EX=int(os.environ.get('EX','1')); TW=int(os.environ.get('TW','0'))
def pp_(e,par,grp,pe=0,xl=None,vm=4,nx=0):
    c=par*32768; n=(1-par)*32768; dp=1-par; last=pe==31
    if WT and not par and not pe: vm=5
    mid,hi,lo='s_setprio 1','s_setprio 2','s_setprio 0'
    def ex(S):
        for r in range(16): e(f'v_exp_f32 {v(S+r)}, {v(S+r)}')
    order=[5,8,10,0,11,9,1,3] if pe<=28 else [2,4,0,5,6,7,8] if last else [2,6,4,7,10,5,8,0,11]
    def X(p):
        if xl and p in order[:nx]: e(xl.pop(0))
    def D(j,p,alt='s_nop 0'): em(e,dma(j,dp),alt) if pe<=28 else X(p)
    def N(x):
        if not last: e(x)
    wr=lambda b,j: f'ds_write_b128 v12, {v(b+4*j,4)} offset:{1024*j}'
    bar=f's_waitcnt vmcnt({vm})\ns_barrier' if not last else ''
    if grp: e(bar)
    ex(SA)
    if par:
        for r in (vK,vR,vB0): N(f'v_xor_b32 {v(r)}, 0x10000, {v(r)}')
    if not grp: e(bar)
    e(mid); e('s_waitcnt lgkmcnt(2)')
    e(mf(SB,KM,QM+4,'0')); e(hi); X(0)
    e(mf8(SB,KR,QR+2)); N(rd(KM,vK,n)); N(f'ds_read_b64 {v(KR,2)}, {v(vR)} offset:{n}'); X(1)
    if WT and par and not pe: e(f's_cmp_ge_u32 {s(sIt)}, {NIT-WT}\ns_cselect_b32 {s(sT0)}, {s(sPfW)}, {OOR}\ns_add_u32 {s(sPfW)}, {s(sPfW)}, 40960\nbuffer_load_dword v15, v14, {s(sWS,4)}, {s(sT0)} offen')
    e(mf(G0,GA0,GBa)); e(rd(GA0,vA,c+LZ+1024)); D(0,2)
    e(mf(G1,GA1,GBa)); e(f's_waitcnt lgkmcnt({1 if last else 3})'); e(rd(GA1,vA,c+LZ+4096+1024)); e(rd(GBa,vB1,c)); X(3)
    e(pv(O0,V0,SA)); D(1,4,f's_add_u32 {s(sKV)}, {s(sKV)}, {SS}')
    e(pv(O0,V1,SA+8)); X(5)
    if last and EX:
        assert nx<=4
        e('s_waitcnt lgkmcnt(0)'); e(mf(G0,GA0,GBa)); e(mf(G1,GA1,GBa)); e(lo)
        at={8:[0],10:[1],12:[2],14:[3]} if grp else {10:[0,1],11:[2,3],12:[4],13:[5],14:[6],15:[7]}
        for r in range(16):
            e(f'v_exp_f32 {v(SB+r)}, {v(SB+r)}')
            for j in at.get(r,[]): e(wr(O0 if grp else G0,j))
        e(mid); grp and e('s_nop 0'); e(pv(O1,V0,SB)); e(hi); e(pv(O1,V1,SB+8))
        if grp:
            up=lambda r: f'v_lshlrev_b32 {v(SA+2*r)}, 16, {v(Z+r)}\nv_and_b32 {v(SA+2*r+1)}, 0xffff0000, {v(Z+r)}'
            e(f's_waitcnt vmcnt({12+5*LP})'); e(f'v_lshlrev_b32 v14, 16, {v(vBs)}\nv_lshlrev_b32 v15, 16, {v(vBs)}')
            for r in range(5): e(up(r))
            e([wr(O0,j) for j in range(4,8)]); e(lo)
            for r in range(5,16): e(up(r))
            for r in range(16): e(f'v_pk_add_f32 {v(G0+2*r,2)}, {v(G0+2*r,2)}, v[14:15]')
        else: e(lo)
        return
    last and e('s_nop 1'); e(lo)
    ex(SB)
    if par:
        for r in (vA,vB1): N(f'v_xor_b32 {v(r)}, 0x10000, {v(r)}')
    e(mid); e('s_waitcnt lgkmcnt(0)')
    if last:
        if grp:
            e(pv(O1,V0,SB)); e(hi); e([wr(O0,0),wr(O0,1)]); X(6); e(pv(O1,V1,SB+8)); e([wr(O0,2),wr(O0,3)]); X(7)
            e(mf(G0,GA0,GBa)); X(8); e(mf(G1,GA1,GBa)); e('s_nop 7'); e([wr(O0,j) for j in range(4,8)])
        else:
            e(mf(G0,GA0,GBa)); e(hi); X(6); e(mf(G1,GA1,GBa)); X(7); e(pv(O1,V0,SB)); X(8); e('s_nop 8'); e([wr(G0,0),wr(G0,1)])
            e(pv(O1,V1,SB+8)); e([wr(G0,j) for j in range(2,8)])
        e(lo); return
    e(mf(SA,KM,QM,'0')); e(hi); D(2,6)
    e(mf8(SA,KR,QR)); D(3,7)
    e(mf(G0,GA0,GBa)); e(rd(GA0,vA,n+LZ))
    if dp and pe<28:
        for r in (sMk,sMz,sMw): e(f's_xor_b32 {s(r)}, {s(r)}, 0x10000')
    X(8)
    e(mf(G1,GA1,GBa)); e(rd(GA1,vA,n+LZ+4096)); e(rd(GBa,vB0,n))
    if dp and not pe: e(f's_cmp_lt_u32 {s(sIt)}, {s(sLim)}\ns_cselect_b32 {s(sSP+2)}, {s(sSP+2)}, 0')
    X(9)
    e(pv(O1,V0,SB)); e(rd(V0,vA,n+2048)); X(10)
    if par and not pe: e(f's_add_u32 {s(sIt)}, {s(sIt)}, 1\n'+(f's_cmp_eq_u32 {s(sIt)}, {s(sUn)}\ns_cbranch_scc1 k2_n{grp}\n' if NOG else f's_cmp_eq_u32 {s(sIt)}, 33\ns_cbranch_scc1 k2_end\n' if RO&(2<<grp) else '')+f's_cmp_lt_u32 {s(sIt)}, {NIT}')
    e(pv(O1,V1,SB+8)); e(rd(V1,vA,n+3072)); X(11); e(lo)
PT=os.environ.get('PT','001001')
def pp(e,par,grp,*a,nog=0):
    m=A(); pp_(m,par,grp,*a); k=0
    if DP and (not a or a[0]<=28):
        idx=[i for i,x in enumerate(m.l) if x.endswith(' lds')]; tr=[m.l[i-2:i+1] for i in idx]
        rest=[x for i,x in enumerate(m.l) if not any(j-2<=i<=j for j in idx)]
        key='v_exp' if grp and DP&1 else 'mfma'; pos=(1,5,9,13) if key=='v_exp' else (0,2,4,5) if DP&4 else (0,1,2,3)
        m.l=[]; c=0
        for x in rest:
            m.l.append(x)
            if key in x:
                if c in pos and tr: m.l+=tr.pop(0)
                c+=1
    if nog:
        dr=lambda x: any(v(r,4) in x for r in (GA0,GA1,GBa)) or (x.endswith(' lds') and s(sKV)+' ' not in x) or x=='s_nop 0' or x.startswith((f's_add_u32 m0, {s(sMw)}',f's_add_u32 m0, {s(sMz)}',f's_add_u32 {s(sSo)}','s_cmp_eq',f's_cselect_b32 {s(sSP+2)}',f's_cmp_lt_u32 {s(sIt)}, {s(sLim)}'))
        m.l=[x.replace('lgkmcnt(3)','lgkmcnt(2)').replace('vmcnt(4)','vmcnt(1)').replace(f's_cbranch_scc1 k2_n{grp}',f'k2_n{grp}:').replace('s_setprio 0',f's_setprio 0\ns_nop {NOG}') for x in m.l if not dr(x)]
    if nog:
        L=sum([y.split('\n') for y in m.l],[]); m.l=[]
        for x in L:
            if x.endswith(' lds') or x.startswith(('s_setprio','s_waitcnt vmcnt','s_add_u32 m0',f's_add_u32 {s(sZ)}',f's_add_u32 {s(sKV)}','s_xor_b32')): continue
            if x=='s_barrier':
                if not par:
                    m.l+=['s_waitcnt vmcnt(0) lgkmcnt(0)',x]
                    for h in (1,0): m.l+=[f's_add_u32 m0, {s(sMk)}, {32768*h}',f's_add_u32 {s(sKV)}, {s(sKV)}, {SS}',dma(3,0)[2]]+[f's_xor_b32 {s(r)}, {s(r)}, 0x10000' for r in (sMk,sMz,sMw)][:3*h]
                continue
            m.l.append(x)
    T,T8,WD=[int(c) for c in (PT[3:] if nog else PT[:3])]; gap=None
    for x in sum([y.split('\n') for y in m.l],[]):
        if 'mfma' in x:
            if gap is not None and gap>0: e(f's_nop {gap-1}')
            gap=T8 if 'x8_' in x else T
        elif x.startswith('v_exp'): gap=None
        elif gap is not None and not x.endswith(':'): gap-=int(x.split()[1])+1 if x.startswith('s_nop') else WD if x.startswith(('ds_','buffer_')) else 1
        e(x)
def misc(grp):
    f=[f'''s_lshl_b32 {s(sT0)}, {s(sW)}, 13
    v_add_u32 v12, {s(sT0)}, {v(vL16)}
    v_xor_b32 v13, 0x8000, v12
    v_add_u32 {v(vL4)}, 4096, {v(vL16)}''']
    if not grp:
        return f+[f'''s_mov_b32 s50, {fl(2.0**-64)}
        s_mov_b32 s51, {fl(2.0**64)}
        s_lshl_b32 {s(sFl)}, {s(sQB)}, 6
        s_add_u32 {s(sFl)}, {s(sFl)}, {s(sH)}
        s_lshl_b32 {s(sFl)}, {s(sFl)}, {FS}
        s_add_u32 {s(sFl)}, {s(sFl)}, {FL}''']
    f+=[f'''s_lshl_b32 {s(sTB)}, {s(sTB)}, 2
    s_add_u32 {s(sTB)}, {s(sTB)}, {s(sWq)}
    s_lshr_b32 {s(sFl)}, {s(sTB)}, 1
    s_lshl_b32 {s(sFl)}, {s(sFl)}, 5
    s_add_u32 {s(sFl)}, {s(sFl)}, {s(sFB)}
    s_lshl_b32 {s(sFl)}, {s(sFl)}, 1
    s_and_b32 {s(sT0)}, {s(sTB)}, 1
    s_add_u32 {s(sFl)}, {s(sFl)}, {s(sT0)}
    s_lshl_b32 {s(sFl)}, {s(sFl)}, {FS}
    s_add_u32 {s(sFl)}, {s(sFl)}, {FL+(32<<FS)}''',f'''s_mul_i32 {s(sU0)}, {s(sTB)}, {2*TL}
    s_lshl_b32 {s(sT0)}, {s(sFB)}, 11
    s_add_u32 {s(sU0)}, {s(sU0)}, {s(sT0)}
    s_add_u32 {s(sU0)}, {s(sU0)}, {ACT+20480}
    s_cmp_eq_u32 {s(sSl)}, 7
    s_cselect_b32 {s(sU0)}, {OOR}, {s(sU0)}
    s_cselect_b32 {s(sFl)}, {OOR}, {s(sFl)}
    s_cmp_eq_u32 {s(sFB)}, 13
    s_cselect_b32 {s(sU1)}, {OOR}, {s(sU0)}
    s_lshl_b32 {s(sT1)}, {s(sTB)}, 6
    v_and_b32 v14, 31, v0
    v_lshlrev_b32 v14, 1, v14
    buffer_load_ushort {v(vBs)}, v14, {s(sBS,4)}, {s(sT1)} offen''']
    return f+[f'buffer_load_dwordx4 {v(Z+4*j,4)}, {v(vSt)}, {s(sWS,4)}, {s(sU0+(j>>1))} offen offset:{512*j}' for j in range(4)]
LP=int(os.environ.get('LP','1')); sLp,sLs=64,98
def lpb(d): return f's_mul_i32 {s(d)}, {s(sW)}, 5120\ns_lshl_b32 {s(sT0)}, {s(sW)}, 12\ns_sub_u32 {s(sT0)}, {s(sT0)}, 1024\ns_cmp_lt_u32 {s(sW)}, 4\ns_cselect_b32 {s(d)}, {s(d)}, {s(sT0)}\ns_add_u32 {s(d)}, {s(d)}, 131072'
def wdma(grp,n):
    if grp and n==4: return wld(4,4)
    return ([lpb(sLp),f's_add_u32 {s(sWf)}, {s(sWf)}, 40960\ns_cmp_eq_u32 {s(sW)}, 3\ns_cselect_b32 {s(sLp)}, {163840-1024}, {s(sLp)}\ns_cselect_b32 {s(sLs)}, -1024, 0\ns_cselect_b32 {s(sWf)}, {OOR}, {s(sWf)}'] if n==0 else [])+[
      f's_mov_b32 m0, {s(sLp)}' if n<4 else f's_add_u32 m0, {s(sLp)}, 4096',f's_add_u32 {s(sLp)}, {s(sLp)}, {s(sLs)}',f'buffer_load_dwordx4 {v(vL16 if n<4 else vL4)}, {s(sWS,4)}, {s(sWf)} offen offset:{(n&3)*1024} lds']
def peel(e,grp,stamp):
    stamp(5)
    f=misc(grp); f=f[:1]+[wld(j,n) for j in range(5-grp) for n in range(5)]+f[1:]
    if grp: f=f[:9]+f[21:]+f[9:21]
    if LP: f+=[wdma(grp,n) for n in range(5)]
    ends=[0,5 if WT else 4]
    for k,nx in enumerate(NX):
        n0=len(e.l); pe=32-len(NX)+k
        pp(e,k&1,grp,pe,f,ends[-2]+ends[-1] if k==0 else tot-mark[-2],nx)
        if k==0: tot=0; mark=[0]
        ops=[x for x in e.l[n0:] if x.startswith('buffer_')]
        mark.append(tot+max([i+1 for i,x in enumerate(ops) if x.endswith(' lds') and s(sWf)+' ' not in x]+[0])); tot+=len(ops)
        if pe==29: stamp(6)
    assert not f,len(f)
LB=(65536,0); RS=336; ASC=os.environ.get('ASC',' sc1'); ROT=int(os.environ.get('ROT','1')); BJ=int(os.environ.get('BJ','1')); TPR=int(os.environ.get('TPR','0')); W1,WS2,WST,BK=[int(c) for c in os.environ.get('WP','2030')]; PUT=int(os.environ.get('PUT','3')); FJ=int(os.environ.get('FJ','4'))
def tail(e,nk,own,stamp):
    for j in range(5,nk):
        for n in range(5): e(wld(j,n) if own or j>5 or not LP else rd(WS_[5]+4*n,12,1024*n))
    if own:
        for i in range(4): e(f'buffer_load_dwordx2 {v(XR+2*i,2)}, v3, {s(sX,4)}, {s(sOo+i)} offen')
    L=f'k2_p{nk}{own}'
    e(f'''s_mov_b64 exec, s[52:53]
    {L}:
    buffer_load_dword v14, v13, {s(sWS,4)}, {s(sT1)} offen{SC}
    s_sub_u32 {s(sSt)}, {s(sSt)}, 1
    s_cbranch_scc1 {L}x
    s_waitcnt vmcnt(0)
    v_cmp_eq_u32 vcc, 0, v14
    {'s_and_b64 exec, exec, vcc' if NAR else ''}
    s_cbranch_vccnz {L}
    {L}x:
    s_mov_b64 exec, -1
    s_waitcnt lgkmcnt(0)'''); stamp(10)
    q=[]
    def ald(i,j): q.append((i,j)); e(f'buffer_load_dwordx4 {v(AR+28*(i&1)+4*j,4)}, {v(vL16 if j<4 else vL4)}, {s(sWS,4)}, {s(sAo+i)} offen offset:{(j&3)*1024}{ASC}')
    for i in (0,1):
        for j in range(nk): ald(i,j)
    Y=132; S=(40,68,12)
    if own and TPR: e(f's_setprio {1+(TPR==2 and nk==6)}')
    def rds(): e([f'ds_read_b128 {v(Y+4*k if k<5 else S[k-5],4)}, v2 offset:{(k+3)%8*16*RS}' for k in range(8)]+['v_xor_b32 v2, 0x10000, v2'])
    def fin(i):
        E=Y+4; w=lambda k:[f's_waitcnt lgkmcnt({k})'] if i==3 else []
        p2=lambda op,d,x,y,z=None: [f'v_pk_{op}_f32 {v(d+2*h,2)}, {v(x+2*h,2)}, '+(y if isinstance(y,str) else v(y+2*h,2))+(f', {v(z+2*h,2)}' if z else '') for h in (0,1)]
        if i<3: p2=lambda op,d,x,y,z=None: [f'v_{op}_f32 {v(d+h)}, '+(y[:4].replace('[','') if isinstance(y,str) else v(y+h))+f', {v(x+h)}'+(f', {v(z+h)}' if z else '') for h in range(4)]
        pk=lambda d,x: p2('add',d,d,x)
        f=(w(6) or ['s_waitcnt lgkmcnt(0)'])+pk(Y,Y+4)+w(4)+pk(Y+8,Y+12)+w(3)+pk(Y,Y+16)+pk(Y,Y+8)+p2('mul',E,Y,'s[54:55]')+[f'v_exp_f32 {v(E+r)}, {v(E+r)}' for r in range(4)]
        f+=[f'v_lshlrev_b32 {v(Y+16+2*r)}, 16, {v(XR+2*i+r)}' for r in (0,1)]+p2('add',E,E,'s[56:57]')+[f'v_rcp_f32 {v(E+r)}, {v(E+r)}' for r in range(4)]
        f+=[f'v_and_b32 {v(Y+17+2*r)}, 0xffff0000, {v(XR+2*i+r)}' for r in (0,1)]+w(0)+pk(S[0],S[1])+p2('mul',Y,Y,E)+pk(S[0],S[2])+p2('fma',Y,Y,S[0],Y+16)
        f+=[f'v_cvt_pk_bf16_f32 {v(Y+r)}, {v(Y+2*r)}, {v(Y+2*r+1)}' for r in (0,1)]+[f'buffer_store_dwordx2 {v(Y,2)}, v3, {s(sO,4)}, {s(sOo+i)} offen']
        return f
    f=[]
    def put(k):
        for _ in range(k):
            if f: x=f.pop(0); e(x); x.startswith('buffer') and q.append('st')
    def sync(i):
        put(99); e('s_waitcnt lgkmcnt(0)\ns_barrier'); own and rds()
        if i in (0,3): stamp(11+i//3)
    for i in range(4):
        C=AC+20*(i&1)
        for j in range(nk):
            e(f's_waitcnt vmcnt({len(q)-1-q.index((i,j))})')
            if own and i and j==FJ: f=fin(i-1)
            for n in range(5):
                e(f'v_mfma_f32_16x16x32_bf16 {v(C+4*n,4)}, {v(WS_[j]+4*n,4)}, {v(AR+28*(i&1)+4*j,4)}, '+(v(C+4*n,4) if j else '0')); put(PUT+(nk==5))
            if i<2: ald(i+2,j)
            if i and j==BJ: sync(i-1)
        if len(f)>=4: put(4)
        else: e('s_nop 3')
        for n in range(5): e(f'ds_write_b128 v0, {v(C+4*n,4)} offset:{64*n}')
        e('v_xor_b32 v0, 0x10000, v0')
    sync(3)
    if own: f=fin(3); put(99)
def build(stamp_f):
    e=A(); stamp=lambda i: stamp_f(e,i)
    e(f'''k2_top:
    s_cmp_ge_u32 s2, 256
    s_cbranch_scc1 k2_end
    s_load_dwordx2 {s(sWS,2)}, s[0:1], 80
    s_load_dwordx2 {s(sDM,2)}, s[0:1], 80
    s_load_dwordx2 {s(sSP,2)}, s[0:1], 40
    s_load_dwordx2 {s(sBS,2)}, s[0:1], 48
    s_load_dwordx2 {s(sX,2)}, s[0:1], 0
    s_load_dwordx2 {s(sO,2)}, s[0:1], 64''')
    if int(os.environ.get('CP2','1')): codepf(e,'k2_top',5,15)
    e(f'''v_lshrrev_b32 v1, 6, v0
    v_and_b32 v0, 63, v0
    v_readfirstlane_b32 {s(sW)}, v1''')
    stamp(0)
    srd(e,sWS,WSZ); srd(e,sDM,WSZ); srd(e,sSP,2048*4096); srd(e,sBS,4096); srd(e,sX,2048*1280); srd(e,sO,2048*1280)
    e(f'''s_and_b32 {s(sWq)}, {s(sW)}, 3
    s_lshr_b32 {s(sKh)}, {s(sW)}, 2
    s_and_b32 {s(sH)}, s2, 7
    s_lshl_b32 {s(sH)}, {s(sH)}, 2
    s_lshr_b32 {s(sT0)}, s2, 6
    s_add_u32 {s(sH)}, {s(sH)}, {s(sT0)}
    s_bfe_u32 {s(sQB)}, s2, 0x30003
    s_lshl_b32 {s(sQB)}, {s(sQB)}, 2
    s_add_u32 {s(sQB)}, {s(sQB)}, {s(sWq)}
    s_bfe_u32 {s(sTB)}, s2, 0x20001
    s_lshl_b32 {s(sTB)}, {s(sTB)}, 2
    s_bfe_u32 {s(sT0)}, s2, 0x20003
    s_add_u32 {s(sTB)}, {s(sTB)}, {s(sT0)}
    s_lshr_b32 {s(sSl)}, s2, 5
    s_min_u32 {s(sFB)}, {s(sSl)}, 6
    s_and_b32 {s(sT0)}, s2, 1
    s_mul_i32 {s(sT0)}, {s(sT0)}, 7
    s_add_u32 {s(sFB)}, {s(sFB)}, {s(sT0)}
    s_mul_i32 {s(sT2)}, {s(sH)}, {HS}
    s_min_u32 {s(sMk)}, {s(sW)}, 6
    s_lshl_b32 {s(sMk)}, {s(sMk)}, 10
    s_add_u32 {s(sKV)}, {s(sT2)}, {s(sMk)}
    s_lshl_b32 {s(sZ)}, {s(sFB)}, 1
    s_add_u32 {s(sZ)}, {s(sZ)}, {s(sKh)}
    s_min_u32 {s(sZ)}, {s(sZ)}, 26
    s_lshl_b32 {s(sZ)}, {s(sZ)}, 7
    s_add_u32 {s(sZ)}, {s(sZ)}, {s(sWq)}
    s_lshl_b32 {s(sZ)}, {s(sZ)}, 10
    s_add_u32 {s(sZ)}, {s(sZ)}, {Z2T}
    s_lshl_b32 {s(sMz)}, {s(sW)}, 10
    s_lshl_b32 {s(sMw)}, {s(sMz)}, 1
    s_add_u32 {s(sMz)}, {s(sMz)}, {LZ}
    s_add_u32 {s(sMw)}, {s(sMw)}, {LW}
    s_lshl_b32 {s(sSo)}, {s(sTB)}, 3
    s_add_u32 {s(sSo)}, {s(sSo)}, {s(sW)}
    s_lshl_b32 {s(sSo)}, {s(sSo)}, 16
    s_mul_i32 {s(sT0)}, {s(sQB)}, {4*TL}
    s_add_u32 {s(sT0)}, {s(sT0)}, {ACT}
    s_lshl_b32 {s(sU0)}, {s(sH)}, 9
    s_add_u32 {s(sU0)}, {s(sU0)}, {s(sT0)}
    s_lshr_b32 {s(sT1)}, {s(sH)}, 1
    s_lshl_b32 {s(sT1)}, {s(sT1)}, 8
    s_add_u32 {s(sT0)}, {s(sT0)}, {s(sT1)}
    s_and_b32 {s(sT1)}, {s(sH)}, 1
    s_lshl_b32 {s(sT1)}, {s(sT1)}, 3
    s_add_u32 {s(sT0)}, {s(sT0)}, {s(sT1)}
    s_add_u32 {s(sU1)}, {s(sT0)}, 16384
    s_add_u32 {s(sT0)}, {s(sU0)}, {2*TL}
    s_add_u32 {s(sT1)}, {s(sU1)}, {2*TL}
    v_lshlrev_b32 {v(vL16)}, 4, v0
    v_lshrrev_b32 v12, 3, v0
    v_lshrrev_b32 v13, 4, v0
    v_and_b32 v14, 7, v0
    v_xor_b32 v13, v13, v14
    v_lshlrev_b32 v13, 4, v13
    v_lshl_add_u32 {v(vDW0)}, v12, 12, v13
    v_xor_b32 {v(vDW1)}, 0x8040, {v(vDW0)}
    s_mov_b32 {s(sSt)}, 128
    s_mov_b32 {s(sUn)}, 33
    s_mov_b32 {s(sLim)}, {17-LEAD}
    s_cmp_lt_u32 s2, {224 if NPF else 999}
    s_cbranch_scc1 k2_np
    s_sub_u32 {s(sSo)}, s2, 224
    s_lshl_b32 {s(sSo)}, {s(sSo)}, 3
    s_add_u32 {s(sSo)}, {s(sSo)}, {s(sW)}
    s_lshl_b32 {s(sSo)}, {s(sSo)}, 15
    s_add_u32 {s(sSo)}, {s(sSo)}, {TW*128 if TW else 512}
    {f's_mov_b32 {s(sSP+2)}, 0' if NP2 or TW else ''}
    s_mov_b32 {s(sSt)}, 256
    s_mov_b32 {s(sUn)}, 6
    s_mov_b32 {s(sLim)}, {(24-TW)//4 if TW else 5 if LEAD==3 else 4}
    s_mov_b32 {s(sZ)}, 0xf0000000
    v_add_u32 {v(vDW1)}, 128, {v(vDW0)}
    k2_np:
    v_and_b32 v12, 31, v0
    v_lshrrev_b32 v13, 5, v0
    v_lshlrev_b32 {v(vR)}, 3, v12
    v_bfe_u32 v14, v0, 4, 1
    v_mul_u32_u24 v14, {TL-256}, v14
    v_lshl_add_u32 v14, v12, 4, v14
    v_lshl_add_u32 {v(vSt)}, v13, 8, v14
    v_lshl_add_u32 {v(vT)}, v13, 30, v14
    s_waitcnt lgkmcnt(0)''')
    stamp(4)
    for j in range(4): em(e,dma(j,0))
    for i in (0,1):
        e(f'buffer_load_dwordx4 {v(QM+4*i,4)}, {v(vSt)}, {s(sWS,4)}, {s((sU0,sT0)[i])} offen')
        e(f'buffer_load_dwordx2 {v(QR+2*i,2)}, {v(vT)}, {s(sWS,4)}, {s((sU1,sT1)[i])} offen')
    def pst(st):
        for j in range(4): em(e,dma(j,st),f's_add_u32 {s(sKV)}, {s(sKV)}, {SS}' if j==1 else 's_nop 0')
    pst(1)
    e(f'''s_lshl_b32 {s(sT0)}, {s(sKh)}, 10
    v_add_u32 {v(vK)}, {s(sT0)}, {v(vL16)}
    v_add_u32 {v(vA)}, {s(sT0)}, {v(vK)}
    s_lshl_b32 {s(sT0)}, {s(sKh)}, 8
    s_add_u32 {s(sT0)}, {s(sT0)}, 6144
    v_add_u32 {v(vR)}, {s(sT0)}, {v(vR)}
    s_lshl_b32 {s(sT0)}, {s(sKh)}, 2
    v_add_u32 v13, {s(sT0)}, v13
    v_bfe_u32 v14, v0, 1, 3
    v_xor_b32 v13, v13, v14
    v_lshlrev_b32 v13, 4, v13
    v_lshl_add_u32 v13, v12, 7, v13
    s_lshl_b32 {s(sT0)}, {s(sWq)}, 12
    s_add_u32 {s(sT0)}, {s(sT0)}, {LW}
    v_add_u32 {v(vB0)}, {s(sT0)}, v13
    v_xor_b32 {v(vB1)}, 32, {v(vB0)}
    v_mov_b32 {v(vIdx)}, 0xdddddddd
    s_lshl_b32 {s(sT0)}, {s(sW)}, 3
    s_mov_b32 s54, 0x140e0700
    s_mov_b32 s55, 0x29231e19
    s_lshr_b64 s[54:55], s[54:55], {s(sT0)}
    s_and_b32 {s(sNk)}, s54, 0xff
    s_mul_i32 {s(sWf)}, {s(sNk)}, 40960
    s_mul_i32 {s(sT0)}, {s(sSl)}, 5120
    s_add_u32 {s(sWf)}, {s(sWf)}, {s(sT0)}
    s_add_u32 {s(sWf)}, {s(sWf)}, {WF-40960}
    s_bfe_u32 {s(sT0)}, s2, 0x20003
    s_mul_i32 {s(sT0)}, {s(sT0)}, 1280
    s_add_u32 {s(sPfW)}, {s(sWf)}, {s(sT0)}
    s_sub_u32 {s(sPfW)}, {s(sPfW)}, {(NIT-1-WT)*40960}
    v_add_u32 v14, 54, v0
    v_lshrrev_b32 v14, 6, v14
    v_lshlrev_b32 v14, 30, v14
    v_lshl_add_u32 v14, v0, 7, v14
    s_mov_b32 {s(sIt)}, 0''')
    for r in range(O0,G1+16): e(f'v_mov_b32 {v(r)}, 0')
    e('s_waitcnt vmcnt(4)'); e('s_barrier'); stamp(1)
    e([rd(KM,vK,0),f'ds_read_b64 {v(KR,2)}, {v(vR)}',rd(GBa,vB0,0),rd(GA1,vA,LZ+4096),rd(GA0,vA,LZ),rd(V0,vA,2048),rd(V1,vA,3072)])
    e('s_waitcnt lgkmcnt(2)'); e(mf(SA,KM,QM,'0')); e(mf8(SA,KR,QR))
    TP=int(os.environ.get('TP','0'))
    if TP: e(f's_lshl_b32 {s(sT0)}, {s(sW)}, 7\ns_add_u32 {s(sT0)}, {s(sT0)}, {ACT+47*1024}\nv_mul_u32_u24 v13, {TL*128//TP}, v0\ns_bfm_b64 exec, {TP}, 0\nbuffer_load_dword v15, v13, {s(sWS,4)}, {s(sT0)} offen\ns_mov_b64 exec, -1')
    elif TW: e(f's_mov_b32 {s(sSP+2)}, {2048*4096}\ns_lshl_b32 {s(sT0)}, s2, 3\ns_add_u32 {s(sT0)}, {s(sT0)}, {s(sW)}\ns_lshl_b32 {s(sT0)}, {s(sT0)}, 12\nv_lshlrev_b32 v13, 3, {v(vL16)}\ns_bfm_b64 exec, {TW}, 0\nbuffer_load_dword v15, v13, {s(sSP,4)}, {s(sT0)} offen offset:512\ns_mov_b64 exec, -1')
    elif WT: e(f's_mov_b32 {s(sT0)}, {OOR}\nbuffer_load_dword v15, v14, {s(sWS,4)}, {s(sT0)} offen')
    if NP2: e(f's_mov_b32 {s(sSP+2)}, {2048*4096}')
    for st in range(2,LEAD): pst(st)
    if LEAD==3:
        for r in (sMk,sMz,sMw): e(f's_xor_b32 {s(r)}, {s(r)}, 0x10000')
    stamp(7)
    e(f's_cmp_eq_u32 {s(sKh)}, 0\ns_cbranch_scc0 k2b_loop\n.p2align '+os.environ.get('AL','6')); e(['s_nop 0']*PA0); e('k2a_loop:')
    pp(e,0,0); pp(e,1,0); e('s_cbranch_scc1 k2a_loop\ns_branch k2a_peel\n.p2align 6'); e(['s_nop 0']*PAD); e('k2b_loop:'); pp(e,0,1); pp(e,1,1); e('s_cbranch_scc1 k2b_loop\ns_branch k2b_peel')
    for g in (0,1)[:2*(NOG>0)]: e(f'.p2align 6\nk2{"cd"[g]}_loop:'); pp(e,0,g,nog=1); pp(e,1,g,nog=1); e(f's_cbranch_scc1 k2{"cd"[g]}_loop\ns_waitcnt vmcnt(1)\ns_branch k2{"ab"[g]}_peel')
    e('.p2align 6\nk2a_peel:'); peel(e,0,stamp); stamp(2)
    e('s_waitcnt lgkmcnt(0)\ns_barrier')
    for j in range(8): e(rd(G0+4*j,13,1024*j))
    for i in (0,1):
        e(f's_waitcnt lgkmcnt({4-4*i})')
        for r in range(0,14,2): e(f'v_pk_add_f32 {v(O0+16*i+r,2)}, {v(O0+16*i+r,2)}, {v(G0+16*i+r,2)}')
    e(f'''v_cmp_le_f32 s[52:53], s50, {v(O0+12)}
    v_cmp_ge_f32 s[54:55], s51, {v(O0+12)}
    v_cmp_le_f32 s[56:57], s50, {v(O1+12)}
    v_cmp_ge_f32 s[58:59], s51, {v(O1+12)}
    s_and_b64 s[52:53], s[52:53], s[54:55]
    s_and_b64 s[56:57], s[56:57], s[58:59]
    s_and_b64 s[52:53], s[52:53], s[56:57]
    s_andn2_b64 s[52:53], exec, s[52:53]
    s_cbranch_scc1 k2_slow
    k2_ofin:
    v_rcp_f32 v14, {v(O0+12)}
    v_rcp_f32 v15, {v(O1+12)}
    s_add_u32 {s(sT0)}, {s(sU0)}, {2*TL}
    s_add_u32 {s(sT1)}, {s(sU1)}, {2*TL}''')
    for i in (0,1):
        O=O0+16*i
        for r in range(12): e(f'v_mul_f32 {v(O+r)}, {v(O+r)}, {v(14+i)}')
        for r in range(6): e(f'v_cvt_pk_bf16_f32 {v(O+r)}, {v(O+2*r)}, {v(O+2*r+1)}')
        e(f'buffer_store_dwordx4 {v(O,4)}, {v(vSt)}, {s(sWS,4)}, {s((sU0,sT0)[i])} offen{SC}')
        e(f'buffer_store_dwordx2 {v(O+4,2)}, {v(vT)}, {s(sWS,4)}, {s((sU1,sT1)[i])} offen{SC}')
    e('s_branch k2_p3\n.p2align 6\nk2b_peel:'); peel(e,1,stamp); stamp(2)
    e(f's_waitcnt vmcnt({12+5*LP}) lgkmcnt(0)\ns_barrier')
    for j in range(8): e(rd(O0+4*j,13,1024*j))
    if not EX: e(f'v_lshlrev_b32 v14, 16, {v(vBs)}\nv_lshlrev_b32 v15, 16, {v(vBs)}')
    for r in range(16*(not EX)): e(f'v_lshlrev_b32 {v(SA+2*r)}, 16, {v(Z+r)}\nv_and_b32 {v(SA+2*r+1)}, 0xffff0000, {v(Z+r)}\nv_pk_add_f32 {v(G0+2*r,2)}, {v(G0+2*r,2)}, v[14:15]')
    for j in range(4):
        e(f's_waitcnt lgkmcnt({6-2*j})')
        for r in range(8*j,8*j+8,2): e(f'v_pk_add_f32 {v(G0+r,2)}, {v(G0+r,2)}, {v(O0+r,2)}')
        for r in range(8*j,8*j+8,2): e(f'v_pk_mul_f32 {v(G0+r,2)}, {v(G0+r,2)}, {v(SA+r,2)}')
        for r in range(4): e(f'v_cvt_pk_bf16_f32 {v(G0+8*j+r)}, {v(G0+8*j+2*r)}, {v(G0+8*j+2*r+1)}')
        e(f'buffer_store_dwordx4 {v(G0+8*j,4)}, {v(vSt)}, {s(sWS,4)}, {s(sU0+(j>>1))} offen offset:{512*j}{SC}')
    e('k2_p3:'); stamp(8)
    e(f'''s_and_b32 {s(sT1)}, s2, 7
    s_lshl_b32 {s(sT1)}, {s(sT1)}, 2
    s_bfe_u32 {s(sT0)}, s2, 0x20003
    s_add_u32 {s(sT1)}, {s(sT1)}, {s(sT0)}
    s_mul_i32 s54, {s(sT1)}, {4*48}
    s_add_u32 s54, s54, {s(sNk)}
    s_lshl_b32 s54, s54, 10
    s_add_u32 s54, s54, {ACT}
    s_mul_i32 s55, {s(sT1)}, {64*1280}
    s_mul_i32 {s(sT0)}, {s(sSl)}, 160
    s_add_u32 s55, s55, {s(sT0)}
    s_lshl_b32 {s(sT0)}, {s(sW)}, 6
    s_sub_u32 {s(sT0)}, {s(sT0)}, 192
    v_add_u32 v9, {s(sT0)}, v0
    v_mul_u32_u24 v8, 3277, v9
    v_lshrrev_b32 v8, 16, v8
    v_mul_u32_u24 v3, {1280-160}, v8
    v_lshl_add_u32 v3, v9, 3, v3
    v_add_u32 v8, v8, v9
    v_lshlrev_b32 v8, 4, v8
    v_add_u32 v2, {LB[0]}, v8
    v_lshlrev_b32 v13, {FS}, v0
    v_mov_b32 v15, 1
    {lpb(sLp)}
    v_add_u32 v12, {s(sLp)}, {v(vL16)}
    s_mul_i32 {s(sT0)}, {s(sW)}, {16*RS}
    s_add_u32 {s(sT0)}, {s(sT0)}, {LB[0]}
    v_and_b32 v4, 15, v0
    v_mul_u32_u24 v4, {RS}, v4
    v_and_b32 v0, 0x30, v0
    v_add3_u32 v0, {s(sT0)}, v4, v0''')
    for i in range(4):
        e(f'''s_add_u32 {s(sT0)}, {s(sSl) if ROT else 0}, {i}
        s_and_b32 {s(sT0)}, {s(sT0)}, 3
        s_mul_i32 {s(sOo+i)}, {s(sT0)}, {16*1280}
        s_add_u32 {s(sOo+i)}, {s(sOo+i)}, s55
        s_mul_i32 {s(sT0)}, {s(sT0)}, {TL}
        s_add_u32 {s(sAo+i)}, {s(sT0)}, s54''')
    e(f'''s_lshl_b32 {s(sT1)}, {s(sT1)}, {6+FS}
    s_add_u32 {s(sT1)}, {s(sT1)}, {FL}
    s_lshl_b32 {s(sT0)}, {s(sW)}, 3
    s_mov_b32 s54, 0x20000e00
    s_mov_b32 s55, 0x342e2a24
    s_mov_b32 s56, 0x06200e0e
    s_mov_b32 s57, 0x08080606
    s_lshr_b64 s[54:55], s[54:55], {s(sT0)}
    s_lshr_b64 s[56:57], s[56:57], {s(sT0)}
    s_bfm_b64 s[52:53], s56, s54
    s_mov_b32 {s(sSt)}, 0x100000
    s_mov_b32 s54, {fl(-1.4426950408889634)}
    s_mov_b32 s55, s54
    s_mov_b32 s56, 1.0
    s_mov_b32 s57, 1.0
    s_mov_b64 exec, 1
    s_waitcnt vmcnt(0)
    buffer_store_dword v15, off, {s(sWS,4)}, {s(sFl)}{SC}
    s_mov_b64 exec, -1'''); stamp(9)
    e(f'''s_cmp_lt_u32 {s(sW)}, 2
    s_cbranch_scc1 k2_t70
    s_cmp_lt_u32 {s(sW)}, 3
    s_cbranch_scc1 k2_t60
    s_cmp_lt_u32 {s(sW)}, 4
    s_cbranch_scc1 k2_t51''')
    for n in range(5-LP): e(rd(WS_[4]+4*n,12,1024*n) if LP else wld(4,n))
    e(f's_cmp_lt_u32 {s(sW)}, 6\ns_cbranch_scc1 k2_t51')
    for nk,own in ((6,1),(5,1),(6,0),(7,0)):
        e(f'k2_t{nk}{own}:'); n0=len(e.l); tail(e,nk,own,stamp)
        import re
        e.l[n0:]=[x for x in e.l[n0:] if not(('f' in ABL and re.match('v_(add|mul|fma|exp|rcp|cvt|pk|lshl|and)',x)) or ('W' in ABL and 'ds_write' in x) or ('R' in ABL and 'ds_read' in x) or ('m' in ABL and 'mfma' in x) or ('s' in ABL and 'store_dwordx2' in x))]
        if nk!=7: e('s_branch k2_fin')
    e('k2_fin:'); stamp(3); stamp(-1)
    e('k2_end:\ns_endpgm')
    e(f'''k2_slow:
    v_and_b32 v12, 31, v0
    v_lshlrev_b32 v12, 3, v12
    v_mov_b32 v14, 0xff800000
    v_mov_b32 v15, 0xff800000''')
    for ps in (0,1):
        e(f'''s_mov_b32 {s(sIt)}, 0
        k2_sl{ps}:
        s_lshr_b32 {s(sT0)}, {s(sIt)}, 1
        s_mul_i32 {s(sT0)}, {s(sT0)}, {SS}
        s_add_u32 {s(sT0)}, {s(sT0)}, {s(sT2)}
        s_and_b32 {s(sT1)}, {s(sIt)}, 1
        s_lshl_b32 s50, {s(sT1)}, 8
        s_add_u32 s50, s50, {s(sT0)}
        s_add_u32 s50, s50, 6144
        s_lshl_b32 {s(sT1)}, {s(sT1)}, 10
        s_add_u32 {s(sT0)}, {s(sT0)}, {s(sT1)}
        s_add_u32 {s(sT1)}, {s(sT0)}, {s(sT1)}
        buffer_load_dwordx4 {v(KM,4)}, {v(vL16)}, {s(sWS,4)}, {s(sT0)} offen
        buffer_load_dwordx2 {v(KR,2)}, v12, {s(sWS,4)}, s50 offen
        buffer_load_dwordx4 {v(V0,4)}, {v(vL16)}, {s(sWS,4)}, {s(sT1)} offen offset:2048
        buffer_load_dwordx4 {v(V1,4)}, {v(vL16)}, {s(sWS,4)}, {s(sT1)} offen offset:3072
        s_waitcnt vmcnt(0)''')
        for i in (0,1): e(mf(SA+16*i,KM,QM+4*i,v(G0+16*i,16) if ps else '0')); e(mf8(SA+16*i,KR,QR+2*i))
        e('s_nop 11')
        for r in range(32): e(f'v_exp_f32 {v(SA+r)}, {v(SA+r)}' if ps else f'v_max_f32 {v(14+r//16)}, {v(14+r//16)}, {v(SA+r)}')
        if ps:
            e('s_nop 1')
            for i in (0,1): e(pv(O0+16*i,V0,SA+16*i)); e(pv(O0+16*i,V1,SA+16*i+8))
        e(f's_add_u32 {s(sIt)}, {s(sIt)}, 1\ns_cmp_lt_u32 {s(sIt)}, 64\ns_cbranch_scc1 k2_sl{ps}')
        if ps==0:
            for i in (0,1): e(f'v_mov_b32 v13, {v(14+i)}\ns_nop 1\nv_permlane32_swap_b32 v13, {v(14+i)}\ns_nop 0\nv_max_f32 {v(14+i)}, v13, {v(14+i)}')
            for r in range(32): e(f'v_sub_f32 {v(G0+r)}, 0, {v(14+r//16)}\nv_mov_b32 {v(O0+r)}, 0')
    e('code_end:\ns_nop 11\ns_branch k2_ofin')
    return e
```

```python
from lib import *
import os
LEAD=int(os.environ.get('LEAD','3')); NPF=int(os.environ.get('NPF','1'))
sWS,sDM,sSP,sX,sBS,sO=4,8,12,16,20,60
FL=0x1E80000; SC=' sc1'; OOR='0xf0000000'
sW,sH,sQB,sTB,sFB,sT0,sT1,sT2,sKV,sZ,sSo,sMk,sMz,sMw,sIt,sU0,sU1,sUn,sWq,sKh,sSl,sSt,sLim=range(24,47)
vL16,vA,vK,vR,vB0,vB1,vDW0,vDW1,vIdx,vBs,vT=1,2,3,4,5,6,7,8,9,10,11
SA,SB,O0,O1,G0,G1=16,32,48,64,80,96
QM,QR,KM,KR,V0,V1,GA0,GA1,GBa,Z=112,120,124,128,132,136,140,144,148,152
sWf,sFl,sAo,sOo,sNk=47,48,32,36,49
vL4=172; vSt=173; sUa,sPfW=64,65; WS_=[176,196,216,236,152,112,132]; AR,AC,XR=16,72,4
LK,LZ,LW=0,7168,15360
def dma(j,slot):
    o=slot*32768
    if j==0: return [f's_add_u32 m0, {s(sMw)}, {o}', None, f'buffer_load_dwordx4 {v(vDW0)}, {s(sSP,4)}, {s(sSo)} offen lds']
    if j==1: return [f's_add_u32 m0, {s(sMw)}, {o+1024}', None, f'buffer_load_dwordx4 {v(vDW1)}, {s(sSP,4)}, {s(sSo)} offen lds']
    if j==2: return [f's_add_u32 m0, {s(sMz)}, {o}', f's_add_u32 {s(sSo)}, {s(sSo)}, {s(sSt)}', f'buffer_load_dwordx4 {v(vL16)}, {s(sDM,4)}, {s(sZ)} offen lds']
    return [f's_add_u32 m0, {s(sMk)}, {o}', f's_add_u32 {s(sZ)}, {s(sZ)}, 4096', f'buffer_load_dwordx4 {v(vL16)}, {s(sDM,4)}, {s(sKV)} offen lds']
def em(e,d,alt='s_nop 0'): e([d[0],d[1] or alt,d[2]])
def mf(D,Aa,B,C=None): return f'v_mfma_f32_32x32x16_bf16 {v(D,16)}, {v(Aa,4)}, {v(B,4)}, '+(C or v(D,16))
def mf8(D,Aa,B): return f'v_mfma_f32_32x32x8_bf16 {v(D,16)}, {v(Aa,2)}, {v(B,2)}, {v(D,16)}'
def pv(D,Aa,P): return f'v_smfmac_f32_32x32x32_bf16 {v(D,16)}, {v(Aa,4)}, {v(P,8)}, {v(vIdx)}'
def rd(D,ad,off): return f'ds_read_b128 {v(D,4)}, {v(ad)} offset:{off}'
NAR=int(os.environ.get('NAR','1')); DP=int(os.environ.get('DP','0')); NP2=int(os.environ.get('NP2','0')); NOG=int(os.environ.get('NOG','0')); WT=int(os.environ.get('WT','7'))
NA,NB,BR,PAD,PA0,RO=[int(os.environ.get(x,'0')) for x in ('NA','NB','BR','PAD','PA0','RO')]
RO=RO or 2; NX=[int(c) for c in os.environ.get('NX','33344771')]; NIT=16-len(NX)//2
PRI=os.environ.get('PRI','0')
ABL=os.environ.get('ABL','')
def wld(j,n): return ['s_nop 0'] if 'w' in ABL else ([f's_add_u32 {s(sWf)}, {s(sWf)}, 40960'] if n==0 else [])+[f'buffer_load_dwordx4 {v(WS_[j]+4*n,4)}, {v(vL16 if n<4 else vL4)}, {s(sWS,4)}, {s(sWf)} offen offset:{(n&3)*1024}']
EX=int(os.environ.get('EX','1')); TW=int(os.environ.get('TW','0'))
def pp_(e,par,grp,pe=0,xl=None,vm=4,nx=0):
    c=par*32768; n=(1-par)*32768; dp=1-par; last=pe==31
    if WT and not par and not pe: vm=5
    mid,hi,lo='s_setprio 1','s_setprio 2','s_setprio 0'
    def ex(S):
        for r in range(16): e(f'v_exp_f32 {v(S+r)}, {v(S+r)}')
    order=[5,8,10,0,11,9,1,3] if pe<=28 else [2,4,0,5,6,7,8] if last else [2,6,4,7,10,5,8,0,11]
    def X(p):
        if xl and p in order[:nx]: e(xl.pop(0))
    def D(j,p,alt='s_nop 0'): em(e,dma(j,dp),alt) if pe<=28 else X(p)
    def N(x):
        if not last: e(x)
    wr=lambda b,j: f'ds_write_b128 v12, {v(b+4*j,4)} offset:{1024*j}'
    bar=f's_waitcnt vmcnt({vm})\ns_barrier' if not last else ''
    if grp: e(bar)
    ex(SA)
    if par:
        for r in (vK,vR,vB0): N(f'v_xor_b32 {v(r)}, 0x10000, {v(r)}')
    if not grp: e(bar)
    e(mid); e('s_waitcnt lgkmcnt(2)')
    e(mf(SB,KM,QM+4,'0')); e(hi); X(0)
    e(mf8(SB,KR,QR+2)); N(rd(KM,vK,n)); N(f'ds_read_b64 {v(KR,2)}, {v(vR)} offset:{n}'); X(1)
    if WT and par and not pe: e(f's_cmp_ge_u32 {s(sIt)}, {NIT-WT}\ns_cselect_b32 {s(sT0)}, {s(sPfW)}, {OOR}\ns_add_u32 {s(sPfW)}, {s(sPfW)}, 40960\nbuffer_load_dword v15, v14, {s(sWS,4)}, {s(sT0)} offen')
    e(mf(G0,GA0,GBa)); e(rd(GA0,vA,c+LZ+1024)); D(0,2)
    e(mf(G1,GA1,GBa)); e(f's_waitcnt lgkmcnt({1 if last else 3})'); e(rd(GA1,vA,c+LZ+4096+1024)); e(rd(GBa,vB1,c)); X(3)
    e(pv(O0,V0,SA)); D(1,4,f's_add_u32 {s(sKV)}, {s(sKV)}, {SS}')
    e(pv(O0,V1,SA+8)); X(5)
    if last and EX:
        assert nx<=4
        e('s_waitcnt lgkmcnt(0)'); e(mf(G0,GA0,GBa)); e(mf(G1,GA1,GBa)); e(lo)
        at={8:[0],10:[1],12:[2],14:[3]} if grp else {10:[0,1],11:[2,3],12:[4],13:[5],14:[6],15:[7]}
        for r in range(16):
            e(f'v_exp_f32 {v(SB+r)}, {v(SB+r)}')
            for j in at.get(r,[]): e(wr(O0 if grp else G0,j))
        e(mid); grp and e('s_nop 0'); e(pv(O1,V0,SB)); e(hi); e(pv(O1,V1,SB+8))
        if grp:
            up=lambda r: f'v_lshlrev_b32 {v(SA+2*r)}, 16, {v(Z+r)}\nv_and_b32 {v(SA+2*r+1)}, 0xffff0000, {v(Z+r)}'
            e(f's_waitcnt vmcnt({12+5*LP})'); e(f'v_lshlrev_b32 v14, 16, {v(vBs)}\nv_lshlrev_b32 v15, 16, {v(vBs)}')
            for r in range(5): e(up(r))
            e([wr(O0,j) for j in range(4,8)]); e(lo)
            for r in range(5,16): e(up(r))
            for r in range(16): e(f'v_pk_add_f32 {v(G0+2*r,2)}, {v(G0+2*r,2)}, v[14:15]')
        else: e(lo)
        return
    last and e('s_nop 1'); e(lo)
    ex(SB)
    if par:
        for r in (vA,vB1): N(f'v_xor_b32 {v(r)}, 0x10000, {v(r)}')
    e(mid); e('s_waitcnt lgkmcnt(0)')
    if last:
        if grp:
            e(pv(O1,V0,SB)); e(hi); e([wr(O0,0),wr(O0,1)]); X(6); e(pv(O1,V1,SB+8)); e([wr(O0,2),wr(O0,3)]); X(7)
            e(mf(G0,GA0,GBa)); X(8); e(mf(G1,GA1,GBa)); e('s_nop 7'); e([wr(O0,j) for j in range(4,8)])
        else:
            e(mf(G0,GA0,GBa)); e(hi); X(6); e(mf(G1,GA1,GBa)); X(7); e(pv(O1,V0,SB)); X(8); e('s_nop 8'); e([wr(G0,0),wr(G0,1)])
            e(pv(O1,V1,SB+8)); e([wr(G0,j) for j in range(2,8)])
        e(lo); return
    e(mf(SA,KM,QM,'0')); e(hi); D(2,6)
    e(mf8(SA,KR,QR)); D(3,7)
    e(mf(G0,GA0,GBa)); e(rd(GA0,vA,n+LZ))
    if dp and pe<28:
        for r in (sMk,sMz,sMw): e(f's_xor_b32 {s(r)}, {s(r)}, 0x10000')
    X(8)
    e(mf(G1,GA1,GBa)); e(rd(GA1,vA,n+LZ+4096)); e(rd(GBa,vB0,n))
    if dp and not pe: e(f's_cmp_lt_u32 {s(sIt)}, {s(sLim)}\ns_cselect_b32 {s(sSP+2)}, {s(sSP+2)}, 0')
    X(9)
    e(pv(O1,V0,SB)); e(rd(V0,vA,n+2048)); X(10)
    if par and not pe: e(f's_add_u32 {s(sIt)}, {s(sIt)}, 1\n'+(f's_cmp_eq_u32 {s(sIt)}, {s(sUn)}\ns_cbranch_scc1 k2_n{grp}\n' if NOG else f's_cmp_eq_u32 {s(sIt)}, 33\ns_cbranch_scc1 k2_end\n' if RO&(2<<grp) else '')+f's_cmp_lt_u32 {s(sIt)}, {NIT}')
    e(pv(O1,V1,SB+8)); e(rd(V1,vA,n+3072)); X(11); e(lo)
PT=os.environ.get('PT','001001')
def pp(e,par,grp,*a,nog=0):
    m=A(); pp_(m,par,grp,*a); k=0
    if DP and (not a or a[0]<=28):
        idx=[i for i,x in enumerate(m.l) if x.endswith(' lds')]; tr=[m.l[i-2:i+1] for i in idx]
        rest=[x for i,x in enumerate(m.l) if not any(j-2<=i<=j for j in idx)]
        key='v_exp' if grp and DP&1 else 'mfma'; pos=(1,5,9,13) if key=='v_exp' else (0,2,4,5) if DP&4 else (0,1,2,3)
        m.l=[]; c=0
        for x in rest:
            m.l.append(x)
            if key in x:
                if c in pos and tr: m.l+=tr.pop(0)
                c+=1
    if nog:
        dr=lambda x: any(v(r,4) in x for r in (GA0,GA1,GBa)) or (x.endswith(' lds') and s(sKV)+' ' not in x) or x=='s_nop 0' or x.startswith((f's_add_u32 m0, {s(sMw)}',f's_add_u32 m0, {s(sMz)}',f's_add_u32 {s(sSo)}','s_cmp_eq',f's_cselect_b32 {s(sSP+2)}',f's_cmp_lt_u32 {s(sIt)}, {s(sLim)}'))
        m.l=[x.replace('lgkmcnt(3)','lgkmcnt(2)').replace('vmcnt(4)','vmcnt(1)').replace(f's_cbranch_scc1 k2_n{grp}',f'k2_n{grp}:').replace('s_setprio 0',f's_setprio 0\ns_nop {NOG}') for x in m.l if not dr(x)]
    if nog:
        L=sum([y.split('\n') for y in m.l],[]); m.l=[]
        for x in L:
            if x.endswith(' lds') or x.startswith(('s_setprio','s_waitcnt vmcnt','s_add_u32 m0',f's_add_u32 {s(sZ)}',f's_add_u32 {s(sKV)}','s_xor_b32')): continue
            if x=='s_barrier':
                if not par:
                    m.l+=['s_waitcnt vmcnt(0) lgkmcnt(0)',x]
                    for h in (1,0): m.l+=[f's_add_u32 m0, {s(sMk)}, {32768*h}',f's_add_u32 {s(sKV)}, {s(sKV)}, {SS}',dma(3,0)[2]]+[f's_xor_b32 {s(r)}, {s(r)}, 0x10000' for r in (sMk,sMz,sMw)][:3*h]
                continue
            m.l.append(x)
    T,T8,WD=[int(c) for c in (PT[3:] if nog else PT[:3])]; gap=None
    for x in sum([y.split('\n') for y in m.l],[]):
        if 'mfma' in x:
            if gap is not None and gap>0: e(f's_nop {gap-1}')
            gap=T8 if 'x8_' in x else T
        elif x.startswith('v_exp'): gap=None
        elif gap is not None and not x.endswith(':'): gap-=int(x.split()[1])+1 if x.startswith('s_nop') else WD if x.startswith(('ds_','buffer_')) else 1
        e(x)
def misc(grp):
    f=[f'''s_lshl_b32 {s(sT0)}, {s(sW)}, 13
    v_add_u32 v12, {s(sT0)}, {v(vL16)}
    v_xor_b32 v13, 0x8000, v12
    v_add_u32 {v(vL4)}, 4096, {v(vL16)}''']
    if not grp:
        return f+[f'''s_mov_b32 s50, {fl(2.0**-64)}
        s_mov_b32 s51, {fl(2.0**64)}
        s_lshl_b32 {s(sFl)}, {s(sQB)}, 6
        s_add_u32 {s(sFl)}, {s(sFl)}, {s(sH)}
        s_lshl_b32 {s(sFl)}, {s(sFl)}, {FS}
        s_add_u32 {s(sFl)}, {s(sFl)}, {FL}''']
    f+=[f'''s_lshl_b32 {s(sTB)}, {s(sTB)}, 2
    s_add_u32 {s(sTB)}, {s(sTB)}, {s(sWq)}
    s_lshr_b32 {s(sFl)}, {s(sTB)}, 1
    s_lshl_b32 {s(sFl)}, {s(sFl)}, 5
    s_add_u32 {s(sFl)}, {s(sFl)}, {s(sFB)}
    s_lshl_b32 {s(sFl)}, {s(sFl)}, 1
    s_and_b32 {s(sT0)}, {s(sTB)}, 1
    s_add_u32 {s(sFl)}, {s(sFl)}, {s(sT0)}
    s_lshl_b32 {s(sFl)}, {s(sFl)}, {FS}
    s_add_u32 {s(sFl)}, {s(sFl)}, {FL+(32<<FS)}''',f'''s_mul_i32 {s(sU0)}, {s(sTB)}, {2*TL}
    s_lshl_b32 {s(sT0)}, {s(sFB)}, 11
    s_add_u32 {s(sU0)}, {s(sU0)}, {s(sT0)}
    s_add_u32 {s(sU0)}, {s(sU0)}, {ACT+20480}
    s_cmp_eq_u32 {s(sSl)}, 7
    s_cselect_b32 {s(sU0)}, {OOR}, {s(sU0)}
    s_cselect_b32 {s(sFl)}, {OOR}, {s(sFl)}
    s_cmp_eq_u32 {s(sFB)}, 13
    s_cselect_b32 {s(sU1)}, {OOR}, {s(sU0)}
    s_lshl_b32 {s(sT1)}, {s(sTB)}, 6
    v_and_b32 v14, 31, v0
    v_lshlrev_b32 v14, 1, v14
    buffer_load_ushort {v(vBs)}, v14, {s(sBS,4)}, {s(sT1)} offen''']
    return f+[f'buffer_load_dwordx4 {v(Z+4*j,4)}, {v(vSt)}, {s(sWS,4)}, {s(sU0+(j>>1))} offen offset:{512*j}' for j in range(4)]
LP=int(os.environ.get('LP','1')); sLp,sLs=64,98
def lpb(d): return f's_mul_i32 {s(d)}, {s(sW)}, 5120\ns_lshl_b32 {s(sT0)}, {s(sW)}, 12\ns_sub_u32 {s(sT0)}, {s(sT0)}, 1024\ns_cmp_lt_u32 {s(sW)}, 4\ns_cselect_b32 {s(d)}, {s(d)}, {s(sT0)}\ns_add_u32 {s(d)}, {s(d)}, 131072'
def wdma(grp,n):
    if grp and n==4: return wld(4,4)
    return ([lpb(sLp),f's_add_u32 {s(sWf)}, {s(sWf)}, 40960\ns_cmp_eq_u32 {s(sW)}, 3\ns_cselect_b32 {s(sLp)}, {163840-1024}, {s(sLp)}\ns_cselect_b32 {s(sLs)}, -1024, 0\ns_cselect_b32 {s(sWf)}, {OOR}, {s(sWf)}'] if n==0 else [])+[
      f's_mov_b32 m0, {s(sLp)}' if n<4 else f's_add_u32 m0, {s(sLp)}, 4096',f's_add_u32 {s(sLp)}, {s(sLp)}, {s(sLs)}',f'buffer_load_dwordx4 {v(vL16 if n<4 else vL4)}, {s(sWS,4)}, {s(sWf)} offen offset:{(n&3)*1024} lds']
def peel(e,grp,stamp):
    stamp(5)
    f=misc(grp); f=f[:1]+[wld(j,n) for j in range(5-grp) for n in range(5)]+f[1:]
    if grp: f=f[:9]+f[21:]+f[9:21]
    if LP: f+=[wdma(grp,n) for n in range(5)]
    ends=[0,5 if WT else 4]
    for k,nx in enumerate(NX):
        n0=len(e.l); pe=32-len(NX)+k
        pp(e,k&1,grp,pe,f,ends[-2]+ends[-1] if k==0 else tot-mark[-2],nx)
        if k==0: tot=0; mark=[0]
        ops=[x for x in e.l[n0:] if x.startswith('buffer_')]
        mark.append(tot+max([i+1 for i,x in enumerate(ops) if x.endswith(' lds') and s(sWf)+' ' not in x]+[0])); tot+=len(ops)
        if pe==29: stamp(6)
    assert not f,len(f)
LB=(65536,0); RS=336; ASC=os.environ.get('ASC',' sc1'); ROT=int(os.environ.get('ROT','1')); BJ=int(os.environ.get('BJ','1')); TPR=int(os.environ.get('TPR','0')); W1,WS2,WST,BK=[int(c) for c in os.environ.get('WP','2030')]; PUT=int(os.environ.get('PUT','3')); FJ=int(os.environ.get('FJ','4'))
def tail(e,nk,own,stamp):
    for j in range(5,nk):
        for n in range(5): e(wld(j,n) if own or j>5 or not LP else rd(WS_[5]+4*n,12,1024*n))
    if own:
        for i in range(4): e(f'buffer_load_dwordx2 {v(XR+2*i,2)}, v3, {s(sX,4)}, {s(sOo+i)} offen')
    L=f'k2_p{nk}{own}'
    e(f'''s_mov_b64 exec, s[52:53]
    {L}:
    buffer_load_dword v14, v13, {s(sWS,4)}, {s(sT1)} offen{SC}
    s_sub_u32 {s(sSt)}, {s(sSt)}, 1
    s_cbranch_scc1 {L}x
    s_waitcnt vmcnt(0)
    v_cmp_eq_u32 vcc, 0, v14
    {'s_and_b64 exec, exec, vcc' if NAR else ''}
    s_cbranch_vccnz {L}
    {L}x:
    s_mov_b64 exec, -1
    s_waitcnt lgkmcnt(0)'''); stamp(10)
    q=[]
    def ald(i,j): q.append((i,j)); e(f'buffer_load_dwordx4 {v(AR+28*(i&1)+4*j,4)}, {v(vL16 if j<4 else vL4)}, {s(sWS,4)}, {s(sAo+i)} offen offset:{(j&3)*1024}{ASC}')
    for i in (0,1):
        for j in range(nk): ald(i,j)
    Y=132; S=(40,68,12)
    if own and TPR: e(f's_setprio {1+(TPR==2 and nk==6)}')
    def rds(): e([f'ds_read_b128 {v(Y+4*k if k<5 else S[k-5],4)}, v2 offset:{(k+3)%8*16*RS}' for k in range(8)]+['v_xor_b32 v2, 0x10000, v2'])
    def fin(i):
        E=Y+4; w=lambda k:[f's_waitcnt lgkmcnt({k})'] if i==3 else []
        p2=lambda op,d,x,y,z=None: [f'v_pk_{op}_f32 {v(d+2*h,2)}, {v(x+2*h,2)}, '+(y if isinstance(y,str) else v(y+2*h,2))+(f', {v(z+2*h,2)}' if z else '') for h in (0,1)]
        if i<3: p2=lambda op,d,x,y,z=None: [f'v_{op}_f32 {v(d+h)}, '+(y[:4].replace('[','') if isinstance(y,str) else v(y+h))+f', {v(x+h)}'+(f', {v(z+h)}' if z else '') for h in range(4)]
        pk=lambda d,x: p2('add',d,d,x)
        f=(w(6) or ['s_waitcnt lgkmcnt(0)'])+pk(Y,Y+4)+w(4)+pk(Y+8,Y+12)+w(3)+pk(Y,Y+16)+pk(Y,Y+8)+p2('mul',E,Y,'s[54:55]')+[f'v_exp_f32 {v(E+r)}, {v(E+r)}' for r in range(4)]
        f+=[f'v_lshlrev_b32 {v(Y+16+2*r)}, 16, {v(XR+2*i+r)}' for r in (0,1)]+p2('add',E,E,'s[56:57]')+[f'v_rcp_f32 {v(E+r)}, {v(E+r)}' for r in range(4)]
        f+=[f'v_and_b32 {v(Y+17+2*r)}, 0xffff0000, {v(XR+2*i+r)}' for r in (0,1)]+w(0)+pk(S[0],S[1])+p2('mul',Y,Y,E)+pk(S[0],S[2])+p2('fma',Y,Y,S[0],Y+16)
        f+=[f'v_cvt_pk_bf16_f32 {v(Y+r)}, {v(Y+2*r)}, {v(Y+2*r+1)}' for r in (0,1)]+[f'buffer_store_dwordx2 {v(Y,2)}, v3, {s(sO,4)}, {s(sOo+i)} offen']
        return f
    f=[]
    def put(k):
        for _ in range(k):
            if f: x=f.pop(0); e(x); x.startswith('buffer') and q.append('st')
    def sync(i):
        put(99); e('s_waitcnt lgkmcnt(0)\ns_barrier'); own and rds()
        if i in (0,3): stamp(11+i//3)
    for i in range(4):
        C=AC+20*(i&1)
        for j in range(nk):
            e(f's_waitcnt vmcnt({len(q)-1-q.index((i,j))})')
            if own and i and j==FJ: f=fin(i-1)
            for n in range(5):
                e(f'v_mfma_f32_16x16x32_bf16 {v(C+4*n,4)}, {v(WS_[j]+4*n,4)}, {v(AR+28*(i&1)+4*j,4)}, '+(v(C+4*n,4) if j else '0')); put(PUT+(nk==5))
            if i<2: ald(i+2,j)
            if i and j==BJ: sync(i-1)
        if len(f)>=4: put(4)
        else: e('s_nop 3')
        for n in range(5): e(f'ds_write_b128 v0, {v(C+4*n,4)} offset:{64*n}')
        e('v_xor_b32 v0, 0x10000, v0')
    sync(3)
    if own: f=fin(3); put(99)
def build(stamp_f):
    e=A(); stamp=lambda i: stamp_f(e,i)
    e(f'''k2_top:
    s_cmp_ge_u32 s2, 256
    s_cbranch_scc1 k2_end
    s_load_dwordx2 {s(sWS,2)}, s[0:1], 80
    s_load_dwordx2 {s(sDM,2)}, s[0:1], 80
    s_load_dwordx2 {s(sSP,2)}, s[0:1], 40
    s_load_dwordx2 {s(sBS,2)}, s[0:1], 48
    s_load_dwordx2 {s(sX,2)}, s[0:1], 0
    s_load_dwordx2 {s(sO,2)}, s[0:1], 64''')
    if int(os.environ.get('CP2','1')): codepf(e,'k2_top',5,15)
    e(f'''v_lshrrev_b32 v1, 6, v0
    v_and_b32 v0, 63, v0
    v_readfirstlane_b32 {s(sW)}, v1''')
    stamp(0)
    srd(e,sWS,WSZ); srd(e,sDM,WSZ); srd(e,sSP,2048*4096); srd(e,sBS,4096); srd(e,sX,2048*1280); srd(e,sO,2048*1280)
    e(f'''s_and_b32 {s(sWq)}, {s(sW)}, 3
    s_lshr_b32 {s(sKh)}, {s(sW)}, 2
    s_and_b32 {s(sH)}, s2, 7
    s_lshl_b32 {s(sH)}, {s(sH)}, 2
    s_lshr_b32 {s(sT0)}, s2, 6
    s_add_u32 {s(sH)}, {s(sH)}, {s(sT0)}
    s_bfe_u32 {s(sQB)}, s2, 0x30003
    s_lshl_b32 {s(sQB)}, {s(sQB)}, 2
    s_add_u32 {s(sQB)}, {s(sQB)}, {s(sWq)}
    s_bfe_u32 {s(sTB)}, s2, 0x20001
    s_lshl_b32 {s(sTB)}, {s(sTB)}, 2
    s_bfe_u32 {s(sT0)}, s2, 0x20003
    s_add_u32 {s(sTB)}, {s(sTB)}, {s(sT0)}
    s_lshr_b32 {s(sSl)}, s2, 5
    s_min_u32 {s(sFB)}, {s(sSl)}, 6
    s_and_b32 {s(sT0)}, s2, 1
    s_mul_i32 {s(sT0)}, {s(sT0)}, 7
    s_add_u32 {s(sFB)}, {s(sFB)}, {s(sT0)}
    s_mul_i32 {s(sT2)}, {s(sH)}, {HS}
    s_min_u32 {s(sMk)}, {s(sW)}, 6
    s_lshl_b32 {s(sMk)}, {s(sMk)}, 10
    s_add_u32 {s(sKV)}, {s(sT2)}, {s(sMk)}
    s_lshl_b32 {s(sZ)}, {s(sFB)}, 1
    s_add_u32 {s(sZ)}, {s(sZ)}, {s(sKh)}
    s_min_u32 {s(sZ)}, {s(sZ)}, 26
    s_lshl_b32 {s(sZ)}, {s(sZ)}, 7
    s_add_u32 {s(sZ)}, {s(sZ)}, {s(sWq)}
    s_lshl_b32 {s(sZ)}, {s(sZ)}, 10
    s_add_u32 {s(sZ)}, {s(sZ)}, {Z2T}
    s_lshl_b32 {s(sMz)}, {s(sW)}, 10
    s_lshl_b32 {s(sMw)}, {s(sMz)}, 1
    s_add_u32 {s(sMz)}, {s(sMz)}, {LZ}
    s_add_u32 {s(sMw)}, {s(sMw)}, {LW}
    s_lshl_b32 {s(sSo)}, {s(sTB)}, 3
    s_add_u32 {s(sSo)}, {s(sSo)}, {s(sW)}
    s_lshl_b32 {s(sSo)}, {s(sSo)}, 16
    s_mul_i32 {s(sT0)}, {s(sQB)}, {4*TL}
    s_add_u32 {s(sT0)}, {s(sT0)}, {ACT}
    s_lshl_b32 {s(sU0)}, {s(sH)}, 9
    s_add_u32 {s(sU0)}, {s(sU0)}, {s(sT0)}
    s_lshr_b32 {s(sT1)}, {s(sH)}, 1
    s_lshl_b32 {s(sT1)}, {s(sT1)}, 8
    s_add_u32 {s(sT0)}, {s(sT0)}, {s(sT1)}
    s_and_b32 {s(sT1)}, {s(sH)}, 1
    s_lshl_b32 {s(sT1)}, {s(sT1)}, 3
    s_add_u32 {s(sT0)}, {s(sT0)}, {s(sT1)}
    s_add_u32 {s(sU1)}, {s(sT0)}, 16384
    s_add_u32 {s(sT0)}, {s(sU0)}, {2*TL}
    s_add_u32 {s(sT1)}, {s(sU1)}, {2*TL}
    v_lshlrev_b32 {v(vL16)}, 4, v0
    v_lshrrev_b32 v12, 3, v0
    v_lshrrev_b32 v13, 4, v0
    v_and_b32 v14, 7, v0
    v_xor_b32 v13, v13, v14
    v_lshlrev_b32 v13, 4, v13
    v_lshl_add_u32 {v(vDW0)}, v12, 12, v13
    v_xor_b32 {v(vDW1)}, 0x8040, {v(vDW0)}
    s_mov_b32 {s(sSt)}, 128
    s_mov_b32 {s(sUn)}, 33
    s_mov_b32 {s(sLim)}, {17-LEAD}
    s_cmp_lt_u32 s2, {224 if NPF else 999}
    s_cbranch_scc1 k2_np
    s_sub_u32 {s(sSo)}, s2, 224
    s_lshl_b32 {s(sSo)}, {s(sSo)}, 3
    s_add_u32 {s(sSo)}, {s(sSo)}, {s(sW)}
    s_lshl_b32 {s(sSo)}, {s(sSo)}, 15
    s_add_u32 {s(sSo)}, {s(sSo)}, {TW*128 if TW else 512}
    {f's_mov_b32 {s(sSP+2)}, 0' if NP2 or TW else ''}
    s_mov_b32 {s(sSt)}, 256
    s_mov_b32 {s(sUn)}, 6
    s_mov_b32 {s(sLim)}, {(24-TW)//4 if TW else 5 if LEAD==3 else 4}
    s_mov_b32 {s(sZ)}, 0xf0000000
    v_add_u32 {v(vDW1)}, 128, {v(vDW0)}
    k2_np:
    v_and_b32 v12, 31, v0
    v_lshrrev_b32 v13, 5, v0
    v_lshlrev_b32 {v(vR)}, 3, v12
    v_bfe_u32 v14, v0, 4, 1
    v_mul_u32_u24 v14, {TL-256}, v14
    v_lshl_add_u32 v14, v12, 4, v14
    v_lshl_add_u32 {v(vSt)}, v13, 8, v14
    v_lshl_add_u32 {v(vT)}, v13, 30, v14
    s_waitcnt lgkmcnt(0)''')
    stamp(4)
    for j in range(4): em(e,dma(j,0))
    for i in (0,1):
        e(f'buffer_load_dwordx4 {v(QM+4*i,4)}, {v(vSt)}, {s(sWS,4)}, {s((sU0,sT0)[i])} offen')
        e(f'buffer_load_dwordx2 {v(QR+2*i,2)}, {v(vT)}, {s(sWS,4)}, {s((sU1,sT1)[i])} offen')
    def pst(st):
        for j in range(4): em(e,dma(j,st),f's_add_u32 {s(sKV)}, {s(sKV)}, {SS}' if j==1 else 's_nop 0')
    pst(1)
    e(f'''s_lshl_b32 {s(sT0)}, {s(sKh)}, 10
    v_add_u32 {v(vK)}, {s(sT0)}, {v(vL16)}
    v_add_u32 {v(vA)}, {s(sT0)}, {v(vK)}
    s_lshl_b32 {s(sT0)}, {s(sKh)}, 8
    s_add_u32 {s(sT0)}, {s(sT0)}, 6144
    v_add_u32 {v(vR)}, {s(sT0)}, {v(vR)}
    s_lshl_b32 {s(sT0)}, {s(sKh)}, 2
    v_add_u32 v13, {s(sT0)}, v13
    v_bfe_u32 v14, v0, 1, 3
    v_xor_b32 v13, v13, v14
    v_lshlrev_b32 v13, 4, v13
    v_lshl_add_u32 v13, v12, 7, v13
    s_lshl_b32 {s(sT0)}, {s(sWq)}, 12
    s_add_u32 {s(sT0)}, {s(sT0)}, {LW}
    v_add_u32 {v(vB0)}, {s(sT0)}, v13
    v_xor_b32 {v(vB1)}, 32, {v(vB0)}
    v_mov_b32 {v(vIdx)}, 0xdddddddd
    s_lshl_b32 {s(sT0)}, {s(sW)}, 3
    s_mov_b32 s54, 0x140e0700
    s_mov_b32 s55, 0x29231e19
    s_lshr_b64 s[54:55], s[54:55], {s(sT0)}
    s_and_b32 {s(sNk)}, s54, 0xff
    s_mul_i32 {s(sWf)}, {s(sNk)}, 40960
    s_mul_i32 {s(sT0)}, {s(sSl)}, 5120
    s_add_u32 {s(sWf)}, {s(sWf)}, {s(sT0)}
    s_add_u32 {s(sWf)}, {s(sWf)}, {WF-40960}
    s_bfe_u32 {s(sT0)}, s2, 0x20003
    s_mul_i32 {s(sT0)}, {s(sT0)}, 1280
    s_add_u32 {s(sPfW)}, {s(sWf)}, {s(sT0)}
    s_sub_u32 {s(sPfW)}, {s(sPfW)}, {(NIT-1-WT)*40960}
    v_add_u32 v14, 54, v0
    v_lshrrev_b32 v14, 6, v14
    v_lshlrev_b32 v14, 30, v14
    v_lshl_add_u32 v14, v0, 7, v14
    s_mov_b32 {s(sIt)}, 0''')
    if TW: e(f's_mov_b32 {s(sSP+2)}, {2048*4096}\ns_lshl_b32 {s(sT0)}, s2, 3\ns_add_u32 {s(sT0)}, {s(sT0)}, {s(sW)}\ns_lshl_b32 {s(sT0)}, {s(sT0)}, 12\nv_lshlrev_b32 v13, 3, {v(vL16)}\ns_bfm_b64 exec, {TW}, 0\nbuffer_load_dword v15, v13, {s(sSP,4)}, {s(sT0)} offen offset:512\ns_mov_b64 exec, -1')
    for r in range(O0,G1+16): e(f'v_mov_b32 {v(r)}, 0')
    e(f's_waitcnt vmcnt({5 if TW else 4})'); e('s_barrier'); stamp(1)
    e([rd(KM,vK,0),f'ds_read_b64 {v(KR,2)}, {v(vR)}',rd(GBa,vB0,0),rd(GA1,vA,LZ+4096),rd(GA0,vA,LZ),rd(V0,vA,2048),rd(V1,vA,3072)])
    e('s_waitcnt lgkmcnt(2)'); e(mf(SA,KM,QM,'0')); e(mf8(SA,KR,QR))
    TP=int(os.environ.get('TP','0'))
    if TP: e(f's_lshl_b32 {s(sT0)}, {s(sW)}, 7\ns_add_u32 {s(sT0)}, {s(sT0)}, {ACT+47*1024}\nv_mul_u32_u24 v13, {TL*128//TP}, v0\ns_bfm_b64 exec, {TP}, 0\nbuffer_load_dword v15, v13, {s(sWS,4)}, {s(sT0)} offen\ns_mov_b64 exec, -1')
    elif TW: pass
    elif WT: e(f's_mov_b32 {s(sT0)}, {OOR}\nbuffer_load_dword v15, v14, {s(sWS,4)}, {s(sT0)} offen')
    if NP2: e(f's_mov_b32 {s(sSP+2)}, {2048*4096}')
    for st in range(2,LEAD): pst(st)
    if LEAD==3:
        for r in (sMk,sMz,sMw): e(f's_xor_b32 {s(r)}, {s(r)}, 0x10000')
    stamp(7)
    e(f's_cmp_eq_u32 {s(sKh)}, 0\ns_cbranch_scc0 k2b_loop\n.p2align '+os.environ.get('AL','6')); e(['s_nop 0']*PA0); e('k2a_loop:')
    pp(e,0,0); pp(e,1,0); e('s_cbranch_scc1 k2a_loop\ns_branch k2a_peel\n.p2align 6'); e(['s_nop 0']*PAD); e('k2b_loop:'); pp(e,0,1); pp(e,1,1); e('s_cbranch_scc1 k2b_loop\ns_branch k2b_peel')
    for g in (0,1)[:2*(NOG>0)]: e(f'.p2align 6\nk2{"cd"[g]}_loop:'); pp(e,0,g,nog=1); pp(e,1,g,nog=1); e(f's_cbranch_scc1 k2{"cd"[g]}_loop\ns_waitcnt vmcnt(1)\ns_branch k2{"ab"[g]}_peel')
    e('.p2align 6\nk2a_peel:'); peel(e,0,stamp); stamp(2)
    e('s_waitcnt lgkmcnt(0)\ns_barrier')
    for j in range(8): e(rd(G0+4*j,13,1024*j))
    for i in (0,1):
        e(f's_waitcnt lgkmcnt({4-4*i})')
        for r in range(0,14,2): e(f'v_pk_add_f32 {v(O0+16*i+r,2)}, {v(O0+16*i+r,2)}, {v(G0+16*i+r,2)}')
    e(f'''v_cmp_le_f32 s[52:53], s50, {v(O0+12)}
    v_cmp_ge_f32 s[54:55], s51, {v(O0+12)}
    v_cmp_le_f32 s[56:57], s50, {v(O1+12)}
    v_cmp_ge_f32 s[58:59], s51, {v(O1+12)}
    s_and_b64 s[52:53], s[52:53], s[54:55]
    s_and_b64 s[56:57], s[56:57], s[58:59]
    s_and_b64 s[52:53], s[52:53], s[56:57]
    s_andn2_b64 s[52:53], exec, s[52:53]
    s_cbranch_scc1 k2_slow
    k2_ofin:
    v_rcp_f32 v14, {v(O0+12)}
    v_rcp_f32 v15, {v(O1+12)}
    s_add_u32 {s(sT0)}, {s(sU0)}, {2*TL}
    s_add_u32 {s(sT1)}, {s(sU1)}, {2*TL}''')
    for i in (0,1):
        O=O0+16*i
        for r in range(12): e(f'v_mul_f32 {v(O+r)}, {v(O+r)}, {v(14+i)}')
        for r in range(6): e(f'v_cvt_pk_bf16_f32 {v(O+r)}, {v(O+2*r)}, {v(O+2*r+1)}')
        e(f'buffer_store_dwordx4 {v(O,4)}, {v(vSt)}, {s(sWS,4)}, {s((sU0,sT0)[i])} offen{SC}')
        e(f'buffer_store_dwordx2 {v(O+4,2)}, {v(vT)}, {s(sWS,4)}, {s((sU1,sT1)[i])} offen{SC}')
    e('s_branch k2_p3\n.p2align 6\nk2b_peel:'); peel(e,1,stamp); stamp(2)
    e(f's_waitcnt vmcnt({12+5*LP}) lgkmcnt(0)\ns_barrier')
    for j in range(8): e(rd(O0+4*j,13,1024*j))
    if not EX: e(f'v_lshlrev_b32 v14, 16, {v(vBs)}\nv_lshlrev_b32 v15, 16, {v(vBs)}')
    for r in range(16*(not EX)): e(f'v_lshlrev_b32 {v(SA+2*r)}, 16, {v(Z+r)}\nv_and_b32 {v(SA+2*r+1)}, 0xffff0000, {v(Z+r)}\nv_pk_add_f32 {v(G0+2*r,2)}, {v(G0+2*r,2)}, v[14:15]')
    for j in range(4):
        e(f's_waitcnt lgkmcnt({6-2*j})')
        for r in range(8*j,8*j+8,2): e(f'v_pk_add_f32 {v(G0+r,2)}, {v(G0+r,2)}, {v(O0+r,2)}')
        for r in range(8*j,8*j+8,2): e(f'v_pk_mul_f32 {v(G0+r,2)}, {v(G0+r,2)}, {v(SA+r,2)}')
        for r in range(4): e(f'v_cvt_pk_bf16_f32 {v(G0+8*j+r)}, {v(G0+8*j+2*r)}, {v(G0+8*j+2*r+1)}')
        e(f'buffer_store_dwordx4 {v(G0+8*j,4)}, {v(vSt)}, {s(sWS,4)}, {s(sU0+(j>>1))} offen offset:{512*j}{SC}')
    e('k2_p3:'); stamp(8)
    e(f'''s_and_b32 {s(sT1)}, s2, 7
    s_lshl_b32 {s(sT1)}, {s(sT1)}, 2
    s_bfe_u32 {s(sT0)}, s2, 0x20003
    s_add_u32 {s(sT1)}, {s(sT1)}, {s(sT0)}
    s_mul_i32 s54, {s(sT1)}, {4*48}
    s_add_u32 s54, s54, {s(sNk)}
    s_lshl_b32 s54, s54, 10
    s_add_u32 s54, s54, {ACT}
    s_mul_i32 s55, {s(sT1)}, {64*1280}
    s_mul_i32 {s(sT0)}, {s(sSl)}, 160
    s_add_u32 s55, s55, {s(sT0)}
    s_lshl_b32 {s(sT0)}, {s(sW)}, 6
    s_sub_u32 {s(sT0)}, {s(sT0)}, 192
    v_add_u32 v9, {s(sT0)}, v0
    v_mul_u32_u24 v8, 3277, v9
    v_lshrrev_b32 v8, 16, v8
    v_mul_u32_u24 v3, {1280-160}, v8
    v_lshl_add_u32 v3, v9, 3, v3
    v_add_u32 v8, v8, v9
    v_lshlrev_b32 v8, 4, v8
    v_add_u32 v2, {LB[0]}, v8
    v_lshlrev_b32 v13, {FS}, v0
    v_mov_b32 v15, 1
    {lpb(sLp)}
    v_add_u32 v12, {s(sLp)}, {v(vL16)}
    s_mul_i32 {s(sT0)}, {s(sW)}, {16*RS}
    s_add_u32 {s(sT0)}, {s(sT0)}, {LB[0]}
    v_and_b32 v4, 15, v0
    v_mul_u32_u24 v4, {RS}, v4
    v_and_b32 v0, 0x30, v0
    v_add3_u32 v0, {s(sT0)}, v4, v0''')
    for i in range(4):
        e(f'''s_add_u32 {s(sT0)}, {s(sSl) if ROT else 0}, {i}
        s_and_b32 {s(sT0)}, {s(sT0)}, 3
        s_mul_i32 {s(sOo+i)}, {s(sT0)}, {16*1280}
        s_add_u32 {s(sOo+i)}, {s(sOo+i)}, s55
        s_mul_i32 {s(sT0)}, {s(sT0)}, {TL}
        s_add_u32 {s(sAo+i)}, {s(sT0)}, s54''')
    e(f'''s_lshl_b32 {s(sT1)}, {s(sT1)}, {6+FS}
    s_add_u32 {s(sT1)}, {s(sT1)}, {FL}
    s_lshl_b32 {s(sT0)}, {s(sW)}, 3
    s_mov_b32 s54, 0x20000e00
    s_mov_b32 s55, 0x342e2a24
    s_mov_b32 s56, 0x06200e0e
    s_mov_b32 s57, 0x08080606
    s_lshr_b64 s[54:55], s[54:55], {s(sT0)}
    s_lshr_b64 s[56:57], s[56:57], {s(sT0)}
    s_bfm_b64 s[52:53], s56, s54
    s_mov_b32 {s(sSt)}, 0x100000
    s_mov_b32 s54, {fl(-1.4426950408889634)}
    s_mov_b32 s55, s54
    s_mov_b32 s56, 1.0
    s_mov_b32 s57, 1.0
    s_mov_b64 exec, 1
    s_waitcnt vmcnt(0)
    buffer_store_dword v15, off, {s(sWS,4)}, {s(sFl)}{SC}
    s_mov_b64 exec, -1'''); stamp(9)
    e(f'''s_cmp_lt_u32 {s(sW)}, 2
    s_cbranch_scc1 k2_t70
    s_cmp_lt_u32 {s(sW)}, 3
    s_cbranch_scc1 k2_t60
    s_cmp_lt_u32 {s(sW)}, 4
    s_cbranch_scc1 k2_t51''')
    for n in range(5-LP): e(rd(WS_[4]+4*n,12,1024*n) if LP else wld(4,n))
    e(f's_cmp_lt_u32 {s(sW)}, 6\ns_cbranch_scc1 k2_t51')
    for nk,own in ((6,1),(5,1),(6,0),(7,0)):
        e(f'k2_t{nk}{own}:'); n0=len(e.l); tail(e,nk,own,stamp)
        import re
        e.l[n0:]=[x for x in e.l[n0:] if not(('f' in ABL and re.match('v_(add|mul|fma|exp|rcp|cvt|pk|lshl|and)',x)) or ('W' in ABL and 'ds_write' in x) or ('R' in ABL and 'ds_read' in x) or ('m' in ABL and 'mfma' in x) or ('s' in ABL and 'store_dwordx2' in x))]
        if nk!=7: e('s_branch k2_fin')
    e('k2_fin:'); stamp(3); stamp(-1)
    e('k2_end:\ns_endpgm')
    e(f'''k2_slow:
    v_and_b32 v12, 31, v0
    v_lshlrev_b32 v12, 3, v12
    v_mov_b32 v14, 0xff800000
    v_mov_b32 v15, 0xff800000''')
    for ps in (0,1):
        e(f'''s_mov_b32 {s(sIt)}, 0
        k2_sl{ps}:
        s_lshr_b32 {s(sT0)}, {s(sIt)}, 1
        s_mul_i32 {s(sT0)}, {s(sT0)}, {SS}
        s_add_u32 {s(sT0)}, {s(sT0)}, {s(sT2)}
        s_and_b32 {s(sT1)}, {s(sIt)}, 1
        s_lshl_b32 s50, {s(sT1)}, 8
        s_add_u32 s50, s50, {s(sT0)}
        s_add_u32 s50, s50, 6144
        s_lshl_b32 {s(sT1)}, {s(sT1)}, 10
        s_add_u32 {s(sT0)}, {s(sT0)}, {s(sT1)}
        s_add_u32 {s(sT1)}, {s(sT0)}, {s(sT1)}
        buffer_load_dwordx4 {v(KM,4)}, {v(vL16)}, {s(sWS,4)}, {s(sT0)} offen
        buffer_load_dwordx2 {v(KR,2)}, v12, {s(sWS,4)}, s50 offen
        buffer_load_dwordx4 {v(V0,4)}, {v(vL16)}, {s(sWS,4)}, {s(sT1)} offen offset:2048
        buffer_load_dwordx4 {v(V1,4)}, {v(vL16)}, {s(sWS,4)}, {s(sT1)} offen offset:3072
        s_waitcnt vmcnt(0)''')
        for i in (0,1): e(mf(SA+16*i,KM,QM+4*i,v(G0+16*i,16) if ps else '0')); e(mf8(SA+16*i,KR,QR+2*i))
        e('s_nop 11')
        for r in range(32): e(f'v_exp_f32 {v(SA+r)}, {v(SA+r)}' if ps else f'v_max_f32 {v(14+r//16)}, {v(14+r//16)}, {v(SA+r)}')
        if ps:
            e('s_nop 1')
            for i in (0,1): e(pv(O0+16*i,V0,SA+16*i)); e(pv(O0+16*i,V1,SA+16*i+8))
        e(f's_add_u32 {s(sIt)}, {s(sIt)}, 1\ns_cmp_lt_u32 {s(sIt)}, 64\ns_cbranch_scc1 k2_sl{ps}')
        if ps==0:
            for i in (0,1): e(f'v_mov_b32 v13, {v(14+i)}\ns_nop 1\nv_permlane32_swap_b32 v13, {v(14+i)}\ns_nop 0\nv_max_f32 {v(14+i)}, v13, {v(14+i)}')
            for r in range(32): e(f'v_sub_f32 {v(G0+r)}, 0, {v(14+r//16)}\nv_mov_b32 {v(O0+r)}, 0')
    e('code_end:\ns_nop 11\ns_branch k2_ofin')
    return e
```
